```python
import torch

def _softmax(x, axis=-1):
    return torch.softmax(x, dim=axis)
def _gelu(x):
    return torch.nn.functional.gelu(x, approximate="tanh")
def _silu(x):
    return torch.nn.functional.silu(x)
def _sigmoid(x):
    return torch.sigmoid(x)
def _layernorm(x, axis=-1, eps=1e-5):
    m = x.mean(dim=axis, keepdim=True)
    v = x.var(dim=axis, keepdim=True, unbiased=False)
    return (x - m) / torch.sqrt(v + eps)
def _scatter_add(tgt, idx, src, axis=0):
    return tgt.clone().index_add_(axis, idx, src)
def _segment_sum(src, seg, n):
    out = torch.zeros((n,) + src.shape[1:], dtype=src.dtype)
    return out.index_add_(0, seg, src)
def _pad(x, pw):
    flat = tuple(v for pair in reversed(pw) for v in pair)
    return torch.nn.functional.pad(x, flat)

kernel_name = 'concat_heads__gqa_block_cached__mha_block_cached__near_ridge'

def setup_inputs():

    _w = (lambda a: (lambda t: t.to(torch.bfloat16) if t.is_floating_point() else t)(torch.as_tensor(a)))
    def _A_setup():
        B, Sq, D = 16, 32, 576
        Hq, Hkv, Sk, Dh = 32, 16, 32, 128
        assert Hq % Hkv == 0, (Hq, Hkv)
        return {
            "x": _w((lambda *s: torch.randn(*s, dtype=torch.bfloat16) * 0.8)(B, Sq, D)),
            "k_cache": _w((lambda *s: torch.randn(*s, dtype=torch.bfloat16) * 0.8)(B, Hkv, Sk, Dh)),
            "v_cache": _w((lambda *s: torch.randn(*s, dtype=torch.bfloat16) * 0.05)(B, Hkv, Sk, Dh)),
            "wq": _w((lambda *s: torch.randn(*s, dtype=torch.bfloat16) * 0.8)(D, Hq * Dh) * (D ** -0.5)),
            "wo": _w((lambda *s: torch.randn(*s, dtype=torch.bfloat16) * 0.05)(Hq * Dh, D) * ((Hq * Dh) ** -0.5)),
        }
    _A_in = _A_setup()

    def _B_setup():
        B, Sq, D = 16, 32, 576
        H, Sk, Dh = 32, 32, 128
        return {
            "x": _w((lambda *s: torch.randn(*s, dtype=torch.bfloat16) * 0.8)(B, Sq, D)),
            "k_cache": _w((lambda *s: torch.randn(*s, dtype=torch.bfloat16) * 0.8)(B, H, Sk, Dh)),
            "v_cache": _w((lambda *s: torch.randn(*s, dtype=torch.bfloat16) * 0.05)(B, H, Sk, Dh)),
            "wq": _w((lambda *s: torch.randn(*s, dtype=torch.bfloat16) * 0.8)(D, H * Dh) * (D ** -0.5)),
            "wo": _w((lambda *s: torch.randn(*s, dtype=torch.bfloat16) * 0.05)(H * Dh, D) * ((H * Dh) ** -0.5)),
        }
    _B_in = _B_setup()

    return {
        "A_x": _A_in["x"],
        "A_k_cache": _A_in["k_cache"],
        "A_v_cache": _A_in["v_cache"],
        "A_wq": _A_in["wq"],
        "A_wo": _A_in["wo"],
        "B_x": _B_in["x"],
        "B_k_cache": _B_in["k_cache"],
        "B_v_cache": _B_in["v_cache"],
        "B_wq": _B_in["wq"],
        "B_wo": _B_in["wo"],
    }

def reference(A_x, A_k_cache, A_v_cache, A_wq, A_wo, B_x, B_k_cache, B_v_cache, B_wq, B_wo):
    def _A_ref(x, k_cache, v_cache, wq, wo):
        B, Sq, D = x.shape
        Hq, Dh = 32, 128
        Hkv = k_cache.shape[1]
        rep = Hq // Hkv
        q = (lambda x, *d: x.permute(*d))((x @ wq).reshape(B, Sq, Hq, Dh), 0, 2, 1, 3)
        k = (lambda x, n, axis: torch.repeat_interleave(x, n, dim=axis))(k_cache, rep, axis=1)
        v = (lambda x, n, axis: torch.repeat_interleave(x, n, dim=axis))(v_cache, rep, axis=1)
        scores = torch.einsum("bhqd,bhkd->bhqk", q, k) * (Dh ** -0.5)
        p = _softmax(scores, axis=-1)
        o = torch.einsum("bhqk,bhkd->bhqd", p, v)
        return (lambda x, *d: x.permute(*d))(o, 0, 2, 1, 3).reshape(B, Sq, Hq * Dh) @ wo

    def _B_ref(x, k_cache, v_cache, wq, wo):
        B, Sq, D = x.shape
        H, Dh = 32, 128
        q = (lambda x, *d: x.permute(*d))((x @ wq).reshape(B, Sq, H, Dh), 0, 2, 1, 3)
        scores = torch.einsum("bhqd,bhkd->bhqk", q, k_cache) * (Dh ** -0.5)
        p = _softmax(scores, axis=-1)
        o = torch.einsum("bhqk,bhkd->bhqd", p, v_cache)
        return (lambda x, *d: x.permute(*d))(o, 0, 2, 1, 3).reshape(B, Sq, H * Dh) @ wo

    a = _A_ref(A_x, A_k_cache, A_v_cache, A_wq, A_wo)
    b = _B_ref(B_x, B_k_cache, B_v_cache, B_wq, B_wo)
    return torch.concatenate([a, b], axis=-1)
```

```python
import sys
NAME = "concat_heads__gqa_block_cached__mha_block_cached__near_ridge"

class Asm:
    def __init__(self): self.L=[]
    def __call__(self, s): self.L.append("    "+s)
    def label(self, n): self.L.append(n+":")
    def raw(self, s): self.L.append(s)
    def text(self): return "\n".join(self.L)+"\n"

SLOT = 36864
P_BASE = 0
PART_BASE = 2*16*32*2048
WS_USED = PART_BASE + 8*2*4*4*4*18432

S_X=8; S_WQ=12; S_K=16; S_WS=20; S_V=24; S_WO=28; S_OUT=32
S_W=62
S_BR=63; S_HQ=64; S_RB=65; S_HL=66; S_H=67; S_B=68
S_T0=70; S_T1=71; S_T2=72; S_T3=73
S_SOX=74; S_SOQ=75; S_SOK=76; S_C=77; S_SOP=78; S_SOW=79; S_CP=80; S_KQ=81; S_LW=82

def srd(a, base, lo, hi, nrec):
    a(f"s_mov_b32 s{base}, s{lo}")
    a(f"s_and_b32 s{base+1}, s{hi}, 0xffff")
    a(f"s_mov_b32 s{base+2}, {nrec}")
    a(f"s_mov_b32 s{base+3}, 0x20000")

def prologue(a, nwg=256):
    a(f"s_cmp_ge_u32 s2, {nwg}")
    a("s_cbranch_scc1 L_end_%s" % a.kname)
    a("s_load_dwordx16 s[36:51], s[0:1], 0")
    a("s_load_dwordx8 s[52:59], s[0:1], 64")
    a("s_load_dwordx2 s[60:61], s[0:1], 96")
    a("v_lshrrev_b32 v1, 6, v0")
    a(f"s_and_b32 s{S_T0}, s2, 7")
    a(f"v_readfirstlane_b32 s{S_W}, v1")
    a("v_and_b32 v1, 63, v0")
    a(f"s_lshr_b32 s{S_BR}, s{S_T0}, 2")
    a(f"s_and_b32 s{S_HQ}, s{S_T0}, 3")
    a(f"s_lshr_b32 s{S_T0}, s2, 3")
    a(f"s_and_b32 s{S_RB}, s{S_T0}, 3")
    a(f"s_lshr_b32 s{S_HL}, s{S_T0}, 2")
    a(f"s_lshl_b32 s{S_H}, s{S_HQ}, 3")
    a(f"s_add_u32 s{S_H}, s{S_H}, s{S_HL}")
    a(f"s_lshl_b32 s{S_B}, s{S_RB}, 2")
    a(f"s_add_u32 s{S_B}, s{S_B}, s{S_W}")
    a(f"s_and_b32 s{S_CP}, s{S_HL}, 3")
    a(f"s_lshr_b32 s{S_KQ}, s{S_HL}, 2")

def select_ptrs(a, which):
    a("s_waitcnt lgkmcnt(0)")
    a(f"s_cmp_eq_u32 s{S_BR}, 0")
    for base, idx, na, nb in which:
        la = 36+2*idx; lb = 46+2*idx
        a(f"s_cselect_b32 s{base}, s{la}, s{lb}")
        a(f"s_cselect_b32 s{base+1}, s{la+1}, s{lb+1}")
        if na == nb: a(f"s_mov_b32 s{base+2}, {na}")
        else: a(f"s_cselect_b32 s{base+2}, {na}, s{S_T3}")
        a(f"s_mov_b32 s{base+3}, 0x20000")
    for base, idx, na, nb in which:
        a(f"s_and_b32 s{base+1}, s{base+1}, 0xffff")

def kv_dma_voffs(a, vk, t0, t1):
    a(f"v_lshrrev_b32 v{t0}, 4, v1")
    a(f"v_and_b32 v{t1}, 15, v1")
    for j in range(4):
        a(f"v_add_u32 v{vk+j}, {4*j}, v{t0}")
        a(f"v_xor_b32 v{vk+j}, v{vk+j}, v{t1}")
        a(f"v_lshlrev_b32 v{vk+j}, 4, v{vk+j}")
        a(f"v_lshl_add_u32 v{vk+j}, v{t0}, 8, v{vk+j}")

def kv_soffset(a, dst, head_s):
    a(f"s_lshl_b32 s{S_T0}, s{S_B}, 4")
    a(f"s_lshr_b32 s{S_T1}, s{head_s}, 1")
    a(f"s_add_u32 s{S_T0}, s{S_T0}, s{S_T1}")
    a(f"s_lshl_b32 s{S_T1}, s{S_B}, 5")
    a(f"s_add_u32 s{S_T1}, s{S_T1}, s{head_s}")
    a(f"s_cmp_eq_u32 s{S_BR}, 0")
    a(f"s_cselect_b32 s{dst}, s{S_T0}, s{S_T1}")
    a(f"s_lshl_b32 s{dst}, s{dst}, 13")

def dma_kv(a, srdb, vk, soff, slot):
    for half in range(2):
        a(f"s_add_u32 m0, s{S_LW}, {slot*SLOT + half*4096}")
        if half == 0: a(f"s_mov_b32 s{S_T2}, s{soff}")
        else: a(f"s_add_u32 s{S_T2}, s{soff}, 4096")
        for j in range(4):
            a(f"buffer_load_dwordx4 v{vk+j}, s[{srdb}:{srdb+3}], s{S_T2} offen offset:{1024*j} lds")

def kernel_header(a, kname):
    a.kname = kname
    a.raw(f".globl {kname}")
    a.raw(".p2align 8")
    a.raw(f".type {kname},@function")
    a.label(kname)

def kernel_footer(a):
    a.label("L_end_%s" % a.kname)
    a("s_endpgm")

def kd(a, kname, vgpr, sgpr=96):
    acc = (vgpr+3)//4*4
    a.raw(f".amdhsa_kernel {kname}")
    a.raw(f"  .amdhsa_next_free_vgpr {vgpr}")
    a.raw(f"  .amdhsa_next_free_sgpr {sgpr}")
    a.raw(f"  .amdhsa_accum_offset {acc}")
    a.raw("  .amdhsa_group_segment_fixed_size 0")
    a.raw("  .amdhsa_kernarg_size 104")
    a.raw("  .amdhsa_user_sgpr_count 2")
    a.raw("  .amdhsa_user_sgpr_kernarg_segment_ptr 1")
    a.raw("  .amdhsa_system_sgpr_workgroup_id_x 1")
    a.raw(".end_amdhsa_kernel")

def gen_k1(a):
    VX=2; VQ=6; VK=10; AX=14; AQ=22; T=30
    ACC=64; FA=128; FB=144
    KF=160; QB=192; SA=224
    kernel_header(a, "k1_kernel")
    prologue(a)
    a(f"v_lshrrev_b32 v{T}, 3, v1")
    a(f"v_lshrrev_b32 v{T+1}, 4, v1")
    a(f"v_and_b32 v{T+2}, 7, v1")
    a(f"s_lshl_b32 s{S_T0}, s{S_W}, 5")
    a(f"s_movk_i32 s{S_T1}, 1152")
    for j in range(4):
        a(f"v_add_u32 v{T+3}, s{S_T0}, v{T}")
        if j: a(f"v_add_u32 v{T+3}, {8*j}, v{T+3}")
        a(f"v_mul_lo_u32 v{T+3}, v{T+3}, s{S_T1}")
        a(f"v_add_u32 v{T+4}, {4*j}, v{T+1}")
        a(f"v_and_b32 v{T+4}, 7, v{T+4}")
        a(f"v_xor_b32 v{T+4}, v{T+4}, v{T+2}")
        a(f"v_lshl_add_u32 v{VX+j}, v{T+4}, 4, v{T+3}")
        if j: a(f"v_subrev_u32 v{VX+j}, {1024*j}, v{VX+j}")
    a(f"s_lshl_b32 s{S_T0}, s{S_W}, 4")
    a(f"v_add_u32 v{T+3}, s{S_T0}, v{T+1}")
    a(f"v_lshlrev_b32 v{T+3}, 13, v{T+3}")
    a(f"v_and_b32 v{T+4}, 15, v1")
    a(f"v_lshlrev_b32 v{T+5}, 2, v{T+1}")
    a(f"v_xor_b32 v{T+4}, v{T+4}, v{T+5}")
    a(f"v_lshl_add_u32 v{VQ}, v{T+4}, 4, v{T+3}")
    for j in range(1,4):
        a(f"v_add_u32 v{VQ+j}, {31744*j}, v{VQ}")
    a(f"s_mul_i32 s{S_SOX}, s{S_RB}, 147456")
    a(f"s_lshl_b32 s{S_SOQ}, s{S_H}, 8")
    a(f"s_lshl_b32 s{S_LW}, s{S_W}, 12")
    a(f"s_mov_b32 s{S_T3}, 4194304")
    select_ptrs(a, [(S_X,0,589824,589824),(S_WQ,3,4718592,4718592),(S_K,1,2097152,4194304)])
    def dma_s1(t):
        slot = t % 4
        a(f"s_add_u32 m0, s{S_LW}, {slot*SLOT}")
        a(f"s_add_u32 s{S_T2}, s{S_SOX}, {t*128}")
        for j in range(4):
            a(f"buffer_load_dwordx4 v{VX+j}, s[{S_X}:{S_X+3}], s{S_T2} offen offset:{1024*j} lds")
        a(f"s_add_u32 m0, s{S_LW}, {slot*SLOT+16384}")
        a(f"s_add_u32 s{S_T2}, s{S_SOQ}, {t*524288}")
        for j in range(4):
            a(f"buffer_load_dwordx4 v{VQ+j}, s[{S_WQ}:{S_WQ+3}], s{S_T2} offen offset:{1024*j} lds")
    for t in range(3): dma_s1(t)
    srd(a, S_WS, 60, 61, WS_USED)
    kv_dma_voffs(a, VK, T, T+1)
    kv_soffset(a, S_SOK, S_H)
    a(f"v_and_b32 v{T}, 31, v1")
    a(f"v_lshrrev_b32 v{T+1}, 5, v1")
    a(f"v_bfe_u32 v{T+2}, v1, 1, 3")
    a(f"v_xor_b32 v{T+2}, v{T+2}, v{T+1}")
    a(f"v_lshlrev_b32 v{T+2}, 4, v{T+2}")
    a(f"v_lshl_add_u32 v{T+2}, v{T}, 7, v{T+2}")
    a(f"v_add_u32 v{AX}, s{S_LW}, v{T+2}")
    for ks in range(1,4): a(f"v_xor_b32 v{AX+ks}, {32*ks}, v{AX}")
    for ks in range(4): a(f"v_add_u32 v{AX+4+ks}, {2*SLOT}, v{AX+ks}")
    a(f"v_bfe_u32 v{T}, v1, 2, 2")
    a(f"v_lshl_add_u32 v{T+2}, v{T+1}, 3, v{T}")
    a(f"v_lshlrev_b32 v{T+2}, 8, v{T+2}")
    a(f"v_lshl_add_u32 v{T+2}, v{T}, 6, v{T+2}")
    a(f"v_bfe_u32 v{T+3}, v1, 4, 1")
    a(f"v_lshl_add_u32 v{T+2}, v{T+3}, 5, v{T+2}")
    a(f"v_and_b32 v{T+3}, 1, v1")
    a(f"v_lshl_add_u32 v{T+2}, v{T+3}, 4, v{T+2}")
    a(f"v_bfe_u32 v{T+3}, v1, 1, 1")
    a(f"v_lshl_add_u32 v{T+2}, v{T+3}, 3, v{T+2}")
    a(f"v_add_u32 v{AQ}, 16384, v{T+2}")
    for t in range(1,4): a(f"v_xor_b32 v{AQ+t}, {64*t}, v{AQ}")
    for t in range(4): a(f"v_add_u32 v{AQ+4+t}, {2*SLOT}, v{AQ+t}")

    def rdB(slot, ks):
        s2 = (slot>>1)*4; off = (slot&1)*SLOT
        a(f"ds_read_b128 v[{FB+4*(ks&1)}:{FB+4*(ks&1)+3}], v{AX+s2+ks} offset:{off}")
    def rdA(slot, ks, t):
        s2 = (slot>>1)*4; off = (slot&1)*SLOT + ks*4096
        a(f"ds_read_b64_tr_b16 v[{FA+4*t}:{FA+4*t+1}], v{AQ+s2+t} offset:{off}")
        a(f"ds_read_b64_tr_b16 v[{FA+4*t+2}:{FA+4*t+3}], v{AQ+s2+t} offset:{off+1024}")
    for st in range(9):
        slot = st % 4
        nout = 8*min(2, 9-st)
        a(f"s_waitcnt vmcnt({nout})")
        a("s_barrier")
        rdB(slot,0)
        for t in range(4): rdA(slot,0,t)
        if st+3 < 9: dma_s1(st+3)
        elif st+3 == 9:
            a(f"s_lshl_b32 s{S_LW}, s{S_W}, 13")
            dma_kv(a, S_K, VK, S_SOK, 9%4)
        for ks in range(4):
            for t in range(4):
                last = (ks == 3)
                if t == 0: n = 6
                else: n = (7 if not last else 6-2*t)
                a(f"s_waitcnt lgkmcnt({n})")
                c = "0" if (st == 0 and ks == 0) else f"v[{ACC+16*t}:{ACC+16*t+15}]"
                a(f"v_mfma_f32_32x32x16_bf16 v[{ACC+16*t}:{ACC+16*t+15}], v[{FA+4*t}:{FA+4*t+3}], v[{FB+4*(ks&1)}:{FB+4*(ks&1)+3}], {c}")
                if not last:
                    if t == 0: rdB(slot, ks+1)
                    rdA(slot, ks+1, t)
    a(f"v_and_b32 v{T}, 31, v1")
    a(f"v_lshrrev_b32 v{T+1}, 5, v1")
    a(f"v_and_b32 v{T+2}, 15, v1")
    a(f"v_xor_b32 v{T+2}, v{T+2}, v{T+1}")
    a(f"v_lshlrev_b32 v{T+2}, 4, v{T+2}")
    a(f"v_lshl_add_u32 v{T+2}, v{T}, 8, v{T+2}")
    a(f"v_add_u32 v{T+2}, s{S_LW}, v{T+2}")
    a("s_waitcnt vmcnt(0)")
    for kk in range(8):
        a(f"v_xor_b32 v{T+3}, {32*kk}, v{T+2}")
        a(f"ds_read_b128 v[{KF+4*kk}:{KF+4*kk+3}], v{T+3} offset:{(9%4)*SLOT}")
    a("s_nop 7")
    for t in range(4):
        for r in range(8):
            a(f"v_cvt_pk_bf16_f32 v{QB+8*t+r}, v{ACC+16*t+2*r}, v{ACC+16*t+2*r+1}")
    a("s_waitcnt lgkmcnt(0)")
    a("s_nop 1")
    for kk in range(8):
        c = "0" if kk == 0 else f"v[{SA}:{SA+15}]"
        a(f"v_mfma_f32_32x32x16_bf16 v[{SA}:{SA+15}], v[{KF+4*kk}:{KF+4*kk+3}], v[{QB+4*kk}:{QB+4*kk+3}], {c}")
    a(f"v_bfe_u32 v{T}, v1, 4, 1")
    a(f"v_lshlrev_b32 v{T}, 10, v{T}")
    a(f"v_lshl_add_u32 v{T}, v{T+1}, 8, v{T}")
    a(f"v_and_b32 v{T+2}, 15, v1")
    a(f"v_lshl_add_u32 v{T}, v{T+2}, 4, v{T}")
    a(f"s_lshl_b32 s{S_T0}, s{S_BR}, 4")
    a(f"s_add_u32 s{S_T0}, s{S_T0}, s{S_B}")
    a(f"s_lshl_b32 s{S_T0}, s{S_T0}, 5")
    a(f"s_add_u32 s{S_T0}, s{S_T0}, s{S_H}")
    a(f"s_lshl_b32 s{S_SOP}, s{S_T0}, 11")
    a(f"s_mov_b32 s{S_C}, 0x3e0293ee")
    a("s_nop 7")
    M=T+3; M2=T+4
    a(f"v_max3_f32 v{M}, v{SA}, v{SA+1}, v{SA+2}")
    for r in range(3,15,2):
        a(f"v_max3_f32 v{M}, v{M}, v{SA+r}, v{SA+r+1}")
    a(f"v_max_f32 v{M}, v{M}, v{SA+15}")
    a(f"v_mov_b32 v{M2}, v{M}")
    a("s_nop 1")
    a(f"v_permlane32_swap_b32 v{M}, v{M2}")
    a("s_nop 1")
    a(f"v_max_f32 v{M}, v{M}, v{M2}")
    a(f"v_mul_f32 v{M}, s{S_C}, v{M}")
    for r in range(16):
        a(f"v_fma_f32 v{SA+r}, v{SA+r}, s{S_C}, -v{M}")
    for r in range(16):
        a(f"v_exp_f32 v{SA+r}, v{SA+r}")
    a("s_nop 0")
    a(f"v_add_f32 v{M}, v{SA}, v{SA+1}")
    for r in range(2,16):
        a(f"v_add_f32 v{M}, v{M}, v{SA+r}")
    a(f"v_mov_b32 v{M2}, v{M}")
    a("s_nop 1")
    a(f"v_permlane32_swap_b32 v{M}, v{M2}")
    a("s_nop 1")
    a(f"v_add_f32 v{M}, v{M}, v{M2}")
    a(f"v_rcp_f32 v{M}, v{M}")
    a("s_nop 0")
    for r in range(16):
        a(f"v_mul_f32 v{SA+r}, v{SA+r}, v{M}")
    PX=QB; PY=QB+4
    for k,(r) in enumerate([0,2,8,10]): a(f"v_cvt_pk_bf16_f32 v{PX+k}, v{SA+r}, v{SA+r+1}")
    for k,(r) in enumerate([4,6,12,14]): a(f"v_cvt_pk_bf16_f32 v{PY+k}, v{SA+r}, v{SA+r+1}")
    a(f"buffer_store_dwordx4 v[{PX}:{PX+3}], v{T}, s[{S_WS}:{S_WS+3}], s{S_SOP} offen")
    a(f"buffer_store_dwordx4 v[{PY}:{PY+3}], v{T}, s[{S_WS}:{S_WS+3}], s{S_SOP} offen offset:512")
    kernel_footer(a)

def gen_k2(a):
    VK=2; VO=6; AV=16; AO=20; T=24; VL=34
    PF=40; VF=72; BF=104; VW=120; PK=136; OUT=144
    kernel_header(a, "k2_kernel")
    prologue(a)
    kv_dma_voffs(a, VK, T, T+1)
    a(f"s_movk_i32 s{S_T0}, 3641")
    a(f"s_movk_i32 s{S_T1}, 1152")
    for j in range(9):
        a(f"v_add_u32 v{T}, {64*j}, v1")
        a(f"v_mul_u32_u24 v{T+1}, s{S_T0}, v{T}")
        a(f"v_lshrrev_b32 v{T+1}, 16, v{T+1}")
        a(f"v_mul_u32_u24 v{T+2}, 18, v{T+1}")
        a(f"v_sub_u32 v{T+2}, v{T}, v{T+2}")
        a(f"v_and_b32 v{T+3}, 0x13, v{T+1}")
        a(f"v_bfe_u32 v{T+4}, v{T+1}, 2, 1")
        a(f"v_lshl_add_u32 v{T+3}, v{T+4}, 3, v{T+3}")
        a(f"v_bfe_u32 v{T+4}, v{T+1}, 3, 1")
        a(f"v_lshl_add_u32 v{T+3}, v{T+4}, 2, v{T+3}")
        a(f"v_mul_u32_u24 v{T+3}, s{S_T1}, v{T+3}")
        a(f"v_lshl_add_u32 v{VO+j}, v{T+2}, 4, v{T+3}")
        if j&3: a(f"v_subrev_u32 v{VO+j}, {1024*(j&3)}, v{VO+j}")
    a(f"v_lshlrev_b32 v{VL}, 4, v1")
    S_HH=S_H
    a(f"s_lshl_b32 s{S_HH}, s{S_HQ}, 3")
    a(f"s_lshl_b32 s{S_T0}, s{S_KQ}, 2")
    a(f"s_add_u32 s{S_HH}, s{S_HH}, s{S_T0}")
    a(f"s_lshl_b32 s{S_T0}, s{S_BR}, 4")
    a(f"s_add_u32 s{S_T0}, s{S_T0}, s{S_B}")
    a(f"s_lshl_b32 s{S_T0}, s{S_T0}, 5")
    a(f"s_add_u32 s{S_T0}, s{S_T0}, s{S_HH}")
    a(f"s_lshl_b32 s{S_SOP}, s{S_T0}, 11")
    a(f"s_lshl_b32 s{S_T0}, s{S_HH}, 2")
    a(f"s_add_u32 s{S_T0}, s{S_T0}, s{S_W}")
    a(f"s_mul_i32 s{S_SOW}, s{S_T0}, {32*1152}")
    a(f"s_mul_i32 s{S_T0}, s{S_CP}, 288")
    a(f"s_add_u32 s{S_SOW}, s{S_SOW}, s{S_T0}")
    S_SOV=[84,85,86,87]; S_HU=88; S_LWO=89
    for u in range(4):
        a(f"s_add_u32 s{S_HU}, s{S_HH}, {u}")
        kv_soffset(a, S_SOV[u], S_HU)
    a(f"s_lshl_b32 s{S_LW}, s{S_W}, 13")
    a(f"s_mul_i32 s{S_LWO}, s{S_W}, 9216")
    a(f"s_mov_b32 s{S_T3}, 4194304")
    select_ptrs(a, [(S_V,2,2097152,4194304),(S_WO,4,4718592,4718592)])
    srd(a, S_WS, 60, 61, WS_USED)
    def dma_wo(u, slot):
        a(f"s_add_u32 s{S_T2}, s{S_SOW}, {u*128*1152}")
        for j in range(9):
            if j%4 == 0:
                a(f"s_add_u32 m0, s{S_LWO}, {slot*SLOT + 4096*(j>>2)}")
                a("s_nop 0")
            a(f"buffer_load_dwordx4 v{VO+j}, s[{S_WO}:{S_WO+3}], s{S_T2} offen offset:{1024*(j&3)} lds")
    def dma_stage(s):
        u = s>>1
        if s&1: dma_wo(u, s%4)
        else: dma_kv(a, S_V, VK, S_SOV[u], s%4)
    cnt = lambda s: (9 if s&1 else 8) if s < 8 else 0
    dma_stage(0); dma_stage(1)
    for u in range(4):
        for it in range(2):
            a(f"s_add_u32 s{S_T2}, s{S_SOP}, {u*2048}") if it == 0 else None
            a(f"buffer_load_dwordx4 v[{PF+8*u+4*it}:{PF+8*u+4*it+3}], v{VL}, s[{S_WS}:{S_WS+3}], s{S_T2} offen offset:{1024*it}")
    dma_stage(2)
    a(f"v_and_b32 v{T}, 15, v1")
    a(f"v_lshrrev_b32 v{T+1}, 4, v1")
    a(f"v_xor_b32 v{T+2}, v{T}, v{T+1}")
    a(f"v_lshlrev_b32 v{T+2}, 4, v{T+2}")
    a(f"v_lshl_add_u32 v{T+2}, v{T}, 8, v{T+2}")
    a(f"v_add_u32 v{AV}, s{S_LW}, v{T+2}")
    for ks in range(1,4): a(f"v_xor_b32 v{AV+ks}, {64*ks}, v{AV}")
    a(f"v_bfe_u32 v{T}, v1, 5, 1")
    a(f"v_lshlrev_b32 v{T}, 4, v{T}")
    a(f"v_bfe_u32 v{T+1}, v1, 4, 1")
    a(f"v_lshl_add_u32 v{T}, v{T+1}, 2, v{T}")
    a(f"v_bfe_u32 v{T+1}, v1, 2, 2")
    a(f"v_add_u32 v{T}, v{T}, v{T+1}")
    a(f"v_mul_u32_u24 v{T}, 288, v{T}")
    a(f"v_and_b32 v{T+1}, 3, v1")
    a(f"v_lshl_add_u32 v{AO}, v{T+1}, 3, v{T}")
    a(f"v_add_u32 v{AO+1}, {SLOT}, v{AO}")
    a(f"v_add_u32 v{AO+3}, {3*SLOT}, v{AO}")
    def rdB(slot, t, ks):
        for u in range(2):
            a(f"ds_read_b64_tr_b16 v[{BF+4*ks+2*u}:{BF+4*ks+2*u+1}], v{AO+slot} offset:{ks*9216+u*2304+t*32}")
    for s in range(8):
        u = s>>1; slot = s%4
        nout = cnt(s+1)+cnt(s+2)
        if s == 0: nout += 8
        a(f"s_waitcnt vmcnt({nout})")
        a("s_barrier")
        if not s&1:
            for st in range(2):
                for ks in range(4):
                    if slot == 0:
                        a(f"ds_read_b128 v[{VF+16*st+4*ks}:{VF+16*st+4*ks+3}], v{AV+ks} offset:{st*4096}")
                    else:
                        a(f"v_add_u32 v{T}, {slot*SLOT}, v{AV+ks}")
                        a(f"ds_read_b128 v[{VF+16*st+4*ks}:{VF+16*st+4*ks+3}], v{T} offset:{st*4096}")
            if s+3 < 8: dma_stage(s+3)
            a("s_waitcnt lgkmcnt(0)")
            continue
        for ks in range(4): rdB(slot, 0, ks)
        if s+3 < 8: dma_stage(s+3)
        def cvt(t):
            w = VW+8*(t&1); p = PK+4*(t&1)
            for k in range(4): a(f"v_cvt_pk_bf16_f32 v{p+k}, v{w+2*k}, v{w+2*k+1}")
        def pv(t):
            p = PK+4*(t&1)
            for it in range(2):
                o = OUT+4*(it*9+t)
                c = "0" if u == 0 else f"v[{o}:{o+3}]"
                a(f"v_mfma_f32_16x16x32_bf16 v[{o}:{o+3}], v[{p}:{p+3}], v[{PF+8*u+4*it}:{PF+8*u+4*it+3}], {c}")
        for t in range(9):
            for ks in range(4):
                n = 6 if t < 8 else 6-2*ks
                a(f"s_waitcnt lgkmcnt({n})")
                for st in range(2):
                    w = VW+8*(t&1)+4*st
                    c = "0" if ks == 0 else f"v[{w}:{w+3}]"
                    a(f"v_mfma_f32_16x16x32_bf16 v[{w}:{w+3}], v[{VF+16*st+4*ks}:{VF+16*st+4*ks+3}], v[{BF+4*ks}:{BF+4*ks+3}], {c}")
                if t < 8: rdB(slot, t+1, ks)
                if ks == 2 and t > 0:
                    if t == 8: a("s_nop 1")
                    cvt(t-1)
            if t > 0: pv(t-1)
        a("s_nop 7")
        cvt(8)
        a("s_nop 1")
        pv(8)
    a(f"s_lshl_b32 s{S_T0}, s{S_HQ}, 1")
    a(f"s_add_u32 s{S_T0}, s{S_T0}, s{S_KQ}")
    a(f"s_lshl_b32 s{S_T0}, s{S_T0}, 1")
    a(f"s_add_u32 s{S_T0}, s{S_T0}, s{S_BR}")
    a(f"s_lshl_b32 s{S_T0}, s{S_T0}, 2")
    a(f"s_add_u32 s{S_T0}, s{S_T0}, s{S_RB}")
    a(f"s_lshl_b32 s{S_T0}, s{S_T0}, 2")
    a(f"s_add_u32 s{S_T0}, s{S_T0}, s{S_CP}")
    a(f"s_lshl_b32 s{S_T0}, s{S_T0}, 2")
    a(f"s_add_u32 s{S_T0}, s{S_T0}, s{S_W}")
    a(f"s_mul_i32 s{S_T0}, s{S_T0}, 18432")
    a(f"s_add_u32 s{S_T0}, s{S_T0}, {PART_BASE}")
    a("s_nop 7")
    for k in range(18):
        if k%4 == 0 and k: a(f"s_add_u32 s{S_T0}, s{S_T0}, 4096")
        a(f"buffer_store_dwordx4 v[{OUT+4*k}:{OUT+4*k+3}], v{VL}, s[{S_WS}:{S_WS+3}], s{S_T0} offen offset:{1024*(k&3)}")
    kernel_footer(a)

def gen_k3(a):
    kernel_header(a, "k3_kernel")
    a("s_cmp_ge_u32 s2, 256")
    a("s_cbranch_scc1 L_end_k3_kernel")
    a("s_load_dwordx2 s[56:57], s[0:1], 80")
    a("s_load_dwordx2 s[60:61], s[0:1], 96")
    a("v_lshrrev_b32 v1, 6, v0")
    a("s_nop 0")
    a(f"v_readfirstlane_b32 s{S_W}, v1")
    a("v_and_b32 v1, 63, v0")
    a("v_lshlrev_b32 v2, 4, v1")
    a(f"s_lshr_b32 s{S_T0}, s2, 1")
    a(f"s_mul_i32 s{S_T0}, s{S_T0}, 18432")
    a(f"s_and_b32 s{S_T1}, s2, 1")
    a(f"s_mul_i32 s{S_T2}, s{S_T1}, 9")
    a(f"s_add_u32 s{S_T2}, s{S_T2}, s{S_W}")
    a(f"s_lshl_b32 s{S_T2}, s{S_T2}, 10")
    a(f"s_add_u32 s{S_T0}, s{S_T0}, s{S_T2}")
    a(f"s_add_u32 s{S_T0}, s{S_T0}, {PART_BASE}")
    a("s_waitcnt lgkmcnt(0)")
    srd(a, S_WS, 60, 61, WS_USED)
    srd(a, S_OUT, 56, 57, 1179648)
    for s in range(8):
        a(f"buffer_load_dwordx4 v[{8+4*s}:{11+4*s}], v2, s[{S_WS}:{S_WS+3}], s{S_T0} offen")
        if s < 7: a(f"s_add_u32 s{S_T0}, s{S_T0}, {128*18432}")
    a(f"s_lshr_b32 s{S_BR}, s2, 7")
    a(f"s_bfe_u32 s{S_RB}, s2, 0x20005")
    a(f"s_bfe_u32 s{S_CP}, s2, 0x20003")
    a(f"s_bfe_u32 s{S_B}, s2, 0x20001")
    a(f"s_lshl_b32 s{S_T2}, s{S_RB}, 2")
    a(f"s_add_u32 s{S_T2}, s{S_T2}, s{S_B}")
    a(f"s_lshl_b32 s{S_T2}, s{S_T2}, 1")
    a(f"s_add_u32 s{S_T2}, s{S_T2}, s{S_T1}")
    a(f"s_mul_i32 s{S_T2}, s{S_T2}, {16*2304}")
    a(f"s_mul_i32 s{S_T3}, s{S_BR}, 1152")
    a(f"s_add_u32 s{S_T2}, s{S_T2}, s{S_T3}")
    a(f"s_mul_i32 s{S_T3}, s{S_CP}, 288")
    a(f"s_add_u32 s{S_T2}, s{S_T2}, s{S_T3}")
    a(f"s_lshl_b32 s{S_T3}, s{S_W}, 5")
    a(f"s_add_u32 s{S_T2}, s{S_T2}, s{S_T3}")
    a("v_and_b32 v3, 15, v1")
    a("v_mul_u32_u24 v3, 2304, v3")
    a("v_lshrrev_b32 v4, 4, v1")
    a("v_lshl_add_u32 v3, v4, 3, v3")
    for s in range(1,8):
        a(f"s_waitcnt vmcnt({7-s})")
        for r in range(4):
            a(f"v_add_f32 v{8+r}, v{8+r}, v{8+4*s+r}")
    a("v_cvt_pk_bf16_f32 v4, v8, v9")
    a("v_cvt_pk_bf16_f32 v5, v10, v11")
    a(f"buffer_store_dwordx2 v[4:5], v3, s[{S_OUT}:{S_OUT+3}], s{S_T2} offen")
    kernel_footer(a)

def main():
    a = Asm()
    hdr = open("cdna_kernels/%s.s.ref" % NAME).read().split("; Override")[0]
    a.raw(hdr.rstrip())
    a.raw(f"; @launch kernel=k1_kernel grid=(256,1,1) block=(256,1,1) lds={4*SLOT}")
    a.raw(f"; @launch kernel=k2_kernel grid=(256,1,1) block=(256,1,1) lds={4*SLOT}")
    a.raw(f"; @launch kernel=k3_kernel grid=(256,1,1) block=(576,1,1) lds=0")
    a.raw('.amdgcn_target "amdgcn-amd-amdhsa--gfx950"')
    a.raw(".text")
    gen_k1(a); gen_k2(a); gen_k3(a)
    a.raw('.section .rodata,"a"')
    a.raw(".p2align 6")
    kd(a, "k1_kernel", 240)
    a.raw(".p2align 6")
    kd(a, "k2_kernel", 216)
    a.raw(".p2align 6")
    kd(a, "k3_kernel", 40)
    out = sys.argv[1] if len(sys.argv) > 1 else "cdna_kernels/%s.s" % NAME
    open(out, "w").write(a.text())
main()
```

```python
import sys, os
NAME = "concat_heads__gqa_block_cached__mha_block_cached__near_ridge"
OPT = dict(stamp=0, rot1=0, rot2=0)
for arg in sys.argv[2:]:
    k, v = arg.split("="); OPT[k] = int(v)

class Asm:
    def __init__(self):
        self.L=[]; self.vm=[]; self.nst=0
    def __call__(self, s): self.L.append("    "+s)
    def label(self, n): self.L.append(n+":")
    def raw(self, s): self.L.append(s)
    def text(self): return "\n".join(self.L)+"\n"
    def vmop(self, s, tag): self(s); self.vm.append(tag)
    def wait_vm(self, *tags):
        idx = max((i for i,t in enumerate(self.vm) if t in tags), default=-1)
        assert idx >= 0, tags
        n = len(self.vm)-1-idx
        assert n <= 63
        self(f"s_waitcnt vmcnt({n})")
    def stamp(self):
        if not OPT["stamp"]: return
        self("s_memrealtime s[96:97]")
        self("s_waitcnt lgkmcnt(0)")
        self(f"v_writelane_b32 v{V_STAMP}, s96, {self.nst}")
        self.nst += 1

SLOT = 36864
P_BASE = 0
PART_BASE = 2<<20
E_BASE = 12<<20
FP_BASE = E_BASE + 4096
FR_BASE = FP_BASE + 16384
STAMP_BASE = 13<<20
WS_USED = 14<<20
LCG_A = 1664525; LCG_C = 1013904223
SPIN_MAX = 1<<15

S_X=8; S_WQ=12; S_K=16; S_WS=20; S_V=24; S_WO=28; S_OUT=32
S_W=62; S_BR=63; S_HQ=64; S_RB=65; S_HL=66; S_H=67; S_B=68; S_SPLIT=69
S_T0=70; S_T1=71; S_T2=72; S_T3=73
S_SOX=74; S_SOQ=75; S_SOK=76; S_C=77; S_SOP=78; S_CP=80; S_KQ=81; S_LW4=82; S_LW8=83
S_SOV=[84,85,86,87]; S_SOW=[88,89,90,91]; S_SPU=[92,93,94,95]; S_LWO=79
S_TAG=3; S_CNT=4; S_CH=5; S_RG=6; S_PG=7
VX=2; VQ=6; AX=10; AQ=18; T=26; VK=36; VO=40; AV=49; AO=53; VL=55; TAGP=56; TAGR=57; FPA=58; FRA=59; V_STAMP=60
ACC=64; QB=128; SA=160
VW=2; PK=18; STASH=64; OUT=172
NARCH=244
FA=0; FB=16; KF=24; PF=0; BF=32; VF=48; NACC=80

def srd(a, base, lo, hi, nrec):
    a(f"s_mov_b32 s{base}, s{lo}")
    a(f"s_and_b32 s{base+1}, s{hi}, 0xffff")
    a(f"s_mov_b32 s{base+2}, {nrec}")
    a(f"s_mov_b32 s{base+3}, 0x20000")

def kv_soffset(a, dst, head_s):
    a(f"s_lshl_b32 s{S_T0}, s{S_B}, 4")
    a(f"s_lshr_b32 s{S_T1}, s{head_s}, 1")
    a(f"s_add_u32 s{S_T0}, s{S_T0}, s{S_T1}")
    a(f"s_lshl_b32 s{S_T1}, s{S_B}, 5")
    a(f"s_add_u32 s{S_T1}, s{S_T1}, s{head_s}")
    a(f"s_cmp_eq_u32 s{S_BR}, 0")
    a(f"s_cselect_b32 s{dst}, s{S_T0}, s{S_T1}")
    a(f"s_lshl_b32 s{dst}, s{dst}, 13")

def gen(a):
    kname = NAME + "_kernel"
    a.raw(f".globl {kname}"); a.raw(".p2align 8"); a.raw(f".type {kname},@function"); a.label(kname)
    a("s_cmp_ge_u32 s2, 256")
    a("s_cbranch_scc1 L_end")
    a("s_load_dwordx16 s[36:51], s[0:1], 0")
    a("s_load_dwordx8 s[52:59], s[0:1], 64")
    a("s_load_dwordx2 s[60:61], s[0:1], 96")
    if OPT["stamp"]:
        a(f"v_mov_b32 v{V_STAMP}, 0")
        a.stamp()
    a("v_lshrrev_b32 v1, 6, v0")
    a(f"s_and_b32 s{S_T0}, s2, 7")
    a(f"v_readfirstlane_b32 s{S_W}, v1")
    a("v_and_b32 v1, 63, v0")
    a(f"s_lshr_b32 s{S_BR}, s{S_T0}, 2")
    a(f"s_and_b32 s{S_HQ}, s{S_T0}, 3")
    a(f"s_lshr_b32 s{S_T0}, s2, 3")
    a(f"s_and_b32 s{S_RB}, s{S_T0}, 3")
    a(f"s_lshr_b32 s{S_HL}, s{S_T0}, 2")
    a(f"s_lshl_b32 s{S_H}, s{S_HQ}, 3")
    a(f"s_add_u32 s{S_H}, s{S_H}, s{S_HL}")
    a(f"s_lshl_b32 s{S_B}, s{S_RB}, 2")
    a(f"s_add_u32 s{S_B}, s{S_B}, s{S_W}")
    a(f"s_and_b32 s{S_CP}, s{S_HL}, 3")
    a(f"s_lshr_b32 s{S_KQ}, s{S_HL}, 2")
    a(f"v_lshrrev_b32 v{T}, 3, v1")
    a(f"v_lshrrev_b32 v{T+1}, 4, v1")
    a(f"v_and_b32 v{T+2}, 7, v1")
    a(f"s_lshl_b32 s{S_T0}, s{S_W}, 5")
    a(f"v_add_u32 v{T+3}, s{S_T0}, v{T}")
    a(f"v_mul_u32_u24 v{T+3}, 1152, v{T+3}")
    for j in range(4):
        if j & 1: a(f"v_xor_b32 v{T+4}, 4, v{T+2}")
        src = T+4 if j & 1 else T+2
        a(f"v_xor_b32 v{VX+j}, v{src}, v{T+1}")
        a(f"v_lshl_add_u32 v{VX+j}, v{VX+j}, 4, v{T+3}")
        if j: a(f"v_add_u32 v{VX+j}, {8192*j}, v{VX+j}")
    a(f"s_lshl_b32 s{S_T0}, s{S_W}, 4")
    a(f"v_add_u32 v{T+3}, s{S_T0}, v{T+1}")
    a(f"v_lshlrev_b32 v{T+3}, 13, v{T+3}")
    a(f"v_and_b32 v{T+4}, 15, v1")
    a(f"v_lshlrev_b32 v{T+5}, 2, v{T+1}")
    a(f"v_xor_b32 v{T+4}, v{T+4}, v{T+5}")
    a(f"v_lshl_add_u32 v{VQ}, v{T+4}, 4, v{T+3}")
    for j in range(1,4):
        a(f"v_add_u32 v{VQ+j}, {31744*j}, v{VQ}")
    a(f"s_mul_i32 s{S_SOX}, s{S_RB}, 147456")
    a(f"s_lshl_b32 s{S_SOQ}, s{S_H}, 8")
    a(f"s_lshl_b32 s{S_LW4}, s{S_W}, 12")
    a(f"s_lshl_b32 s{S_LW8}, s{S_W}, 13")
    if OPT["rot1"] == 0: a(f"s_mov_b32 s{S_CH}, 0")
    elif OPT["rot1"] == 1:
        a(f"s_lshl_b32 s{S_CH}, s{S_RB}, 1")
    elif OPT["rot1"] == 2:
        a(f"s_lshl_b32 s{S_CH}, s{S_RB}, 1")
        a(f"s_add_u32 s{S_CH}, s{S_CH}, s{S_HL}")
        a(f"s_sub_u32 s{S_T0}, s{S_CH}, 9")
        a(f"s_cmp_ge_u32 s{S_CH}, 9")
        a(f"s_cselect_b32 s{S_CH}, s{S_T0}, s{S_CH}")
    a(f"s_mov_b32 s{S_T3}, 4194304")
    a("s_waitcnt lgkmcnt(0)")
    a(f"s_cmp_eq_u32 s{S_BR}, 0")
    sel = [(S_X,0,589824,589824),(S_WQ,3,4718592,4718592),(S_K,1,2097152,4194304),(S_V,2,2097152,4194304),(S_WO,4,4718592,4718592)]
    def selp(lst):
        for base, idx, na, nb in lst:
            la = 36+2*idx; lb = 46+2*idx
            a(f"s_cselect_b32 s{base}, s{la}, s{lb}")
            a(f"s_cselect_b32 s{base+1}, s{la+1}, s{lb+1}")
            if na == nb: a(f"s_mov_b32 s{base+2}, {na}")
            else: a(f"s_cselect_b32 s{base+2}, {na}, s{S_T3}")
            a(f"s_mov_b32 s{base+3}, 0x20000")
        for base, idx, na, nb in lst:
            a(f"s_and_b32 s{base+1}, s{base+1}, 0xffff")
    selp(sel[:2])

    def dma_s1(t):
        slot = t % 4
        a(f"s_add_u32 m0, s{S_LW4}, {slot*SLOT}")
        a(f"s_lshl_b32 s{S_T2}, s{S_CH}, 7")
        a(f"s_add_u32 s{S_T2}, s{S_T2}, s{S_SOX}")
        for j in range(4):
            a.vmop(f"buffer_load_dwordx4 v{VX+j}, s[{S_X}:{S_X+3}], s{S_T2} offen offset:{1024*j} lds", f"st{t}")
        a(f"s_add_u32 m0, s{S_LW4}, {slot*SLOT+16384}")
        a(f"s_lshl_b32 s{S_T2}, s{S_CH}, 19")
        a(f"s_add_u32 s{S_T2}, s{S_T2}, s{S_SOQ}")
        for j in range(4):
            a.vmop(f"buffer_load_dwordx4 v{VQ+j}, s[{S_WQ}:{S_WQ+3}], s{S_T2} offen offset:{1024*j} lds", f"st{t}")
        a(f"s_add_u32 s{S_CH}, s{S_CH}, 1")
        a(f"s_cmp_eq_u32 s{S_CH}, 9")
        a(f"s_cselect_b32 s{S_CH}, 0, s{S_CH}")
    def dma_kv(srdb, soff, st):
        slot = st % 4
        for half in range(2):
            a(f"s_add_u32 m0, s{S_LW8}, {slot*SLOT + half*4096}")
            if half == 0: a(f"s_mov_b32 s{S_T2}, s{soff}")
            else: a(f"s_add_u32 s{S_T2}, s{soff}, 4096")
            for j in range(4):
                a.vmop(f"buffer_load_dwordx4 v{VK+j}, s[{srdb}:{srdb+3}], s{S_T2} offen offset:{1024*j} lds", f"st{st}")
    def dma_wo(u, st):
        slot = st % 4
        for j in range(9):
            if j%4 == 0:
                a(f"s_add_u32 m0, s{S_LWO}, {slot*SLOT + 4096*(j>>2)}")
                a("s_nop 0")
            a.vmop(f"buffer_load_dwordx4 v{VO+j}, s[{S_WO}:{S_WO+3}], s{S_SOW[u]} offen offset:{1024*(j&3)} lds", f"st{st}")
    def dma_stage(s):
        if s < 9: dma_s1(s)
        elif s == 9: dma_kv(S_K, S_SOK, 9)
        elif s < 18:
            u = (s-10)>>1
            if s & 1: dma_wo(u, s)
            else: dma_kv(S_V, S_SOV[u], s)
    for t in range(3): dma_stage(t)

    a(f"s_cmp_eq_u32 s{S_BR}, 0")
    selp(sel[2:])
    srd(a, S_WS, 60, 61, WS_USED)
    srd(a, S_OUT, 56, 57, 1179648)
    a(f"s_and_b32 s{S_T0}, s2, 0x9f")
    a(f"v_and_b32 v{T}, 3, v1")
    a(f"v_lshlrev_b32 v{T+1}, 5, v{T}")
    a(f"v_add_u32 v{T+1}, s{S_T0}, v{T+1}")
    a(f"v_lshlrev_b32 v{T+1}, 2, v{T+1}")
    a(f"s_mov_b32 s{S_T1}, {E_BASE}")
    a.vmop(f"buffer_load_dword v{TAGP}, v{T+1}, s[{S_WS}:{S_WS+3}], s{S_T1} offen sc1", "E")
    a(f"s_and_b32 s{S_T0}, s2, 0x7c")
    a(f"v_and_b32 v{T+2}, 7, v1")
    a(f"v_lshrrev_b32 v{T+3}, 1, v{T+2}")
    a(f"v_and_b32 v{T+4}, 1, v1")
    a(f"v_lshl_add_u32 v{T+3}, v{T+4}, 7, v{T+3}")
    a(f"v_add_u32 v{T+3}, s{S_T0}, v{T+3}")
    a(f"v_lshlrev_b32 v{T+3}, 2, v{T+3}")
    a.vmop(f"buffer_load_dword v{TAGR}, v{T+3}, s[{S_WS}:{S_WS+3}], s{S_T1} offen sc1", "E")
    a(f"s_lshl_b32 s{S_SPLIT}, s{S_HQ}, 1")
    a(f"s_add_u32 s{S_SPLIT}, s{S_SPLIT}, s{S_KQ}")
    a(f"s_lshl_b32 s{S_PG}, s{S_BR}, 3")
    a(f"s_add_u32 s{S_PG}, s{S_PG}, s{S_SPLIT}")
    a(f"s_lshl_b32 s{S_PG}, s{S_PG}, 2")
    a(f"s_add_u32 s{S_PG}, s{S_PG}, s{S_RB}")
    a(f"s_lshl_b32 s{S_RG}, s{S_BR}, 2")
    a(f"s_add_u32 s{S_RG}, s{S_RG}, s{S_RB}")
    a(f"s_lshl_b32 s{S_RG}, s{S_RG}, 2")
    a(f"s_add_u32 s{S_RG}, s{S_RG}, s{S_CP}")
    a(f"s_lshl_b32 s{S_T0}, s{S_PG}, 2")
    a(f"s_add_u32 s{S_T0}, s{S_T0}, s{S_W}")
    a(f"s_lshl_b32 s{S_T0}, s{S_T0}, 6")
    a(f"s_add_u32 s{S_T0}, s{S_T0}, {FP_BASE}")
    a(f"v_lshl_add_u32 v{FPA}, v{T}, 2, s{S_T0}")
    a(f"s_lshl_b32 s{S_T0}, s{S_RG}, 2")
    a(f"s_add_u32 s{S_T0}, s{S_T0}, s{S_HQ}")
    a(f"s_lshl_b32 s{S_T0}, s{S_T0}, 6")
    a(f"s_add_u32 s{S_T0}, s{S_T0}, {FR_BASE}")
    a(f"v_lshl_add_u32 v{FRA}, v{T+2}, 2, s{S_T0}")
    a(f"v_lshrrev_b32 v{T}, 4, v1")
    a(f"v_and_b32 v{T+1}, 15, v1")
    for j in range(4):
        a(f"v_add_u32 v{VK+j}, {4*j}, v{T}")
        a(f"v_xor_b32 v{VK+j}, v{VK+j}, v{T+1}")
        a(f"v_lshlrev_b32 v{VK+j}, 4, v{VK+j}")
        a(f"v_lshl_add_u32 v{VK+j}, v{T}, 8, v{VK+j}")
    kv_soffset(a, S_SOK, S_H)
    a(f"v_xor_b32 v{T+2}, v{T}, v{T+1}")
    a(f"v_lshlrev_b32 v{T+2}, 4, v{T+2}")
    a(f"v_lshl_add_u32 v{T+2}, v{T+1}, 8, v{T+2}")
    a(f"v_add_u32 v{AV}, s{S_LW8}, v{T+2}")
    for ks in range(1,4): a(f"v_xor_b32 v{AV+ks}, {64*ks}, v{AV}")
    a(f"v_and_b32 v{T}, 31, v1")
    a(f"v_lshrrev_b32 v{T+1}, 5, v1")
    a(f"v_bfe_u32 v{T+2}, v1, 1, 3")
    a(f"v_xor_b32 v{T+2}, v{T+2}, v{T+1}")
    a(f"v_lshlrev_b32 v{T+2}, 4, v{T+2}")
    a(f"v_lshl_add_u32 v{T+2}, v{T}, 7, v{T+2}")
    a(f"v_add_u32 v{AX}, s{S_LW4}, v{T+2}")
    for ks in range(1,4): a(f"v_xor_b32 v{AX+ks}, {32*ks}, v{AX}")
    for ks in range(4): a(f"v_add_u32 v{AX+4+ks}, {2*SLOT}, v{AX+ks}")
    a(f"v_bfe_u32 v{T}, v1, 2, 2")
    a(f"v_lshl_add_u32 v{T+2}, v{T+1}, 3, v{T}")
    a(f"v_lshlrev_b32 v{T+2}, 8, v{T+2}")
    a(f"v_lshl_add_u32 v{T+2}, v{T}, 6, v{T+2}")
    a(f"v_bfe_u32 v{T+3}, v1, 4, 1")
    a(f"v_lshl_add_u32 v{T+2}, v{T+3}, 5, v{T+2}")
    a(f"v_and_b32 v{T+3}, 1, v1")
    a(f"v_lshl_add_u32 v{T+2}, v{T+3}, 4, v{T+2}")
    a(f"v_bfe_u32 v{T+3}, v1, 1, 1")
    a(f"v_lshl_add_u32 v{T+2}, v{T+3}, 3, v{T+2}")
    a(f"v_add_u32 v{AQ}, 16384, v{T+2}")
    for t in range(1,4): a(f"v_xor_b32 v{AQ+t}, {64*t}, v{AQ}")
    for t in range(4): a(f"v_add_u32 v{AQ+4+t}, {2*SLOT}, v{AQ+t}")
    a(f"s_movk_i32 s{S_T0}, 3641")
    for j in range(9):
        a(f"v_add_u32 v{T}, {64*j}, v1")
        a(f"v_mul_u32_u24 v{T+1}, s{S_T0}, v{T}")
        a(f"v_lshrrev_b32 v{T+1}, 16, v{T+1}")
        a(f"v_mul_u32_u24 v{T+2}, 18, v{T+1}")
        a(f"v_sub_u32 v{T+2}, v{T}, v{T+2}")
        a(f"v_and_b32 v{T+3}, 0x13, v{T+1}")
        a(f"v_bfe_u32 v{T+4}, v{T+1}, 2, 1")
        a(f"v_lshl_add_u32 v{T+3}, v{T+4}, 3, v{T+3}")
        a(f"v_bfe_u32 v{T+4}, v{T+1}, 3, 1")
        a(f"v_lshl_add_u32 v{T+3}, v{T+4}, 2, v{T+3}")
        a(f"v_mul_u32_u24 v{T+3}, 1152, v{T+3}")
        a(f"v_lshl_add_u32 v{VO+j}, v{T+2}, 4, v{T+3}")
        if j&3: a(f"v_subrev_u32 v{VO+j}, {1024*(j&3)}, v{VO+j}")
    a(f"v_lshlrev_b32 v{VL}, 4, v1")
    a(f"v_bfe_u32 v{T}, v1, 5, 1")
    a(f"v_lshlrev_b32 v{T}, 4, v{T}")
    a(f"v_bfe_u32 v{T+1}, v1, 4, 1")
    a(f"v_lshl_add_u32 v{T}, v{T+1}, 2, v{T}")
    a(f"v_bfe_u32 v{T+1}, v1, 2, 2")
    a(f"v_add_u32 v{T}, v{T}, v{T+1}")
    a(f"v_mul_u32_u24 v{T}, 288, v{T}")
    a(f"v_and_b32 v{T+1}, 3, v1")
    a(f"v_lshl_add_u32 v{T}, v{T+1}, 3, v{T}")
    a(f"v_add_u32 v{AO}, {SLOT}, v{T}")
    a(f"v_add_u32 v{AO+1}, {3*SLOT}, v{T}")
    a(f"s_mul_i32 s{S_LWO}, s{S_W}, 9216")
    a(f"s_lshl_b32 s{S_T0}, s{S_BR}, 4")
    a(f"s_add_u32 s{S_T0}, s{S_T0}, s{S_B}")
    a(f"s_lshl_b32 s{S_SOP}, s{S_T0}, 16")
    for u in range(4):
        if OPT["rot2"]:
            a(f"s_add_u32 s{S_T2}, s{S_RB}, s{S_CP}")
            a(f"s_add_u32 s{S_T2}, s{S_T2}, {u}")
            a(f"s_and_b32 s{S_T2}, s{S_T2}, 3")
        else:
            a(f"s_mov_b32 s{S_T2}, {u}")
        a(f"s_lshl_b32 s{S_T3}, s{S_SPLIT}, 2")
        a(f"s_add_u32 s{S_T3}, s{S_T3}, s{S_T2}")
        a(f"s_lshl_b32 s{S_SPU[u]}, s{S_T3}, 11")
        a(f"s_add_u32 s{S_SPU[u]}, s{S_SPU[u]}, s{S_SOP}")
        a(f"s_lshl_b32 s{S_T2}, s{S_T3}, 2")
        a(f"s_add_u32 s{S_T2}, s{S_T2}, s{S_W}")
        a(f"s_mul_i32 s{S_SOW[u]}, s{S_T2}, {32*1152}")
        a(f"s_mul_i32 s{S_T2}, s{S_CP}, 288")
        a(f"s_add_u32 s{S_SOW[u]}, s{S_SOW[u]}, s{S_T2}")
        kv_soffset(a, S_SOV[u], S_T3)
    a(f"s_lshl_b32 s{S_T0}, s{S_H}, 11")
    a(f"s_add_u32 s{S_SOP}, s{S_SOP}, s{S_T0}")
    a(f"s_mov_b32 s{S_C}, 0x3e0293ee")

    def rdB(slot, ks):
        s2 = (slot>>1)*4; off = (slot&1)*SLOT
        a(f"ds_read_b128 a[{FB+4*(ks&1)}:{FB+4*(ks&1)+3}], v{AX+s2+ks} offset:{off}")
    def rdA(slot, ks, t):
        s2 = (slot>>1)*4; off = (slot&1)*SLOT + ks*4096
        a(f"ds_read_b64_tr_b16 a[{FA+4*t}:{FA+4*t+1}], v{AQ+s2+t} offset:{off}")
        a(f"ds_read_b64_tr_b16 a[{FA+4*t+2}:{FA+4*t+3}], v{AQ+s2+t} offset:{off+1024}")
    for st in range(9):
        slot = st % 4
        a.wait_vm(f"st{st}")
        a("s_barrier")
        a.stamp()
        rdB(slot,0)
        for t in range(4): rdA(slot,0,t)
        dma_stage(st+3)
        if st == 3:
            a(f"s_mov_b32 s{S_T0}, {LCG_A}")
            a(f"v_mul_lo_u32 v{TAGP}, v{TAGP}, s{S_T0}")
            a(f"v_mul_lo_u32 v{TAGR}, v{TAGR}, s{S_T0}")
            a(f"v_add_u32 v{TAGP}, {LCG_C}, v{TAGP}")
            a(f"v_add_u32 v{TAGR}, {LCG_C}, v{TAGR}")
            a("s_nop 0")
            a(f"v_readlane_b32 s{S_TAG}, v{TAGR}, s{S_SPLIT}")
        for ks in range(4):
            for t in range(4):
                last = (ks == 3)
                n = 6 if t == 0 else (7 if not last else 6-2*t)
                a(f"s_waitcnt lgkmcnt({n})")
                c = "0" if (st == 0 and ks == 0) else f"v[{ACC+16*t}:{ACC+16*t+15}]"
                a(f"v_mfma_f32_32x32x16_bf16 v[{ACC+16*t}:{ACC+16*t+15}], a[{FA+4*t}:{FA+4*t+3}], a[{FB+4*(ks&1)}:{FB+4*(ks&1)+3}], {c}")
                if not last:
                    if t == 0: rdB(slot, ks+1)
                    rdA(slot, ks+1, t)
    a(f"v_and_b32 v{T}, 31, v1")
    a(f"v_lshrrev_b32 v{T+1}, 5, v1")
    a(f"v_and_b32 v{T+2}, 15, v1")
    a(f"v_xor_b32 v{T+2}, v{T+2}, v{T+1}")
    a(f"v_lshlrev_b32 v{T+2}, 4, v{T+2}")
    a(f"v_lshl_add_u32 v{T+2}, v{T}, 8, v{T+2}")
    a(f"v_add_u32 v{T+2}, s{S_LW8}, v{T+2}")
    a.wait_vm("st9")
    a.stamp()
    for kk in range(8):
        a(f"v_xor_b32 v{T+3}, {32*kk}, v{T+2}")
        a(f"ds_read_b128 a[{KF+4*kk}:{KF+4*kk+3}], v{T+3} offset:{(9%4)*SLOT}")
    for t in range(4):
        for r in range(8):
            a(f"v_cvt_pk_bf16_f32 v{QB+8*t+r}, v{ACC+16*t+2*r}, v{ACC+16*t+2*r+1}")
    for kk in range(8):
        a(f"s_waitcnt lgkmcnt({7-kk})")
        if kk == 0: a("s_nop 0")
        c = "0" if kk == 0 else f"v[{SA}:{SA+15}]"
        a(f"v_mfma_f32_32x32x16_bf16 v[{SA}:{SA+15}], a[{KF+4*kk}:{KF+4*kk+3}], v[{QB+4*kk}:{QB+4*kk+3}], {c}")
    a("s_barrier")
    a(f"v_bfe_u32 v{T}, v1, 4, 1")
    a(f"v_lshlrev_b32 v{T}, 10, v{T}")
    a(f"v_lshl_add_u32 v{T}, v{T+1}, 8, v{T}")
    a(f"v_and_b32 v{T+2}, 15, v1")
    a(f"v_lshl_add_u32 v{T}, v{T+2}, 4, v{T}")
    a("s_nop 7")
    M=T+3; M2=T+4
    a(f"v_max3_f32 v{M}, v{SA}, v{SA+1}, v{SA+2}")
    for r in range(3,15,2): a(f"v_max3_f32 v{M}, v{M}, v{SA+r}, v{SA+r+1}")
    a(f"v_max_f32 v{M}, v{M}, v{SA+15}")
    a(f"v_mov_b32 v{M2}, v{M}")
    a("s_nop 1")
    a(f"v_permlane32_swap_b32 v{M}, v{M2}")
    a("s_nop 1")
    a(f"v_max_f32 v{M}, v{M}, v{M2}")
    a(f"v_mul_f32 v{M}, s{S_C}, v{M}")
    for r in range(16): a(f"v_fma_f32 v{SA+r}, v{SA+r}, s{S_C}, -v{M}")
    for r in range(16): a(f"v_exp_f32 v{SA+r}, v{SA+r}")
    a("s_nop 0")
    a(f"v_add_f32 v{M}, v{SA}, v{SA+1}")
    for r in range(2,16): a(f"v_add_f32 v{M}, v{M}, v{SA+r}")
    a(f"v_mov_b32 v{M2}, v{M}")
    a("s_nop 1")
    a(f"v_permlane32_swap_b32 v{M}, v{M2}")
    a("s_nop 1")
    a(f"v_add_f32 v{M}, v{M}, v{M2}")
    a(f"v_rcp_f32 v{M}, v{M}")
    a("s_nop 0")
    for r in range(16): a(f"v_mul_f32 v{SA+r}, v{SA+r}, v{M}")
    PX=QB; PY=QB+4
    for k,r in enumerate([0,2,8,10]): a(f"v_cvt_pk_bf16_f32 v{PX+k}, v{SA+r}, v{SA+r+1}")
    for k,r in enumerate([4,6,12,14]): a(f"v_cvt_pk_bf16_f32 v{PY+k}, v{SA+r}, v{SA+r+1}")
    a.vmop(f"buffer_store_dwordx4 v[{PX}:{PX+3}], v{T}, s[{S_WS}:{S_WS+3}], s{S_SOP} offen sc1", "Pst")
    a.vmop(f"buffer_store_dwordx4 v[{PY}:{PY+3}], v{T}, s[{S_WS}:{S_WS+3}], s{S_SOP} offen offset:512 sc1", "Pst")
    dma_stage(12)

    def flag_store(addr_terms, tagname):
        a(f"v_mov_b32 v{T+8}, s{S_TAG}")
        a(f"v_mov_b32 v{T+9}, 0")
        a("s_mov_b64 exec, 1")
        a.vmop(f"buffer_store_dword v{T+8}, v{T+9}, s[{S_WS}:{S_WS+3}], s{S_T2} offen sc1", tagname)
        a("s_mov_b64 exec, -1")
    def spin(lbl, addr, tag, first_loaded):
        a(f"s_mov_b32 s{S_CNT}, 0")
        if first_loaded: a(f"s_branch {lbl}_chk")
        a.label(f"{lbl}_poll")
        a(f"buffer_load_dword v{T+7}, v{addr}, s[{S_WS}:{S_WS+3}], 0 offen sc1")
        a("s_waitcnt vmcnt(0)")
        a.label(f"{lbl}_chk")
        a(f"v_cmp_ne_u32 vcc, v{T+7}, v{tag}")
        a(f"s_add_u32 s{S_CNT}, s{S_CNT}, 1")
        a(f"s_cmp_ge_u32 s{S_CNT}, {SPIN_MAX}")
        a(f"s_cbranch_scc1 {lbl}_done")
        a("s_nop 1")
        a(f"s_cbranch_vccnz {lbl}_poll")
        a.label(f"{lbl}_done")

    def rdW(slot, t, ks):
        ao = AO if slot == 1 else AO+1
        for u in range(2):
            a(f"ds_read_b64_tr_b16 a[{BF+4*ks+2*u}:{BF+4*ks+2*u+1}], v{ao} offset:{ks*9216+u*2304+t*32}")
    def pkreg(u, t): return (STASH+36*u+4*t) if u < 3 else (PK+4*(t&1))
    def cvt(u, t):
        w = VW+8*(t&1); p = pkreg(u, t)
        for k in range(4): a(f"v_cvt_pk_bf16_f32 v{p+k}, v{w+2*k}, v{w+2*k+1}")
    def pv(u, t):
        p = pkreg(u, t)
        for it in range(2):
            o = OUT+4*(it*9+t)
            c = "0" if u == 0 else f"v[{o}:{o+3}]"
            a(f"v_mfma_f32_16x16x32_bf16 v[{o}:{o+3}], v[{p}:{p+3}], a[{PF+8*u+4*it}:{PF+8*u+4*it+3}], {c}")
    S_PW = S_SOX; S_PW1 = S_SOQ
    OB = STASH
    def out_pack_store(tp):
        for it in range(2):
            so = S_PW if it == 0 else S_PW1
            if tp < 4:
                d = OB + 16*it + 4*tp
                for h in range(2):
                    o = OUT+4*(it*9+2*tp+h)
                    a(f"v_cvt_pk_bf16_f32 v{d+2*h}, v{o}, v{o+1}")
                    a(f"v_cvt_pk_bf16_f32 v{d+2*h+1}, v{o+2}, v{o+3}")
                a.vmop(f"buffer_store_dwordx4 v[{d}:{d+3}], v{VL}, s[{S_WS}:{S_WS+3}], s{so} offen offset:{1024*tp} sc1", "part")
            else:
                d = OB + 32 + 2*it
                o = OUT+4*(it*9+8)
                a(f"v_cvt_pk_bf16_f32 v{d}, v{o}, v{o+1}")
                a(f"v_cvt_pk_bf16_f32 v{d+1}, v{o+2}, v{o+3}")
                a.vmop(f"buffer_store_dwordx2 v[{d}:{d+1}], v{T+6}, s[{S_WS}:{S_WS+3}], s{so} offen sc1", "part")
    for s in range(10, 18):
        u = (s-10)>>1; slot = s%4
        if s == 11: a.wait_vm("st11", "Pst")
        elif s == 14: a.wait_vm("st14", "poll")
        elif s == 16: a.wait_vm("st16", "Pld")
        else: a.wait_vm(f"st{s}")
        if s == 11:
            a(f"s_lshl_b32 s{S_T2}, s{S_PG}, 2")
            a(f"s_add_u32 s{S_T2}, s{S_T2}, s{S_W}")
            a(f"s_lshl_b32 s{S_T2}, s{S_T2}, 4")
            a(f"s_add_u32 s{S_T2}, s{S_T2}, s{S_CP}")
            a(f"s_lshl_b32 s{S_T2}, s{S_T2}, 2")
            a(f"s_add_u32 s{S_T2}, s{S_T2}, {FP_BASE}")
            flag_store(None, "Pflag")
        a("s_barrier")
        a.stamp()
        if not s&1:
            for st in range(2):
                for ks in range(4):
                    if slot == 0:
                        a(f"ds_read_b128 a[{VF+16*st+4*ks}:{VF+16*st+4*ks+3}], v{AV+ks} offset:{st*4096}")
                    else:
                        a(f"v_add_u32 v{T}, {slot*SLOT}, v{AV+ks}")
                        a(f"ds_read_b128 a[{VF+16*st+4*ks}:{VF+16*st+4*ks+3}], v{T} offset:{st*4096}")
            if s == 12:
                a.vmop(f"buffer_load_dword v{T+7}, v{FPA}, s[{S_WS}:{S_WS+3}], 0 offen sc1", "poll")
            if s == 14:
                spin("L_pw", FPA, TAGP, True)
                for uu in range(4):
                    for it in range(2):
                        a.vmop(f"buffer_load_dwordx4 a[{PF+8*uu+4*it}:{PF+8*uu+4*it+3}], v{VL}, s[{S_WS}:{S_WS+3}], s{S_SPU[uu]} offen offset:{1024*it} sc1", "Pld")
            dma_stage(s+3)
            if s == 16:
                a(f"s_lshl_b32 s{S_T0}, s{S_RG}, 2")
                a(f"s_add_u32 s{S_T0}, s{S_T0}, s{S_W}")
                a(f"s_lshl_b32 s{S_T0}, s{S_T0}, 4")
                a(f"s_add_u32 s{S_T0}, s{S_T0}, s{S_SPLIT}")
                a(f"s_mul_i32 s{S_PW}, s{S_T0}, 4608")
                a(f"s_add_u32 s{S_PW}, s{S_PW}, {PART_BASE}")
                a(f"s_add_u32 s{S_PW1}, s{S_PW}, {8*4608}")
                a(f"v_lshlrev_b32 v{T+6}, 3, v1")
                a(f"v_add_u32 v{T+6}, 4096, v{T+6}")
                for t in range(9):
                    for uu in range(3): pv(uu, t)
            a("s_waitcnt lgkmcnt(0)")
            continue
        for ks in range(4): rdW(slot, 0, ks)
        dma_stage(s+3)
        for t in range(9):
            for ks in range(4):
                n = 6 if t < 8 else 6-2*ks
                a(f"s_waitcnt lgkmcnt({n})")
                for st in range(2):
                    w = VW+8*(t&1)+4*st
                    c = "0" if ks == 0 else f"v[{w}:{w+3}]"
                    a(f"v_mfma_f32_16x16x32_bf16 v[{w}:{w+3}], a[{VF+16*st+4*ks}:{VF+16*st+4*ks+3}], a[{BF+4*ks}:{BF+4*ks+3}], {c}")
                if t < 8: rdW(slot, t+1, ks)
                if ks == 2 and t > 0: cvt(u, t-1)
                if u == 3 and ks == 1 and t >= 3 and (t&1):
                    out_pack_store((t-3)>>1)
            if u == 3 and t > 0: pv(3, t-1)
        a("s_nop 7")
        cvt(u, 8)
        if u == 3:
            a("s_nop 1")
            pv(3, 8)
            a("s_nop 3")
            out_pack_store(3)
            a("s_nop 1")
            out_pack_store(4)
    a(f"s_lshl_b32 s{S_T2}, s{S_RG}, 2")
    a(f"s_add_u32 s{S_T2}, s{S_T2}, s{S_W}")
    a(f"s_lshl_b32 s{S_T2}, s{S_T2}, 4")
    a(f"s_add_u32 s{S_T2}, s{S_T2}, s{S_SPLIT}")
    a(f"s_lshl_b32 s{S_T2}, s{S_T2}, 2")
    a(f"s_add_u32 s{S_T2}, s{S_T2}, {FR_BASE}")
    a.stamp()
    a("s_waitcnt vmcnt(0)")
    flag_store(None, "Rflag")
    a.stamp()
    a(f"s_lshl_b32 s{S_T0}, s{S_RG}, 3")
    a(f"s_add_u32 s{S_T0}, s{S_T0}, s{S_SPLIT}")
    a(f"s_mul_i32 s{S_T0}, s{S_T0}, {8*4608}")
    a(f"s_add_u32 s{S_T0}, s{S_T0}, {PART_BASE}")
    a(f"s_lshl_b32 s{S_T1}, s{S_W}, 10")
    a(f"s_add_u32 s{S_T1}, s{S_T1}, s{S_T0}")
    a(f"s_lshl_b32 s{S_T3}, s{S_RB}, 3")
    a(f"s_add_u32 s{S_T3}, s{S_T3}, s{S_SPLIT}")
    a(f"s_mul_i32 s{S_T3}, s{S_T3}, {16*2304}")
    a(f"s_mul_i32 s{S_SOK}, s{S_BR}, 1152")
    a(f"s_add_u32 s{S_T3}, s{S_T3}, s{S_SOK}")
    a(f"s_mul_i32 s{S_SOK}, s{S_CP}, 288")
    a(f"s_add_u32 s{S_T3}, s{S_T3}, s{S_SOK}")
    a(f"v_and_b32 v{T}, 15, v1")
    a(f"v_mul_u32_u24 v{T}, 2304, v{T}")
    a(f"v_lshrrev_b32 v{T+1}, 4, v1")
    a(f"v_lshl_add_u32 v{T+2}, v{T+1}, 3, v{T}")
    a(f"v_bfe_u32 v{T+3}, v1, 4, 1")
    a(f"v_lshl_add_u32 v{T}, v{T+3}, 5, v{T}")
    a(f"v_bfe_u32 v{T+3}, v1, 5, 1")
    a(f"v_lshl_add_u32 v{T}, v{T+3}, 4, v{T}")
    a(f"s_lshl_b32 s{S_SOK}, s{S_W}, 6")
    a(f"v_add_u32 v{T}, s{S_SOK}, v{T}")
    a(f"s_mov_b32 s{S_SOV[0]}, 0x3f80")
    a(f"s_mov_b32 s{S_SOV[1]}, 0x3f800000")
    spin("L_rw", FRA, TAGR, False)
    a.stamp()
    LD=64; L8=100; RA=120
    for j in range(8):
        a(f"buffer_load_dwordx4 v[{LD+4*j}:{LD+4*j+3}], v{VL}, s[{S_WS}:{S_WS+3}], s{S_T1} offen sc1")
        if j < 7: a(f"s_add_u32 s{S_T1}, s{S_T1}, 4608")
    a(f"s_cmp_lg_u32 s{S_W}, 3")
    a("s_cbranch_scc1 L_no8")
    for j in range(8):
        a(f"buffer_load_dwordx2 v[{L8+2*j}:{L8+2*j+1}], v{T+6}, s[{S_WS}:{S_WS+3}], s{S_T0} offen sc1")
        if j < 7: a(f"s_add_u32 s{S_T0}, s{S_T0}, 4608")
    for r in range(4): a(f"v_mov_b32 v{RA+8+r}, 0")
    a("s_waitcnt vmcnt(0)")
    for j in range(8):
        for d in range(2):
            a(f"v_dot2c_f32_bf16 v{RA+8+2*d}, s{S_SOV[0]}, v{L8+2*j+d}")
            a(f"v_dot2c_f32_bf16 v{RA+8+2*d+1}, s{S_SOV[1]}, v{L8+2*j+d}")
    a("s_nop 2")
    a(f"v_cvt_pk_bf16_f32 v{L8}, v{RA+8}, v{RA+9}")
    a(f"v_cvt_pk_bf16_f32 v{L8+1}, v{RA+10}, v{RA+11}")
    a(f"buffer_store_dwordx2 v[{L8}:{L8+1}], v{T+2}, s[{S_OUT}:{S_OUT+3}], s{S_T3} offen offset:256")
    a.label("L_no8")
    for r in range(8): a(f"v_mov_b32 v{RA+r}, 0")
    for j in range(8):
        a(f"s_waitcnt vmcnt({7-j})")
        for d in range(4):
            a(f"v_dot2c_f32_bf16 v{RA+2*d}, s{S_SOV[0]}, v{LD+4*j+d}")
            a(f"v_dot2c_f32_bf16 v{RA+2*d+1}, s{S_SOV[1]}, v{LD+4*j+d}")
    a("s_nop 2")
    for d in range(4): a(f"v_cvt_pk_bf16_f32 v{LD+d}, v{RA+2*d}, v{RA+2*d+1}")
    a("s_nop 1")
    a(f"v_permlane16_swap_b32 v{LD}, v{LD+2}")
    a(f"v_permlane16_swap_b32 v{LD+1}, v{LD+3}")
    a("s_nop 1")
    a(f"buffer_store_dwordx4 v[{LD}:{LD+3}], v{T}, s[{S_OUT}:{S_OUT+3}], s{S_T3} offen")
    a(f"s_cmp_lg_u32 s{S_W}, 0")
    a("s_cbranch_scc1 L_noe")
    a(f"s_lshl_b32 s{S_T2}, s2, 2")
    a(f"s_add_u32 s{S_T2}, s{S_T2}, {E_BASE}")
    flag_store(None, "Eup")
    a.label("L_noe")
    if OPT["stamp"]:
        a("s_waitcnt vmcnt(0)")
        a.stamp()
        a(f"s_lshl_b32 s{S_T2}, s2, 2")
        a(f"s_add_u32 s{S_T2}, s{S_T2}, s{S_W}")
        a(f"s_lshl_b32 s{S_T2}, s{S_T2}, 8")
        a(f"s_add_u32 s{S_T2}, s{S_T2}, {STAMP_BASE}")
        a(f"v_lshlrev_b32 v{T}, 2, v1")
        a(f"buffer_store_dword v{V_STAMP}, v{T}, s[{S_WS}:{S_WS+3}], s{S_T2} offen")
    a.label("L_end")
    a("s_endpgm")

def main():
    a = Asm()
    hdr = open("cdna_kernels/%s.s.ref" % NAME).read().split("; Override")[0]
    a.raw(hdr.rstrip())
    a.raw(f"; @launch grid=(256,1,1) block=(256,1,1) lds={4*SLOT}")
    a.raw('.amdgcn_target "amdgcn-amd-amdhsa--gfx950"')
    a.raw(".text")
    gen(a)
    a.raw('.section .rodata,"a"')
    a.raw(".p2align 6")
    a.raw(f".amdhsa_kernel {NAME}_kernel")
    a.raw(f"  .amdhsa_next_free_vgpr {NARCH+NACC}")
    a.raw(f"  .amdhsa_next_free_sgpr 100")
    a.raw(f"  .amdhsa_accum_offset {NARCH}")
    a.raw("  .amdhsa_group_segment_fixed_size 0")
    a.raw("  .amdhsa_kernarg_size 104")
    a.raw("  .amdhsa_user_sgpr_count 2")
    a.raw("  .amdhsa_user_sgpr_kernarg_segment_ptr 1")
    a.raw("  .amdhsa_system_sgpr_workgroup_id_x 1")
    a.raw(".end_amdhsa_kernel")
    open(sys.argv[1], "w").write(a.text())
main()
```

```python
import sys, os
NAME = "concat_heads__gqa_block_cached__mha_block_cached__near_ridge"
OPT = dict(stamp=0, rot1=0, rot2=0, ntx=0, ntq=0, ntk=0, ntv=0, nto=0, prio=1, nodma=0, nomfma=0, nolds=0, cyc=0)
for arg in sys.argv[2:]:
    k, v = arg.split("="); assert k in OPT, k; OPT[k] = int(v)

class Asm:
    def __init__(self):
        self.L=[]; self.vm=[]; self.nst=0
    def __call__(self, s):
        if OPT["nomfma"] and s.startswith("v_mfma"): return
        if OPT["nolds"] and s.startswith("ds_read"): return
        if OPT["nodma"] and s.endswith(" lds"): return
        self.L.append("    "+s)
    def label(self, n): self.L.append(n+":")
    def raw(self, s): self.L.append(s)
    def text(self): return "\n".join(self.L)+"\n"
    def vmop(self, s, tag): self(s); self.vm.append(tag)
    def wait_vm(self, *tags):
        idx = max((i for i,t in enumerate(self.vm) if t in tags), default=-1)
        assert idx >= 0, tags
        n = len(self.vm)-1-idx
        assert n <= 63
        self(f"s_waitcnt vmcnt({n})")
    def stamp(self):
        if not OPT["stamp"]: return
        self("s_memtime s[96:97]" if OPT["cyc"] else "s_memrealtime s[96:97]")
        self("s_waitcnt lgkmcnt(0)")
        self(f"v_writelane_b32 v{V_STAMP}, s96, {self.nst}")
        self.nst += 1

SLOT = 36864
P_BASE = 0
PART_BASE = 2<<20
E_BASE = 12<<20
FP_BASE = E_BASE + 4096
FR_BASE = FP_BASE + 16384
STAMP_BASE = 13<<20
WS_USED = 14<<20
LCG_A = 1664525; LCG_C = 1013904223
SPIN_MAX = 1<<15

S_X=8; S_WQ=12; S_K=16; S_WS=20; S_V=24; S_WO=28; S_OUT=32
S_W=62; S_BR=63; S_HQ=64; S_RB=65; S_HL=66; S_H=67; S_B=68; S_SPLIT=69
S_T0=70; S_T1=71; S_T2=72; S_T3=73
S_SOX=74; S_SOQ=75; S_SOK=76; S_C=77; S_SOP=78; S_CP=80; S_KQ=81; S_LW4=82; S_LW8=83
S_SOV=[84,85,86,87]; S_SOW=[88,89,90,91]; S_SPU=[92,93,94,95]; S_LWO=79
S_TAG=3; S_CNT=4; S_CH=5; S_RG=6; S_PG=7
AX=2; AQ=10; VW=2; PK=18; T=26; AV=36; AO=40; VL=42; TAGP=43; TAGR=44; FPA=45; FRA=46; V_STAMP=47
RB=48
ACC=RB; QB=RB+64; SA=RB+96
STASH=RB+12
NARCH=168
VX=2; VQ=6; VK=10; VO=14
FA=0; FB=16; KF=24; PF=0; BF=32; VF=48; NACC=80

def nt(k): return " nt" if OPT[k] else ""

def srd(a, base, lo, hi, nrec):
    a(f"s_mov_b32 s{base}, s{lo}")
    a(f"s_and_b32 s{base+1}, s{hi}, 0xffff")
    a(f"s_mov_b32 s{base+2}, {nrec}")
    a(f"s_mov_b32 s{base+3}, 0x20000")

def kv_soffset(a, dst, head_s):
    a(f"s_lshl_b32 s{S_T0}, s{S_B}, 4")
    a(f"s_lshr_b32 s{S_T1}, s{head_s}, 1")
    a(f"s_add_u32 s{S_T0}, s{S_T0}, s{S_T1}")
    a(f"s_lshl_b32 s{S_T1}, s{S_B}, 5")
    a(f"s_add_u32 s{S_T1}, s{S_T1}, s{head_s}")
    a(f"s_cmp_eq_u32 s{S_BR}, 0")
    a(f"s_cselect_b32 s{dst}, s{S_T0}, s{S_T1}")
    a(f"s_lshl_b32 s{dst}, s{dst}, 13")

def head_u(a, u):
    if OPT["rot2"]:
        a(f"s_add_u32 s{S_T2}, s{S_RB}, s{S_CP}")
        a(f"s_add_u32 s{S_T2}, s{S_T2}, {u}")
        a(f"s_and_b32 s{S_T2}, s{S_T2}, 3")
        a(f"s_lshl_b32 s{S_T3}, s{S_SPLIT}, 2")
        a(f"s_add_u32 s{S_T3}, s{S_T3}, s{S_T2}")
    else:
        a(f"s_lshl_b32 s{S_T3}, s{S_SPLIT}, 2")
        if u: a(f"s_add_u32 s{S_T3}, s{S_T3}, {u}")

def stamp_out(a, widx):
    if not OPT["stamp"]: return
    a("s_waitcnt vmcnt(0)")
    a.stamp()
    a(f"s_lshl_b32 s{S_T2}, s2, 3")
    a(f"s_add_u32 s{S_T2}, s{S_T2}, s{S_W}")
    if widx: a(f"s_add_u32 s{S_T2}, s{S_T2}, 4")
    a(f"s_lshl_b32 s{S_T2}, s{S_T2}, 8")
    a(f"s_add_u32 s{S_T2}, s{S_T2}, {STAMP_BASE}")
    a(f"v_lshlrev_b32 v{T}, 2, v1")
    a(f"buffer_store_dword v{V_STAMP}, v{T}, s[{S_WS}:{S_WS+3}], s{S_T2} offen")

def gen_loader(a):
    a.vm = []; a.nst = 1
    if OPT["prio"]: a(f"s_setprio {OPT['prio']}")
    a(f"v_lshrrev_b32 v{T}, 3, v1")
    a(f"v_lshrrev_b32 v{T+1}, 4, v1")
    a(f"v_and_b32 v{T+2}, 7, v1")
    a(f"s_lshl_b32 s{S_T0}, s{S_W}, 5")
    a(f"v_add_u32 v{T+3}, s{S_T0}, v{T}")
    a(f"v_mul_u32_u24 v{T+3}, 1152, v{T+3}")
    a(f"v_xor_b32 v{T+4}, 4, v{T+2}")
    for j in range(4):
        src = T+4 if j & 1 else T+2
        a(f"v_xor_b32 v{VX+j}, v{src}, v{T+1}")
        a(f"v_lshl_add_u32 v{VX+j}, v{VX+j}, 4, v{T+3}")
        if j: a(f"v_add_u32 v{VX+j}, {8192*j}, v{VX+j}")
    a(f"s_lshl_b32 s{S_T0}, s{S_W}, 4")
    a(f"v_add_u32 v{T+3}, s{S_T0}, v{T+1}")
    a(f"v_lshlrev_b32 v{T+3}, 13, v{T+3}")
    a(f"v_and_b32 v{T+4}, 15, v1")
    a(f"v_lshlrev_b32 v{T+5}, 2, v{T+1}")
    a(f"v_xor_b32 v{T+4}, v{T+4}, v{T+5}")
    a(f"v_lshl_add_u32 v{VQ}, v{T+4}, 4, v{T+3}")
    for j in range(1,4):
        a(f"v_add_u32 v{VQ+j}, {31744*j}, v{VQ}")
    a(f"s_mul_i32 s{S_SOX}, s{S_RB}, 147456")
    a(f"s_lshl_b32 s{S_SOQ}, s{S_H}, 8")
    if OPT["rot1"] == 0: a(f"s_mov_b32 s{S_CH}, 0")
    elif OPT["rot1"] == 1:
        a(f"s_lshl_b32 s{S_CH}, s{S_RB}, 1")
    elif OPT["rot1"] == 2:
        a(f"s_lshl_b32 s{S_CH}, s{S_RB}, 1")
        a(f"s_add_u32 s{S_CH}, s{S_CH}, s{S_HL}")
        a(f"s_sub_u32 s{S_T0}, s{S_CH}, 9")
        a(f"s_cmp_ge_u32 s{S_CH}, 9")
        a(f"s_cselect_b32 s{S_CH}, s{S_T0}, s{S_CH}")
    a(f"s_mov_b32 s{S_T3}, 4194304")
    a("s_waitcnt lgkmcnt(0)")
    a.stamp()
    a(f"s_cmp_eq_u32 s{S_BR}, 0")
    sel = [(S_X,0,589824,589824),(S_WQ,3,4718592,4718592),(S_K,1,2097152,4194304),(S_V,2,2097152,4194304),(S_WO,4,4718592,4718592)]
    def selp(lst):
        for base, idx, na, nb in lst:
            la = 36+2*idx; lb = 46+2*idx
            a(f"s_cselect_b32 s{base}, s{la}, s{lb}")
            a(f"s_cselect_b32 s{base+1}, s{la+1}, s{lb+1}")
            if na == nb: a(f"s_mov_b32 s{base+2}, {na}")
            else: a(f"s_cselect_b32 s{base+2}, {na}, s{S_T3}")
            a(f"s_mov_b32 s{base+3}, 0x20000")
        for base, idx, na, nb in lst:
            a(f"s_and_b32 s{base+1}, s{base+1}, 0xffff")
    selp(sel[:2])
    def dma_s1(t):
        slot = t % 4
        a(f"s_add_u32 m0, s{S_LW4}, {slot*SLOT+16384}")
        a(f"s_lshl_b32 s{S_T2}, s{S_CH}, 19")
        a(f"s_add_u32 s{S_T2}, s{S_T2}, s{S_SOQ}")
        for j in range(4):
            a.vmop(f"buffer_load_dwordx4 v{VQ+j}, s[{S_WQ}:{S_WQ+3}], s{S_T2} offen offset:{1024*j}{nt('ntq')} lds", f"st{t}")
        a(f"s_add_u32 m0, s{S_LW4}, {slot*SLOT}")
        a(f"s_lshl_b32 s{S_T2}, s{S_CH}, 7")
        a(f"s_add_u32 s{S_T2}, s{S_T2}, s{S_SOX}")
        for j in range(4):
            a.vmop(f"buffer_load_dwordx4 v{VX+j}, s[{S_X}:{S_X+3}], s{S_T2} offen offset:{1024*j}{nt('ntx')} lds", f"st{t}")
        a(f"s_add_u32 s{S_CH}, s{S_CH}, 1")
        a(f"s_cmp_eq_u32 s{S_CH}, 9")
        a(f"s_cselect_b32 s{S_CH}, 0, s{S_CH}")
    def dma_kv(srdb, soff, st, ntk):
        slot = st % 4
        for half in range(2):
            a(f"s_add_u32 m0, s{S_LW8}, {slot*SLOT + half*4096}")
            if half == 0: a(f"s_mov_b32 s{S_T2}, s{soff}")
            else: a(f"s_add_u32 s{S_T2}, s{soff}, 4096")
            for j in range(4):
                a.vmop(f"buffer_load_dwordx4 v{VK+j}, s[{srdb}:{srdb+3}], s{S_T2} offen offset:{1024*j}{nt(ntk)} lds", f"st{st}")
    def dma_wo(u, st):
        slot = st % 4
        for j in range(9):
            if j%4 == 0:
                a(f"s_add_u32 m0, s{S_LWO}, {slot*SLOT + 4096*(j>>2)}")
                a("s_nop 0")
            a.vmop(f"buffer_load_dwordx4 v{VO+j}, s[{S_WO}:{S_WO+3}], s{S_SOW[u]} offen offset:{1024*(j&3)}{nt('nto')} lds", f"st{st}")
    def dma_stage(s):
        if s < 9: dma_s1(s)
        elif s == 9: dma_kv(S_K, S_SOK, 9, "ntk")
        elif s < 18:
            u = (s-10)>>1
            if s & 1: dma_wo(u, s)
            else: dma_kv(S_V, S_SOV[u], s, "ntv")
    for t in range(3): dma_stage(t)
    a.stamp()
    def late_setup():
        a(f"s_cmp_eq_u32 s{S_BR}, 0")
        selp(sel[2:])
        a(f"v_lshrrev_b32 v{T}, 4, v1")
        a(f"v_and_b32 v{T+1}, 15, v1")
        for j in range(4):
            a(f"v_add_u32 v{VK+j}, {4*j}, v{T}")
            a(f"v_xor_b32 v{VK+j}, v{VK+j}, v{T+1}")
            a(f"v_lshlrev_b32 v{VK+j}, 4, v{VK+j}")
            a(f"v_lshl_add_u32 v{VK+j}, v{T}, 8, v{VK+j}")
        kv_soffset(a, S_SOK, S_H)
        a(f"s_movk_i32 s{S_T0}, 3641")
        for j in range(9):
            a(f"v_add_u32 v{T}, {64*j}, v1")
            a(f"v_mul_u32_u24 v{T+1}, s{S_T0}, v{T}")
            a(f"v_lshrrev_b32 v{T+1}, 16, v{T+1}")
            a(f"v_mul_u32_u24 v{T+2}, 18, v{T+1}")
            a(f"v_sub_u32 v{T+2}, v{T}, v{T+2}")
            a(f"v_and_b32 v{T+3}, 0x13, v{T+1}")
            a(f"v_bfe_u32 v{T+4}, v{T+1}, 2, 1")
            a(f"v_lshl_add_u32 v{T+3}, v{T+4}, 3, v{T+3}")
            a(f"v_bfe_u32 v{T+4}, v{T+1}, 3, 1")
            a(f"v_lshl_add_u32 v{T+3}, v{T+4}, 2, v{T+3}")
            a(f"v_mul_u32_u24 v{T+3}, 1152, v{T+3}")
            a(f"v_lshl_add_u32 v{VO+j}, v{T+2}, 4, v{T+3}")
            if j&3: a(f"v_subrev_u32 v{VO+j}, {1024*(j&3)}, v{VO+j}")
        a(f"s_mul_i32 s{S_LWO}, s{S_W}, 9216")
        for u in range(4):
            head_u(a, u)
            a(f"s_lshl_b32 s{S_T2}, s{S_T3}, 2")
            a(f"s_add_u32 s{S_T2}, s{S_T2}, s{S_W}")
            a(f"s_mul_i32 s{S_SOW[u]}, s{S_T2}, {32*1152}")
            a(f"s_mul_i32 s{S_T2}, s{S_CP}, 288")
            a(f"s_add_u32 s{S_SOW[u]}, s{S_SOW[u]}, s{S_T2}")
            kv_soffset(a, S_SOV[u], S_T3)
    for s in range(18):
        a.wait_vm(f"st{s}")
        a("s_barrier")
        dma_stage(s+3)
        if s == 2: late_setup()
        a.stamp()
    if OPT["stamp"]: srd(a, S_WS, 60, 61, WS_USED)
    stamp_out(a, 1)
    a("s_endpgm")

def gen_compute(a):
    a.vm = []; a.nst = 1
    a(f"v_and_b32 v{T}, 31, v1")
    a(f"v_lshrrev_b32 v{T+1}, 5, v1")
    a(f"v_bfe_u32 v{T+2}, v1, 1, 3")
    a(f"v_xor_b32 v{T+2}, v{T+2}, v{T+1}")
    a(f"v_lshlrev_b32 v{T+2}, 4, v{T+2}")
    a(f"v_lshl_add_u32 v{T+2}, v{T}, 7, v{T+2}")
    a(f"v_add_u32 v{AX}, s{S_LW4}, v{T+2}")
    for ks in range(1,4): a(f"v_xor_b32 v{AX+ks}, {32*ks}, v{AX}")
    for ks in range(4): a(f"v_add_u32 v{AX+4+ks}, {2*SLOT}, v{AX+ks}")
    a(f"v_bfe_u32 v{T}, v1, 2, 2")
    a(f"v_lshl_add_u32 v{T+2}, v{T+1}, 3, v{T}")
    a(f"v_lshlrev_b32 v{T+2}, 8, v{T+2}")
    a(f"v_lshl_add_u32 v{T+2}, v{T}, 6, v{T+2}")
    a(f"v_bfe_u32 v{T+3}, v1, 4, 1")
    a(f"v_lshl_add_u32 v{T+2}, v{T+3}, 5, v{T+2}")
    a(f"v_and_b32 v{T+3}, 1, v1")
    a(f"v_lshl_add_u32 v{T+2}, v{T+3}, 4, v{T+2}")
    a(f"v_bfe_u32 v{T+3}, v1, 1, 1")
    a(f"v_lshl_add_u32 v{T+2}, v{T+3}, 3, v{T+2}")
    a(f"v_add_u32 v{AQ}, 16384, v{T+2}")
    for t in range(1,4): a(f"v_xor_b32 v{AQ+t}, {64*t}, v{AQ}")
    for t in range(4): a(f"v_add_u32 v{AQ+4+t}, {2*SLOT}, v{AQ+t}")
    a(f"v_lshrrev_b32 v{T}, 4, v1")
    a(f"v_and_b32 v{T+1}, 15, v1")
    a(f"v_xor_b32 v{T+2}, v{T}, v{T+1}")
    a(f"v_lshlrev_b32 v{T+2}, 4, v{T+2}")
    a(f"v_lshl_add_u32 v{T+2}, v{T+1}, 8, v{T+2}")
    a(f"v_add_u32 v{AV}, s{S_LW8}, v{T+2}")
    for ks in range(1,4): a(f"v_xor_b32 v{AV+ks}, {64*ks}, v{AV}")
    a(f"v_lshlrev_b32 v{VL}, 4, v1")
    a(f"v_bfe_u32 v{T}, v1, 5, 1")
    a(f"v_lshlrev_b32 v{T}, 4, v{T}")
    a(f"v_bfe_u32 v{T+1}, v1, 4, 1")
    a(f"v_lshl_add_u32 v{T}, v{T+1}, 2, v{T}")
    a(f"v_bfe_u32 v{T+1}, v1, 2, 2")
    a(f"v_add_u32 v{T}, v{T}, v{T+1}")
    a(f"v_mul_u32_u24 v{T}, 288, v{T}")
    a(f"v_and_b32 v{T+1}, 3, v1")
    a(f"v_lshl_add_u32 v{T}, v{T+1}, 3, v{T}")
    a(f"v_add_u32 v{AO}, {SLOT}, v{T}")
    a(f"v_add_u32 v{AO+1}, {3*SLOT}, v{T}")
    a(f"s_lshl_b32 s{S_PG}, s{S_BR}, 3")
    a(f"s_add_u32 s{S_PG}, s{S_PG}, s{S_SPLIT}")
    a(f"s_lshl_b32 s{S_PG}, s{S_PG}, 2")
    a(f"s_add_u32 s{S_PG}, s{S_PG}, s{S_RB}")
    a(f"s_lshl_b32 s{S_RG}, s{S_BR}, 2")
    a(f"s_add_u32 s{S_RG}, s{S_RG}, s{S_RB}")
    a(f"s_lshl_b32 s{S_RG}, s{S_RG}, 2")
    a(f"s_add_u32 s{S_RG}, s{S_RG}, s{S_CP}")
    a(f"v_and_b32 v{T}, 3, v1")
    a(f"v_and_b32 v{T+2}, 7, v1")
    a(f"s_lshl_b32 s{S_T0}, s{S_PG}, 2")
    a(f"s_add_u32 s{S_T0}, s{S_T0}, s{S_W}")
    a(f"s_lshl_b32 s{S_T0}, s{S_T0}, 6")
    a(f"s_add_u32 s{S_T0}, s{S_T0}, {FP_BASE}")
    a(f"v_lshl_add_u32 v{FPA}, v{T}, 2, s{S_T0}")
    a(f"s_lshl_b32 s{S_T0}, s{S_RG}, 2")
    a(f"s_add_u32 s{S_T0}, s{S_T0}, s{S_HQ}")
    a(f"s_lshl_b32 s{S_T0}, s{S_T0}, 6")
    a(f"s_add_u32 s{S_T0}, s{S_T0}, {FR_BASE}")
    a(f"v_lshl_add_u32 v{FRA}, v{T+2}, 2, s{S_T0}")
    a(f"s_and_b32 s{S_T0}, s2, 0x9f")
    a(f"v_lshlrev_b32 v{T+1}, 5, v{T}")
    a(f"v_add_u32 v{T+1}, s{S_T0}, v{T+1}")
    a(f"v_lshlrev_b32 v{T+1}, 2, v{T+1}")
    a(f"s_and_b32 s{S_T0}, s2, 0x7c")
    a(f"v_lshrrev_b32 v{T+3}, 1, v{T+2}")
    a(f"v_and_b32 v{T+4}, 1, v1")
    a(f"v_lshl_add_u32 v{T+3}, v{T+4}, 7, v{T+3}")
    a(f"v_add_u32 v{T+3}, s{S_T0}, v{T+3}")
    a(f"v_lshlrev_b32 v{T+3}, 2, v{T+3}")
    a(f"s_lshl_b32 s{S_T0}, s{S_BR}, 4")
    a(f"s_add_u32 s{S_T0}, s{S_T0}, s{S_B}")
    a(f"s_lshl_b32 s{S_SOP}, s{S_T0}, 16")
    for u in range(4):
        head_u(a, u)
        a(f"s_lshl_b32 s{S_SPU[u]}, s{S_T3}, 11")
        a(f"s_add_u32 s{S_SPU[u]}, s{S_SPU[u]}, s{S_SOP}")
    a(f"s_lshl_b32 s{S_T0}, s{S_H}, 11")
    a(f"s_add_u32 s{S_SOP}, s{S_SOP}, s{S_T0}")
    a(f"s_mov_b32 s{S_C}, 0x3e0293ee")
    a(f"s_mov_b32 s{S_T1}, {E_BASE}")
    a("s_waitcnt lgkmcnt(0)")
    srd(a, S_WS, 60, 61, WS_USED)
    srd(a, S_OUT, 56, 57, 1179648)
    a.vmop(f"buffer_load_dword v{TAGP}, v{T+1}, s[{S_WS}:{S_WS+3}], s{S_T1} offen sc1", "E")
    a.vmop(f"buffer_load_dword v{TAGR}, v{T+3}, s[{S_WS}:{S_WS+3}], s{S_T1} offen sc1", "E")
    a.stamp()

    def rdB(slot, ks):
        s2 = (slot>>1)*4; off = (slot&1)*SLOT
        a(f"ds_read_b128 a[{FB+4*(ks&1)}:{FB+4*(ks&1)+3}], v{AX+s2+ks} offset:{off}")
    def rdA(slot, ks, t):
        s2 = (slot>>1)*4; off = (slot&1)*SLOT + ks*4096
        a(f"ds_read_b64_tr_b16 a[{FA+4*t}:{FA+4*t+1}], v{AQ+s2+t} offset:{off}")
        a(f"ds_read_b64_tr_b16 a[{FA+4*t+2}:{FA+4*t+3}], v{AQ+s2+t} offset:{off+1024}")
    for st in range(9):
        slot = st % 4
        a("s_barrier")
        a.stamp()
        rdB(slot,0)
        for t in range(4): rdA(slot,0,t)
        if st == 4:
            a.wait_vm("E")
            a(f"s_mov_b32 s{S_T0}, {LCG_A}")
            a(f"v_mul_lo_u32 v{TAGP}, v{TAGP}, s{S_T0}")
            a(f"v_mul_lo_u32 v{TAGR}, v{TAGR}, s{S_T0}")
            a(f"v_add_u32 v{TAGP}, {LCG_C}, v{TAGP}")
            a(f"v_add_u32 v{TAGR}, {LCG_C}, v{TAGR}")
            a("s_nop 0")
            a(f"v_readlane_b32 s{S_TAG}, v{TAGR}, s{S_SPLIT}")
        for ks in range(4):
            for t in range(4):
                last = (ks == 3)
                n = 6 if t == 0 else (7 if not last else 6-2*t)
                a(f"s_waitcnt lgkmcnt({n})")
                c = "0" if (st == 0 and ks == 0) else f"v[{ACC+16*t}:{ACC+16*t+15}]"
                a(f"v_mfma_f32_32x32x16_bf16 v[{ACC+16*t}:{ACC+16*t+15}], a[{FA+4*t}:{FA+4*t+3}], a[{FB+4*(ks&1)}:{FB+4*(ks&1)+3}], {c}")
                if not last:
                    if t == 0: rdB(slot, ks+1)
                    rdA(slot, ks+1, t)
    a(f"v_and_b32 v{T}, 31, v1")
    a(f"v_lshrrev_b32 v{T+1}, 5, v1")
    a(f"v_and_b32 v{T+2}, 15, v1")
    a(f"v_xor_b32 v{T+2}, v{T+2}, v{T+1}")
    a(f"v_lshlrev_b32 v{T+2}, 4, v{T+2}")
    a(f"v_lshl_add_u32 v{T+2}, v{T}, 8, v{T+2}")
    a(f"v_add_u32 v{T+2}, s{S_LW8}, v{T+2}")
    a("s_barrier")
    a.stamp()
    for kk in range(8):
        a(f"v_xor_b32 v{T+3}, {32*kk}, v{T+2}")
        a(f"ds_read_b128 a[{KF+4*kk}:{KF+4*kk+3}], v{T+3} offset:{(9%4)*SLOT}")
    for t in range(4):
        for r in range(8):
            a(f"v_cvt_pk_bf16_f32 v{QB+8*t+r}, v{ACC+16*t+2*r}, v{ACC+16*t+2*r+1}")
    for kk in range(8):
        a(f"s_waitcnt lgkmcnt({7-kk})")
        if kk == 0: a("s_nop 0")
        c = "0" if kk == 0 else f"v[{SA}:{SA+15}]"
        a(f"v_mfma_f32_32x32x16_bf16 v[{SA}:{SA+15}], a[{KF+4*kk}:{KF+4*kk+3}], v[{QB+4*kk}:{QB+4*kk+3}], {c}")
    def v_reads(slot):
        for st in range(2):
            for ks in range(4):
                if slot == 0:
                    a(f"ds_read_b128 a[{VF+16*st+4*ks}:{VF+16*st+4*ks+3}], v{AV+ks} offset:{st*4096}")
                else:
                    a(f"v_add_u32 v{T+5}, {slot*SLOT}, v{AV+ks}")
                    a(f"ds_read_b128 a[{VF+16*st+4*ks}:{VF+16*st+4*ks+3}], v{T+5} offset:{st*4096}")
    a(f"v_bfe_u32 v{T}, v1, 4, 1")
    a(f"v_lshlrev_b32 v{T}, 10, v{T}")
    a(f"v_lshl_add_u32 v{T}, v{T+1}, 8, v{T}")
    a(f"v_and_b32 v{T+2}, 15, v1")
    a(f"v_lshl_add_u32 v{T}, v{T+2}, 4, v{T}")
    a("s_nop 7")
    M=T+3; M2=T+4
    a(f"v_max3_f32 v{M}, v{SA}, v{SA+1}, v{SA+2}")
    for r in range(3,15,2): a(f"v_max3_f32 v{M}, v{M}, v{SA+r}, v{SA+r+1}")
    a(f"v_max_f32 v{M}, v{M}, v{SA+15}")
    a(f"v_mov_b32 v{M2}, v{M}")
    a("s_nop 1")
    a(f"v_permlane32_swap_b32 v{M}, v{M2}")
    a("s_nop 1")
    a(f"v_max_f32 v{M}, v{M}, v{M2}")
    a(f"v_mul_f32 v{M}, s{S_C}, v{M}")
    for r in range(16): a(f"v_fma_f32 v{SA+r}, v{SA+r}, s{S_C}, -v{M}")
    for r in range(16): a(f"v_exp_f32 v{SA+r}, v{SA+r}")
    a("s_nop 0")
    a(f"v_add_f32 v{M}, v{SA}, v{SA+1}")
    for r in range(2,16): a(f"v_add_f32 v{M}, v{M}, v{SA+r}")
    a(f"v_mov_b32 v{M2}, v{M}")
    a("s_nop 1")
    a(f"v_permlane32_swap_b32 v{M}, v{M2}")
    a("s_nop 1")
    a(f"v_add_f32 v{M}, v{M}, v{M2}")
    a(f"v_rcp_f32 v{M}, v{M}")
    a("s_nop 0")
    for r in range(16): a(f"v_mul_f32 v{SA+r}, v{SA+r}, v{M}")
    PX=QB; PY=QB+4
    for k,r in enumerate([0,2,8,10]): a(f"v_cvt_pk_bf16_f32 v{PX+k}, v{SA+r}, v{SA+r+1}")
    for k,r in enumerate([4,6,12,14]): a(f"v_cvt_pk_bf16_f32 v{PY+k}, v{SA+r}, v{SA+r+1}")
    a.vmop(f"buffer_store_dwordx4 v[{PX}:{PX+3}], v{T}, s[{S_WS}:{S_WS+3}], s{S_SOP} offen sc1", "Pst")
    a.vmop(f"buffer_store_dwordx4 v[{PY}:{PY+3}], v{T}, s[{S_WS}:{S_WS+3}], s{S_SOP} offen offset:512 sc1", "Pst")

    def flag_store(tagname):
        a(f"v_mov_b32 v{T+8}, s{S_TAG}")
        a(f"v_mov_b32 v{T+9}, 0")
        a("s_mov_b64 exec, 1")
        a.vmop(f"buffer_store_dword v{T+8}, v{T+9}, s[{S_WS}:{S_WS+3}], s{S_T2} offen sc1", tagname)
        a("s_mov_b64 exec, -1")
    def spin(lbl, addr, tag, first_loaded):
        a(f"s_mov_b32 s{S_CNT}, 0")
        if first_loaded: a(f"s_branch {lbl}_chk")
        a.label(f"{lbl}_poll")
        a(f"buffer_load_dword v{T+7}, v{addr}, s[{S_WS}:{S_WS+3}], 0 offen sc1")
        a("s_waitcnt vmcnt(0)")
        a.label(f"{lbl}_chk")
        a(f"v_cmp_ne_u32 vcc, v{T+7}, v{tag}")
        a(f"s_add_u32 s{S_CNT}, s{S_CNT}, 1")
        a(f"s_cmp_ge_u32 s{S_CNT}, {SPIN_MAX}")
        a(f"s_cbranch_scc1 {lbl}_done")
        a("s_nop 1")
        a(f"s_cbranch_vccnz {lbl}_poll")
        a.label(f"{lbl}_done")

    def rdW(slot, t, ks):
        ao = AO if slot == 1 else AO+1
        for u in range(2):
            a(f"ds_read_b64_tr_b16 a[{BF+4*ks+2*u}:{BF+4*ks+2*u+1}], v{ao} offset:{ks*9216+u*2304+t*32}")
    def pkreg(u, t): return (STASH+12*t+4*u) if u < 3 else (PK+4*(t&1))
    def outreg(it, t): return RB + 12*t + 4*it
    def cvt(u, t):
        w = VW+8*(t&1); p = pkreg(u, t)
        for k in range(4): a(f"v_cvt_pk_bf16_f32 v{p+k}, v{w+2*k}, v{w+2*k+1}")
    def pv(u, t):
        p = pkreg(u, t)
        for it in range(2):
            o = outreg(it, t)
            c = "0" if u == 0 else f"v[{o}:{o+3}]"
            a(f"v_mfma_f32_16x16x32_bf16 v[{o}:{o+3}], v[{p}:{p+3}], a[{PF+8*u+4*it}:{PF+8*u+4*it+3}], {c}")
    S_PW = S_SOX; S_PW1 = S_SOQ
    def out_pack_store(tp):
        for it in range(2):
            so = S_PW if it == 0 else S_PW1
            if tp < 4:
                d = RB + 12*(2*tp+it) + 8
                for h in range(2):
                    o = outreg(it, 2*tp+h)
                    a(f"v_cvt_pk_bf16_f32 v{d+2*h}, v{o}, v{o+1}")
                    a(f"v_cvt_pk_bf16_f32 v{d+2*h+1}, v{o+2}, v{o+3}")
                a.vmop(f"buffer_store_dwordx4 v[{d}:{d+3}], v{VL}, s[{S_WS}:{S_WS+3}], s{so} offen offset:{1024*tp} sc1", "part")
            else:
                d = RB + 12*8 + 8 + 2*it
                o = outreg(it, 8)
                a(f"v_cvt_pk_bf16_f32 v{d}, v{o}, v{o+1}")
                a(f"v_cvt_pk_bf16_f32 v{d+1}, v{o+2}, v{o+3}")
                a.vmop(f"buffer_store_dwordx2 v[{d}:{d+1}], v{T+6}, s[{S_WS}:{S_WS+3}], s{so} offen sc1", "part")
    for s in range(10, 18):
        u = (s-10)>>1; slot = s%4
        if s == 11:
            a(f"s_lshl_b32 s{S_T2}, s{S_PG}, 2")
            a(f"s_add_u32 s{S_T2}, s{S_T2}, s{S_W}")
            a(f"s_lshl_b32 s{S_T2}, s{S_T2}, 4")
            a(f"s_add_u32 s{S_T2}, s{S_T2}, s{S_CP}")
            a(f"s_lshl_b32 s{S_T2}, s{S_T2}, 2")
            a(f"s_add_u32 s{S_T2}, s{S_T2}, {FP_BASE}")
        a("s_barrier")
        a.stamp()
        if not s&1:
            v_reads(slot)
            if s == 12:
                a.wait_vm("Pst")
                flag_store("Pflag")
            if s == 14:
                a.wait_vm("poll")
                spin("L_pw", FPA, TAGP, True)
                for uu in range(4):
                    for it in range(2):
                        a.vmop(f"buffer_load_dwordx4 a[{PF+8*uu+4*it}:{PF+8*uu+4*it+3}], v{VL}, s[{S_WS}:{S_WS+3}], s{S_SPU[uu]} offen offset:{1024*it} sc1", "Pld")
            if s == 16:
                a(f"s_lshl_b32 s{S_T0}, s{S_RG}, 2")
                a(f"s_add_u32 s{S_T0}, s{S_T0}, s{S_W}")
                a(f"s_lshl_b32 s{S_T0}, s{S_T0}, 4")
                a(f"s_add_u32 s{S_T0}, s{S_T0}, s{S_SPLIT}")
                a(f"s_mul_i32 s{S_PW}, s{S_T0}, 4608")
                a(f"s_add_u32 s{S_PW}, s{S_PW}, {PART_BASE}")
                a(f"s_add_u32 s{S_PW1}, s{S_PW}, {8*4608}")
                a(f"v_lshlrev_b32 v{T+6}, 3, v1")
                a(f"v_add_u32 v{T+6}, 4096, v{T+6}")
                a.wait_vm("Pld")
                for t in range(9):
                    for uu in range(3): pv(uu, t)
            a("s_waitcnt lgkmcnt(0)")
            continue
        for ks in range(4): rdW(slot, 0, ks)
        for t in range(9):
            for ks in range(4):
                n = 6 if t < 8 else 6-2*ks
                a(f"s_waitcnt lgkmcnt({n})")
                for st in range(2):
                    w = VW+8*(t&1)+4*st
                    c = "0" if ks == 0 else f"v[{w}:{w+3}]"
                    a(f"v_mfma_f32_16x16x32_bf16 v[{w}:{w+3}], a[{VF+16*st+4*ks}:{VF+16*st+4*ks+3}], a[{BF+4*ks}:{BF+4*ks+3}], {c}")
                if t < 8: rdW(slot, t+1, ks)
                if ks == 2 and t > 0: cvt(u, t-1)
                if u == 3 and ks == 1 and t >= 3 and (t&1):
                    out_pack_store((t-3)>>1)
                if s == 13 and t == 5 and ks == 0:
                    a.vmop(f"buffer_load_dword v{T+7}, v{FPA}, s[{S_WS}:{S_WS+3}], 0 offen sc1", "poll")
            if u == 3 and t > 0: pv(3, t-1)
        a("s_nop 7")
        cvt(u, 8)
        if u == 3:
            a("s_nop 1")
            pv(3, 8)
            a("s_nop 3")
            out_pack_store(3)
            a("s_nop 1")
            out_pack_store(4)
    a(f"s_lshl_b32 s{S_T2}, s{S_RG}, 2")
    a(f"s_add_u32 s{S_T2}, s{S_T2}, s{S_W}")
    a(f"s_lshl_b32 s{S_T2}, s{S_T2}, 4")
    a(f"s_add_u32 s{S_T2}, s{S_T2}, s{S_SPLIT}")
    a(f"s_lshl_b32 s{S_T2}, s{S_T2}, 2")
    a(f"s_add_u32 s{S_T2}, s{S_T2}, {FR_BASE}")
    a.stamp()
    a(f"s_lshl_b32 s{S_T0}, s{S_RG}, 3")
    a(f"s_add_u32 s{S_T0}, s{S_T0}, s{S_SPLIT}")
    a(f"s_mul_i32 s{S_T0}, s{S_T0}, {8*4608}")
    a(f"s_add_u32 s{S_T0}, s{S_T0}, {PART_BASE}")
    a(f"s_lshl_b32 s{S_T1}, s{S_W}, 10")
    a(f"s_add_u32 s{S_T1}, s{S_T1}, s{S_T0}")
    a(f"s_lshl_b32 s{S_T3}, s{S_RB}, 3")
    a(f"s_add_u32 s{S_T3}, s{S_T3}, s{S_SPLIT}")
    a(f"s_mul_i32 s{S_T3}, s{S_T3}, {16*2304}")
    a(f"s_mul_i32 s{S_SOK}, s{S_BR}, 1152")
    a(f"s_add_u32 s{S_T3}, s{S_T3}, s{S_SOK}")
    a(f"s_mul_i32 s{S_SOK}, s{S_CP}, 288")
    a(f"s_add_u32 s{S_T3}, s{S_T3}, s{S_SOK}")
    a(f"v_and_b32 v{T}, 15, v1")
    a(f"v_mul_u32_u24 v{T}, 2304, v{T}")
    a(f"v_lshrrev_b32 v{T+1}, 4, v1")
    a(f"v_lshl_add_u32 v{T+2}, v{T+1}, 3, v{T}")
    a(f"v_bfe_u32 v{T+3}, v1, 4, 1")
    a(f"v_lshl_add_u32 v{T}, v{T+3}, 5, v{T}")
    a(f"v_bfe_u32 v{T+3}, v1, 5, 1")
    a(f"v_lshl_add_u32 v{T}, v{T+3}, 4, v{T}")
    a(f"s_lshl_b32 s{S_SOK}, s{S_W}, 6")
    a(f"v_add_u32 v{T}, s{S_SOK}, v{T}")
    a(f"s_mov_b32 s{S_SOV[0]}, 0x3f80")
    a(f"s_mov_b32 s{S_SOV[1]}, 0x3f800000")
    a("s_waitcnt vmcnt(0)")
    flag_store("Rflag")
    a.stamp()
    spin("L_rw", FRA, TAGR, False)
    a.stamp()
    LD=RB; L8=RB+36; RA=RB+56
    for j in range(8):
        a(f"buffer_load_dwordx4 v[{LD+4*j}:{LD+4*j+3}], v{VL}, s[{S_WS}:{S_WS+3}], s{S_T1} offen sc1")
        if j < 7: a(f"s_add_u32 s{S_T1}, s{S_T1}, 4608")
    a(f"s_cmp_lg_u32 s{S_W}, 3")
    a("s_cbranch_scc1 L_no8")
    for j in range(8):
        a(f"buffer_load_dwordx2 v[{L8+2*j}:{L8+2*j+1}], v{T+6}, s[{S_WS}:{S_WS+3}], s{S_T0} offen sc1")
        if j < 7: a(f"s_add_u32 s{S_T0}, s{S_T0}, 4608")
    for r in range(4): a(f"v_mov_b32 v{RA+8+r}, 0")
    a("s_waitcnt vmcnt(0)")
    for j in range(8):
        for d in range(2):
            a(f"v_dot2c_f32_bf16 v{RA+8+2*d}, s{S_SOV[0]}, v{L8+2*j+d}")
            a(f"v_dot2c_f32_bf16 v{RA+8+2*d+1}, s{S_SOV[1]}, v{L8+2*j+d}")
    a("s_nop 2")
    a(f"v_cvt_pk_bf16_f32 v{L8}, v{RA+8}, v{RA+9}")
    a(f"v_cvt_pk_bf16_f32 v{L8+1}, v{RA+10}, v{RA+11}")
    a(f"buffer_store_dwordx2 v[{L8}:{L8+1}], v{T+2}, s[{S_OUT}:{S_OUT+3}], s{S_T3} offen offset:256")
    a.label("L_no8")
    for r in range(8): a(f"v_mov_b32 v{RA+r}, 0")
    for j in range(8):
        a(f"s_waitcnt vmcnt({7-j})")
        for d in range(4):
            a(f"v_dot2c_f32_bf16 v{RA+2*d}, s{S_SOV[0]}, v{LD+4*j+d}")
            a(f"v_dot2c_f32_bf16 v{RA+2*d+1}, s{S_SOV[1]}, v{LD+4*j+d}")
    a("s_nop 2")
    for d in range(4): a(f"v_cvt_pk_bf16_f32 v{LD+d}, v{RA+2*d}, v{RA+2*d+1}")
    a("s_nop 1")
    a(f"v_permlane16_swap_b32 v{LD}, v{LD+2}")
    a(f"v_permlane16_swap_b32 v{LD+1}, v{LD+3}")
    a("s_nop 1")
    a(f"buffer_store_dwordx4 v[{LD}:{LD+3}], v{T}, s[{S_OUT}:{S_OUT+3}], s{S_T3} offen")
    a(f"s_cmp_lg_u32 s{S_W}, 0")
    a("s_cbranch_scc1 L_noe")
    a(f"s_lshl_b32 s{S_T2}, s2, 2")
    a(f"s_add_u32 s{S_T2}, s{S_T2}, {E_BASE}")
    flag_store("Eup")
    a.label("L_noe")
    stamp_out(a, 0)

def gen(a):
    kname = NAME + "_kernel"
    a.raw(f".globl {kname}"); a.raw(".p2align 8"); a.raw(f".type {kname},@function"); a.label(kname)
    a("s_cmp_ge_u32 s2, 256")
    a("s_cbranch_scc1 L_end")
    a("s_load_dwordx16 s[36:51], s[0:1], 0")
    a("s_load_dwordx8 s[52:59], s[0:1], 64")
    a("s_load_dwordx2 s[60:61], s[0:1], 96")
    if OPT["stamp"]:
        a(f"v_mov_b32 v{V_STAMP}, 0")
        a.stamp()
    a("v_lshrrev_b32 v1, 6, v0")
    a(f"s_and_b32 s{S_T0}, s2, 7")
    a(f"v_readfirstlane_b32 s{S_T1}, v1")
    a("v_and_b32 v1, 63, v0")
    a(f"s_lshr_b32 s{S_BR}, s{S_T0}, 2")
    a(f"s_and_b32 s{S_HQ}, s{S_T0}, 3")
    a(f"s_lshr_b32 s{S_T0}, s2, 3")
    a(f"s_and_b32 s{S_RB}, s{S_T0}, 3")
    a(f"s_lshr_b32 s{S_HL}, s{S_T0}, 2")
    a(f"s_and_b32 s{S_W}, s{S_T1}, 3")
    a(f"s_lshl_b32 s{S_H}, s{S_HQ}, 3")
    a(f"s_add_u32 s{S_H}, s{S_H}, s{S_HL}")
    a(f"s_lshl_b32 s{S_B}, s{S_RB}, 2")
    a(f"s_add_u32 s{S_B}, s{S_B}, s{S_W}")
    a(f"s_and_b32 s{S_CP}, s{S_HL}, 3")
    a(f"s_lshr_b32 s{S_KQ}, s{S_HL}, 2")
    a(f"s_lshl_b32 s{S_SPLIT}, s{S_HQ}, 1")
    a(f"s_add_u32 s{S_SPLIT}, s{S_SPLIT}, s{S_KQ}")
    a(f"s_lshl_b32 s{S_LW4}, s{S_W}, 12")
    a(f"s_lshl_b32 s{S_LW8}, s{S_W}, 13")
    a(f"s_cmp_lt_u32 s{S_T1}, 4")
    a("s_cbranch_scc1 L_compute")
    gen_loader(a)
    a.raw(".p2align 6")
    a.label("L_compute")
    gen_compute(a)
    a.label("L_end")
    a("s_endpgm")

def main():
    a = Asm()
    hdr = open("cdna_kernels/%s.s.ref" % NAME).read().split("; Override")[0]
    a.raw(hdr.rstrip())
    a.raw(f"; @launch grid=(256,1,1) block=(512,1,1) lds={4*SLOT}")
    a.raw('.amdgcn_target "amdgcn-amd-amdhsa--gfx950"')
    a.raw(".text")
    gen(a)
    a.raw('.section .rodata,"a"')
    a.raw(".p2align 6")
    a.raw(f".amdhsa_kernel {NAME}_kernel")
    a.raw(f"  .amdhsa_next_free_vgpr {NARCH+NACC}")
    a.raw(f"  .amdhsa_next_free_sgpr 100")
    a.raw(f"  .amdhsa_accum_offset {NARCH}")
    a.raw("  .amdhsa_group_segment_fixed_size 0")
    a.raw("  .amdhsa_kernarg_size 104")
    a.raw("  .amdhsa_user_sgpr_count 2")
    a.raw("  .amdhsa_user_sgpr_kernarg_segment_ptr 1")
    a.raw("  .amdhsa_system_sgpr_workgroup_id_x 1")
    a.raw(".end_amdhsa_kernel")
    open(sys.argv[1], "w").write(a.text())
main()
```

```python
import sys, os
NAME = "concat_heads__gqa_block_cached__mha_block_cached__near_ridge"
OPT = dict(stamp=0, rot1=1, rot2=3, ntx=0, ntq=0, ntk=0, ntv=0, nto=0, prio=1, rpos=4, kpos=3, nbf=6,
           nodma=0, nomfma=0, nolds=0, cyc=0, epos=1, cpf=1, first=0, mbox=1, gsl=4, tlb=1, midw=1)
for arg in sys.argv[2:]:
    k, v = arg.split("="); assert k in OPT, k; OPT[k] = int(v)

class Asm:
    def __init__(self):
        self.L=[]; self.vm=[]; self.nst=0; self.lq=[]
    def __call__(self, s):
        if OPT["nomfma"] and s.startswith("v_mfma"): return
        if OPT["nolds"] and s.startswith("ds_read"): return
        if OPT["nodma"] and s.endswith(" lds"): return
        self.L.append("    "+s)
    def label(self, n): self.L.append(n+":")
    def raw(self, s): self.L.append(s)
    def text(self): return "\n".join(self.L)+"\n"
    def vmop(self, s, tag): self(s); self.vm.append(tag)
    def wait_vm(self, *tags):
        idx = max((i for i,t in enumerate(self.vm) if t in tags), default=-1)
        assert idx >= 0, tags
        n = len(self.vm)-1-idx
        assert n <= 63
        self(f"s_waitcnt vmcnt({n})")
    def ds(self, s, tag): self(s); self.lq.append(tag)
    def wait_lg(self, *tags):
        idx = max((i for i,t in enumerate(self.lq) if t in tags), default=-1)
        if idx < 0: return
        n = min(15, len(self.lq)-1-idx)
        self(f"s_waitcnt lgkmcnt({n})")
        self.lq = self.lq[len(self.lq)-n:] if n else []
    def wait_lg0(self):
        self("s_waitcnt lgkmcnt(0)"); self.lq = []
    def stamp(self):
        if not OPT["stamp"]: return
        self.lq = []
        self("s_memtime s[96:97]" if OPT["cyc"] else "s_memrealtime s[96:97]")
        self("s_waitcnt lgkmcnt(0)")
        self(f"v_writelane_b32 v{V_STAMP}, s96, {self.nst}")
        self.nst += 1

SLOT = 36864
MBOX = 4*SLOT
LDS_BYTES = 4*SLOT + 256
KPOS = OPT["kpos"]
def pos_s1(t): return t if t < KPOS else t+1
def base(pos): return (pos % 4)*SLOT
P_BASE = 0
SLICE = 4608
PART_BASE = 2<<20
E_BASE = 15<<20
FP_BASE = E_BASE + 4096
FR_BASE = 14<<20
STAMP_BASE = 13<<20
STAMP_BASE = 16<<20
WS_USED = 17<<20
LCG_A = 1664525; LCG_C = 1013904223
SPIN_MAX = 1<<15

S_X=8; S_WQ=12; S_K=16; S_WS=20; S_V=24; S_WO=28; S_OUT=32
S_W=62; S_BR=63; S_HQ=64; S_RB=65; S_HL=66; S_H=67; S_B=68; S_SPLIT=69
S_T0=70; S_T1=71; S_T2=72; S_T3=73
S_SOX=74; S_SOQ=75; S_SOK=76; S_C=77; S_SOP=78; S_LWO=79; S_CP=80; S_KQ=81; S_LW4=82; S_LW8=83
S_SOV=[84,85,86,87]; S_SOW=[88,89,90,91]; S_SPU=[92,93,94,95]
S_TAG=3; S_CNT=4; S_CH=5; S_RG=6; S_PG=7
S_TJ=36
S_FR=44; S_RD=45; S_OA=46; S_ONE=47; S_ONEH=48; S_PW=49; S_PW1=50
AX=2; AQ=10; VW=2; PK=18; T=26; AV=36; AO=40; VL=42; TAGP=43; TAGR=44; FPA=45; VTG=46; V_STAMP=47
RB=48
ACC=RB; QB=RB+64; SA=RB+96
STASH=RB+12
NARCH=168
VX=2; VQ=6; VK=10; VO=14; FRA=45
NBF=OPT["nbf"]
FA=0; FB=16; KF=32; PF=0; BF=32; VF=32+4*NBF; NACC=VF+32

def nt(k): return " nt" if OPT[k] else ""

def srd(a, b, lo, hi, nrec):
    a(f"s_mov_b32 s{b}, s{lo}")
    a(f"s_and_b32 s{b+1}, s{hi}, 0xffff")
    a(f"s_mov_b32 s{b+2}, {nrec}")
    a(f"s_mov_b32 s{b+3}, 0x20000")

def kv_soffset(a, dst, head_s):
    a(f"s_lshl_b32 s{S_T0}, s{S_B}, 4")
    a(f"s_lshr_b32 s{S_T1}, s{head_s}, 1")
    a(f"s_add_u32 s{S_T0}, s{S_T0}, s{S_T1}")
    a(f"s_lshl_b32 s{S_T1}, s{S_B}, 5")
    a(f"s_add_u32 s{S_T1}, s{S_T1}, s{head_s}")
    a(f"s_cmp_eq_u32 s{S_BR}, 0")
    a(f"s_cselect_b32 s{dst}, s{S_T0}, s{S_T1}")
    a(f"s_lshl_b32 s{dst}, s{dst}, 13")

def head_u(a, u):
    ORD2 = {0: [[0,1,2,3]]*4, 1: [[0,1,2,3],[1,2,3,0],[2,3,0,1],[3,0,1,2]],
            2: [[0,1,2,3],[1,0,2,3],[0,2,1,3],[0,1,3,2]],
            3: [[0,1,2,3],[1,0,3,2],[0,1,2,3],[1,0,3,2]],
            4: [[0,2,1,3],[1,0,2,3],[0,1,3,2],[1,3,0,2]]}[OPT["rot2"]]
    tab = sum(ORD2[j][u] << (2*j) for j in range(4))
    a(f"s_lshl_b32 s{S_T3}, s{S_SPLIT}, 2")
    if OPT["rot2"]:
        a(f"s_add_u32 s{S_T2}, s{S_RB}, s{S_CP}")
        a(f"s_and_b32 s{S_T2}, s{S_T2}, 3")
        a(f"s_lshl_b32 s{S_T2}, s{S_T2}, 1")
        a(f"s_lshr_b32 s{S_T2}, {tab}, s{S_T2}")
        a(f"s_and_b32 s{S_T2}, s{S_T2}, 3")
        a(f"s_add_u32 s{S_T3}, s{S_T3}, s{S_T2}")
    elif u: a(f"s_add_u32 s{S_T3}, s{S_T3}, {u}")

def rgroup(a):
    a(f"s_lshl_b32 s{S_RG}, s{S_BR}, 2")
    a(f"s_add_u32 s{S_RG}, s{S_RG}, s{S_RB}")
    a(f"s_lshl_b32 s{S_RG}, s{S_RG}, 2")
    a(f"s_add_u32 s{S_RG}, s{S_RG}, s{S_CP}")

def e_addr_r(a, dst, t):
    a(f"s_and_b32 s{S_T0}, s2, 0x7c")
    a(f"v_bfe_u32 v{dst}, v1, 1, 2")
    a(f"v_and_b32 v{t}, 1, v1")
    a(f"v_lshl_add_u32 v{dst}, v{t}, 7, v{dst}")
    a(f"v_add_u32 v{dst}, s{S_T0}, v{dst}")
    a(f"v_lshlrev_b32 v{dst}, 2, v{dst}")

def lcg(a, v):
    a(f"s_mov_b32 s{S_T0}, {LCG_A}")
    a(f"v_mul_lo_u32 v{v}, v{v}, s{S_T0}")
    a(f"v_add_u32 v{v}, {LCG_C}, v{v}")

def red_scalars(a):
    a(f"s_lshl_b32 s{S_T0}, s{S_RG}, 3")
    a(f"s_add_u32 s{S_T0}, s{S_T0}, s{S_SPLIT}")
    a(f"s_mul_i32 s{S_RD}, s{S_T0}, {8*SLICE}")
    a(f"s_add_u32 s{S_RD}, s{S_RD}, {PART_BASE}")
    a(f"s_lshl_b32 s{S_T0}, s{S_W}, 10")
    a(f"s_add_u32 s{S_RD}, s{S_RD}, s{S_T0}")
    a(f"s_lshl_b32 s{S_OA}, s{S_RB}, 3")
    a(f"s_add_u32 s{S_OA}, s{S_OA}, s{S_SPLIT}")
    a(f"s_mul_i32 s{S_OA}, s{S_OA}, {16*2304}")
    a(f"s_mul_i32 s{S_T0}, s{S_BR}, 1152")
    a(f"s_add_u32 s{S_OA}, s{S_OA}, s{S_T0}")
    a(f"s_mul_i32 s{S_T0}, s{S_CP}, 288")
    a(f"s_add_u32 s{S_OA}, s{S_OA}, s{S_T0}")
    a(f"s_mov_b32 s{S_ONE}, 0x3f80")
    a(f"s_mov_b32 s{S_ONEH}, 0x3f800000")

def stamp_out(a, widx):
    if not OPT["stamp"]: return
    a("s_waitcnt vmcnt(0)")
    a.stamp()
    a(f"s_lshl_b32 s{S_T2}, s2, 3")
    a(f"s_add_u32 s{S_T2}, s{S_T2}, s{S_W}")
    if widx: a(f"s_add_u32 s{S_T2}, s{S_T2}, 4")
    a(f"s_lshl_b32 s{S_T2}, s{S_T2}, 8")
    a(f"s_add_u32 s{S_T2}, s{S_T2}, {STAMP_BASE}")
    a(f"v_lshlrev_b32 v{T}, 2, v1")
    a(f"buffer_store_dword v{V_STAMP}, v{T}, s[{S_WS}:{S_WS+3}], s{S_T2} offen")

def spin(a, lbl, addr, tag, first_loaded, sleep=False):
    a(f"s_mov_b32 s{S_CNT}, 0")
    if first_loaded: a(f"s_branch {lbl}_chk")
    a.label(f"{lbl}_poll")
    if sleep: a(f"s_sleep {sleep}")
    a(f"buffer_load_dword v{T+7}, v{addr}, s[{S_WS}:{S_WS+3}], 0 offen sc1")
    a("s_waitcnt vmcnt(0)")
    a.label(f"{lbl}_chk")
    a(f"v_cmp_ne_u32 vcc, v{T+7}, v{tag}")
    a(f"s_add_u32 s{S_CNT}, s{S_CNT}, 1")
    a(f"s_cmp_ge_u32 s{S_CNT}, {SPIN_MAX}")
    a(f"s_cbranch_scc1 {lbl}_done")
    a("s_nop 1")
    a(f"s_cbranch_vccnz {lbl}_poll")
    a.label(f"{lbl}_done")

def schedule():
    seq = []
    nxt = 2
    def free_upto(p):
        nonlocal nxt
        r = list(range(nxt, min(p+4, 17)+1)); nxt = max(nxt, min(p+4, 17)+1); return r
    for t in range(9):
        need = [pos_s1(t)] + ([KPOS] if t == KPOS else [])
        cons = pos_s1(t-1) if t > 0 else -1
        if t == KPOS: cons = KPOS-1
        seq.append((need, free_upto(cons)))
    seq.append(([], free_upto(9)))
    seq.append(([10, 11], []))
    seq.append(([], free_upto(10)))
    seq.append(([12, 13], free_upto(11)))
    seq.append(([], free_upto(12)))
    seq.append(([14, 15], free_upto(13)))
    seq.append(([16, 17], []))
    return seq

def gen_loader(a):
    a.vm = []; a.nst = 1
    if OPT["prio"]: a(f"s_setprio {OPT['prio']}")
    a(f"v_lshrrev_b32 v{T+1}, 4, v1")
    a(f"s_lshl_b32 s{S_T0}, s{S_W}, 4")
    a(f"v_add_u32 v{T+3}, s{S_T0}, v{T+1}")
    a(f"v_lshlrev_b32 v{T+3}, 13, v{T+3}")
    a(f"v_and_b32 v{T+4}, 15, v1")
    a(f"v_lshlrev_b32 v{T+5}, 2, v{T+1}")
    a(f"v_xor_b32 v{T+4}, v{T+4}, v{T+5}")
    a(f"v_lshl_add_u32 v{VQ}, v{T+4}, 4, v{T+3}")
    for j in range(1,4):
        a(f"v_add_u32 v{VQ+j}, {31744*j}, v{VQ}")
    a(f"v_lshrrev_b32 v{T}, 3, v1")
    a(f"v_and_b32 v{T+2}, 7, v1")
    a(f"s_lshl_b32 s{S_T0}, s{S_W}, 5")
    a(f"v_add_u32 v{T+3}, s{S_T0}, v{T}")
    a(f"v_mul_u32_u24 v{T+3}, 1152, v{T+3}")
    a(f"v_xor_b32 v{T+2}, v{T+2}, v{T+1}")
    a(f"v_lshl_add_u32 v{VX}, v{T+2}, 4, v{T+3}")
    a(f"v_xor_b32 v{T+2}, 4, v{T+2}")
    a(f"v_lshl_add_u32 v{VX+1}, v{T+2}, 4, v{T+3}")
    a(f"v_add_u32 v{VX+1}, 8192, v{VX+1}")
    a(f"v_add_u32 v{VX+2}, 16384, v{VX}")
    a(f"v_add_u32 v{VX+3}, 16384, v{VX+1}")
    a(f"s_mul_i32 s{S_SOX}, s{S_RB}, 147456")
    a(f"s_lshl_b32 s{S_SOQ}, s{S_H}, 8")
    ORD1 = {0: [[0,1,2,3,4,5,6,7,8]]*4,
            1: [[0,1,4,2,3,5,8,6,7],[1,0,2,5,3,4,6,7,8],[2,0,1,3,6,4,5,7,8],[0,3,1,2,4,7,5,6,8]],
            2: [[0,1,2,4,3,5,6,8,7],[1,0,2,3,5,4,6,7,8],[0,2,1,3,4,6,5,7,8],[0,1,3,2,4,5,7,6,8]],
            3: [[0,4,1,2,3,8,5,6,7],[1,0,5,2,3,4,6,7,8],[2,0,1,6,3,4,5,7,8],[3,0,1,2,7,4,5,6,8]]}[OPT["rot1"]]
    pack = lambda o: sum(c << (4*i) for i, c in enumerate(o))
    a(f"s_sub_u32 s{S_T0}, s{S_RB}, s{S_HL}")
    a(f"s_and_b32 s{S_T0}, s{S_T0}, 3")
    a(f"s_mov_b32 s98, {pack(ORD1[0]) & 0xffffffff}")
    a(f"s_mov_b32 s99, {pack(ORD1[0]) >> 32}")
    for j in range(1, 4):
        if ORD1[j] != ORD1[0]:
            a(f"s_cmp_eq_u32 s{S_T0}, {j}")
            a(f"s_cselect_b32 s98, {pack(ORD1[j]) & 0xffffffff}, s98")
            a(f"s_cselect_b32 s99, {pack(ORD1[j]) >> 32}, s99")
    for b_, n_ in ((S_X, 589824), (S_WQ, 4718592)):
        a(f"s_mov_b32 s{b_+2}, {n_}")
        a(f"s_mov_b32 s{b_+3}, 0x20000")
    a(f"s_cmp_eq_u32 s{S_BR}, 0")
    a("s_waitcnt lgkmcnt(0)")
    a(f"s_cselect_b32 s{S_WQ}, s42, s52")
    a(f"s_cselect_b32 s{S_WQ+1}, s43, s53")
    a(f"s_cselect_b32 s{S_X}, s36, s46")
    a(f"s_cselect_b32 s{S_X+1}, s37, s47")
    a(f"s_and_b32 s{S_WQ+1}, s{S_WQ+1}, 0xffff")
    a(f"s_and_b32 s{S_X+1}, s{S_X+1}, 0xffff")
    a.stamp()
    def dma_s1(t):
        p = pos_s1(t)
        a(f"s_bfe_u32 s{S_CH}, s{98 + (t>>3)}, {(4 << 16) | (4*(t&7))}")
        a(f"s_add_u32 m0, s{S_LW4}, {base(p)+16384}")
        a(f"s_lshl_b32 s{S_T2}, s{S_CH}, 19")
        a(f"s_add_u32 s{S_T2}, s{S_T2}, s{S_SOQ}")
        for j in range(4):
            a.vmop(f"buffer_load_dwordx4 v{VQ+j}, s[{S_WQ}:{S_WQ+3}], s{S_T2} offen offset:{1024*j}{nt('ntq')} lds", f"p{p}")
        a(f"s_add_u32 m0, s{S_LW4}, {base(p)}")
        a(f"s_lshl_b32 s{S_T2}, s{S_CH}, 7")
        a(f"s_add_u32 s{S_T2}, s{S_T2}, s{S_SOX}")
        for j in range(4):
            a.vmop(f"buffer_load_dwordx4 v{VX+j}, s[{S_X}:{S_X+3}], s{S_T2} offen offset:{1024*j}{nt('ntx')} lds", f"p{p}")
    def dma_kv(srdb, soff, p, ntk):
        for half in range(2):
            a(f"s_add_u32 m0, s{S_LW8}, {base(p) + half*4096}")
            if half == 0: a(f"s_mov_b32 s{S_T2}, s{soff}")
            else: a(f"s_add_u32 s{S_T2}, s{soff}, 4096")
            for j in range(4):
                a.vmop(f"buffer_load_dwordx4 v{VK+j}, s[{srdb}:{srdb+3}], s{S_T2} offen offset:{1024*j}{nt(ntk)} lds", f"p{p}")
    def dma_wo(u, p):
        for j in range(9):
            if j%4 == 0:
                a(f"s_add_u32 m0, s{S_LWO}, {base(p) + 4096*(j>>2)}")
                a("s_nop 0")
            a.vmop(f"buffer_load_dwordx4 v{VO+j}, s[{S_WO}:{S_WO+3}], s{S_SOW[u]} offen offset:{1024*(j&3)}{nt('nto')} lds", f"p{p}")
    def dma_item(p):
        if p == KPOS: dma_kv(S_K, S_SOK, p, "ntk")
        elif p < 10: dma_s1(p if p < KPOS else p-1)
        else:
            u = (p-10)>>1
            if p & 1: dma_wo(u, p)
            else: dma_kv(S_V, S_SOV[u], p, "ntv")
    def setup_kv():
        a(f"s_mov_b32 s{S_T3}, 4194304")
        a(f"s_cmp_eq_u32 s{S_BR}, 0")
        for b_, idx, na in ((S_K,1,2097152),(S_V,2,2097152),(S_WO,4,None)):
            la = 36+2*idx; lb = 46+2*idx
            a(f"s_cselect_b32 s{b_}, s{la}, s{lb}")
            a(f"s_cselect_b32 s{b_+1}, s{la+1}, s{lb+1}")
            if na: a(f"s_cselect_b32 s{b_+2}, {na}, s{S_T3}")
            else: a(f"s_mov_b32 s{b_+2}, 4718592")
            a(f"s_mov_b32 s{b_+3}, 0x20000")
        for b_ in (S_K, S_V, S_WO): a(f"s_and_b32 s{b_+1}, s{b_+1}, 0xffff")
        a(f"v_lshrrev_b32 v{T}, 4, v1")
        a(f"v_and_b32 v{T+1}, 15, v1")
        for j in range(4):
            a(f"v_add_u32 v{VK+j}, {4*j}, v{T}")
            a(f"v_xor_b32 v{VK+j}, v{VK+j}, v{T+1}")
            a(f"v_lshlrev_b32 v{VK+j}, 4, v{VK+j}")
            a(f"v_lshl_add_u32 v{VK+j}, v{T}, 8, v{VK+j}")
        kv_soffset(a, S_SOK, S_H)
    def setup_vo(js):
        a(f"s_movk_i32 s{S_T0}, 3641")
        for j in js:
            a(f"v_add_u32 v{T}, {64*j}, v1")
            a(f"v_mul_u32_u24 v{T+1}, s{S_T0}, v{T}")
            a(f"v_lshrrev_b32 v{T+1}, 16, v{T+1}")
            a(f"v_mul_u32_u24 v{T+2}, 18, v{T+1}")
            a(f"v_sub_u32 v{T+2}, v{T}, v{T+2}")
            a(f"v_and_b32 v{T+3}, 0x13, v{T+1}")
            a(f"v_bfe_u32 v{T+4}, v{T+1}, 2, 1")
            a(f"v_lshl_add_u32 v{T+3}, v{T+4}, 3, v{T+3}")
            a(f"v_bfe_u32 v{T+4}, v{T+1}, 3, 1")
            a(f"v_lshl_add_u32 v{T+3}, v{T+4}, 2, v{T+3}")
            a(f"v_mul_u32_u24 v{T+3}, 1152, v{T+3}")
            a(f"v_lshl_add_u32 v{VO+j}, v{T+2}, 4, v{T+3}")
            if j&3: a(f"v_subrev_u32 v{VO+j}, {1024*(j&3)}, v{VO+j}")
    def setup_heads(us):
        for u in us:
            head_u(a, u)
            a(f"s_lshl_b32 s{S_T2}, s{S_T3}, 2")
            a(f"s_add_u32 s{S_T2}, s{S_T2}, s{S_W}")
            a(f"s_mul_i32 s{S_SOW[u]}, s{S_T2}, {32*1152}")
            a(f"s_mul_i32 s{S_T2}, s{S_CP}, 288")
            a(f"s_add_u32 s{S_SOW[u]}, s{S_SOW[u]}, s{S_T2}")
            kv_soffset(a, S_SOV[u], S_T3)
    def setup_e():
        a(f"v_and_b32 v{T}, 3, v1")
        a(f"v_lshlrev_b32 v{T}, 2, v{T}")
        a(f"v_mov_b32 v{T+1}, 0")
        a(f"ds_write_b32 v{T}, v{T+1} offset:{0}") if False else None
        a(f"v_add_u32 v{T}, {MBOX}, v{T}")
        a(f"ds_write_b32 v{T}, v{T+1}")
        e_addr_r(a, T, T+1)
        a(f"s_mov_b32 s{S_T1}, {E_BASE}")
        a.vmop(f"buffer_load_dword v{TAGR}, v{T}, s[{S_WS}:{S_WS+3}], s{S_T1} offen sc1", "E")
        a("s_waitcnt lgkmcnt(0)")
    def setup_red():
        rgroup(a)
        red_scalars(a)
        lcg(a, TAGR)
        a(f"v_and_b32 v{T}, 7, v1")
        a(f"s_lshl_b32 s{S_T0}, s{S_RG}, 3")
        a(f"s_add_u32 s{S_T1}, s{S_T0}, s{S_SPLIT}")
        a(f"s_lshl_b32 s{S_T1}, s{S_T1}, 2")
        a(f"s_add_u32 s{S_T1}, s{S_T1}, s{S_W}")
        a(f"s_lshl_b32 s{S_T1}, s{S_T1}, 10")
        a(f"s_add_u32 s{S_T1}, s{S_T1}, {FR_BASE}")
        a(f"v_lshl_add_u32 v{FRA}, v{T}, 7, s{S_T1}")
        a(f"s_lshl_b32 s{S_T0}, s{S_T0}, 12")
        a(f"s_lshl_b32 s{S_T1}, s{S_SPLIT}, 7")
        a(f"s_add_u32 s{S_T0}, s{S_T0}, s{S_T1}")
        a(f"s_add_u32 s{S_T0}, s{S_T0}, {FR_BASE}")
        a(f"v_lshl_add_u32 v{VTG}, v{T}, 12, s{S_T0}")
        a(f"v_readlane_b32 s{S_TAG}, v{TAGR}, s{S_SPLIT}")
        a(f"v_lshlrev_b32 v{VL}, 4, v1")
        a(f"v_and_b32 v{T+8}, 15, v1")
        a(f"v_mul_u32_u24 v{T+8}, 2304, v{T+8}")
        a(f"v_bfe_u32 v{T+3}, v1, 4, 1")
        a(f"v_lshl_add_u32 v{T+8}, v{T+3}, 5, v{T+8}")
        a(f"v_bfe_u32 v{T+3}, v1, 5, 1")
        a(f"v_lshl_add_u32 v{T+8}, v{T+3}, 4, v{T+8}")
        a(f"s_lshl_b32 s{S_T0}, s{S_W}, 6")
        a(f"v_add_u32 v{T+8}, s{S_T0}, v{T+8}")
    dma_item(0); dma_item(1)
    setup_kv()
    srd(a, S_WS, 60, 61, WS_USED)
    srd(a, S_OUT, 56, 57, 1179648)
    a.stamp()
    extra = {1: lambda: (setup_e(), setup_heads([0])), 2: lambda: setup_vo([0,1,2]), 3: lambda: setup_vo([3,4,5]), 4: lambda: setup_vo([6,7,8]),
             5: lambda: (a(f"s_mul_i32 s{S_LWO}, s{S_W}, 9216"), setup_heads([1])), 6: lambda: setup_heads([2,3]), 14: setup_red}
    for i,(need,iss) in enumerate(schedule()):
        if need: a.wait_vm(*[f"p{s}" for s in need])
        a("s_barrier")
        for s in iss: dma_item(s)
        if i in extra: extra[i]()
        a.stamp()
    def mb_wait(lbl, addr_v):
        a(f"s_mov_b32 s{S_CNT}, 0")
        a.label(lbl)
        a("s_sleep 1")
        a(f"ds_read_b32 v{T+1}, v{addr_v}")
        a(f"s_add_u32 s{S_CNT}, s{S_CNT}, 1")
        a("s_waitcnt lgkmcnt(0)")
        a(f"v_readfirstlane_b32 s{S_T0}, v{T+1}")
        a(f"s_cmp_ge_u32 s{S_CNT}, {SPIN_MAX*16}")
        a(f"s_cbranch_scc1 {lbl}_done")
        a(f"s_cmp_lt_u32 s{S_T0}, 4")
        a(f"s_cbranch_scc1 {lbl}")
        a.label(f"{lbl}_done")
    a(f"s_cmp_lg_u32 s{S_W}, 3")
    a("s_cbranch_scc1 L_lred")
    a(f"v_mov_b32 v{T+2}, s{S_TAG}")
    a("s_mov_b64 exec, 0xff")
    for tp in range(4):
        a(f"v_mov_b32 v{T}, {MBOX+4*tp}")
        mb_wait(f"L_pb{tp}", T)
        a(f"buffer_store_dword v{T+2}, v{VTG}, s[{S_WS}:{S_WS+3}], 0 offen offset:{1024*tp} sc1")
    a("s_mov_b64 exec, -1")
    a("s_branch L_ldone")
    a.label("L_lred")
    LD=RB; RA=RB+32
    for r in range(8): a(f"v_mov_b32 v{RA+r}, 0")
    a(f"s_lshl_b32 s{S_T0}, s{S_W}, 2")
    a(f"s_add_u32 s{S_T0}, s{S_T0}, {MBOX}")
    a(f"v_mov_b32 v{T}, s{S_T0}")
    mb_wait("L_mb", T)
    spin(a, "L_rw", FRA, TAGR, False, OPT["gsl"])
    a.stamp()
    for j in range(8):
        a(f"buffer_load_dwordx4 v[{LD+4*j}:{LD+4*j+3}], v{VL}, s[{S_WS}:{S_WS+3}], s{S_RD} offen sc1")
        if j < 7: a(f"s_add_u32 s{S_RD}, s{S_RD}, {SLICE}")
    for j in range(8):
        a(f"s_waitcnt vmcnt({7-j})")
        for d in range(4):
            a(f"v_dot2c_f32_bf16 v{RA+2*d}, s{S_ONE}, v{LD+4*j+d}")
            a(f"v_dot2c_f32_bf16 v{RA+2*d+1}, s{S_ONEH}, v{LD+4*j+d}")
    a("s_nop 2")
    for d in range(4): a(f"v_cvt_pk_bf16_f32 v{LD+d}, v{RA+2*d}, v{RA+2*d+1}")
    a("s_nop 1")
    a(f"v_permlane16_swap_b32 v{LD}, v{LD+2}")
    a(f"v_permlane16_swap_b32 v{LD+1}, v{LD+3}")
    a("s_nop 1")
    a(f"buffer_store_dwordx4 v[{LD}:{LD+3}], v{T+8}, s[{S_OUT}:{S_OUT+3}], s{S_OA} offen")
    a.label("L_ldone")
    stamp_out(a, 1)
    a("s_endpgm")

def gen_compute_pro(a):
    a.vm = []; a.nst = 1
    if OPT["cpf"]:
        a("s_getpc_b64 s[98:99]")
        a.label("L_pc")
        a(f"s_lshr_b32 s{S_T0}, s2, 3")
        a(f"s_mul_i32 s{S_T0}, s{S_T0}, 640")
        a(f"v_min_u32 v{T}, 4, v1")
        a(f"v_lshlrev_b32 v{T}, 7, v{T}")
        a(f"v_add_u32 v{T}, s{S_T0}, v{T}")
        a(f"v_min_u32 v{T}, L_end-L_pc, v{T}")
        a(f"s_cmp_lg_u32 s{S_W}, 0")
        a("s_cbranch_scc1 L_nopf")
        a(f"global_load_dword v{T+7}, v{T}, s[98:99]")
        a.label("L_nopf")
    a(f"v_and_b32 v{T}, 31, v1")
    a(f"v_lshrrev_b32 v{T+1}, 5, v1")
    a(f"v_bfe_u32 v{T+2}, v1, 1, 3")
    a(f"v_xor_b32 v{T+2}, v{T+2}, v{T+1}")
    a(f"v_lshlrev_b32 v{T+2}, 4, v{T+2}")
    a(f"v_lshl_add_u32 v{T+2}, v{T}, 7, v{T+2}")
    a(f"v_add_u32 v{AX}, s{S_LW4}, v{T+2}")
    for ks in range(1,4): a(f"v_xor_b32 v{AX+ks}, {32*ks}, v{AX}")
    a(f"v_bfe_u32 v{T}, v1, 2, 2")
    a(f"v_lshl_add_u32 v{T+2}, v{T+1}, 3, v{T}")
    a(f"v_lshlrev_b32 v{T+2}, 8, v{T+2}")
    a(f"v_lshl_add_u32 v{T+2}, v{T}, 6, v{T+2}")
    a(f"v_bfe_u32 v{T+3}, v1, 4, 1")
    a(f"v_lshl_add_u32 v{T+2}, v{T+3}, 5, v{T+2}")
    a(f"v_and_b32 v{T+3}, 1, v1")
    a(f"v_lshl_add_u32 v{T+2}, v{T+3}, 4, v{T+2}")
    a(f"v_bfe_u32 v{T+3}, v1, 1, 1")
    a(f"v_lshl_add_u32 v{T+2}, v{T+3}, 3, v{T+2}")
    a(f"v_add_u32 v{AQ}, 16384, v{T+2}")
    for t in range(1,4): a(f"v_xor_b32 v{AQ+t}, {64*t}, v{AQ}")
    a.stamp()


def gen_compute(a):
    a.vm = []; a.nst = 2
    fill = []
    F = fill.append
    for ks in range(4): F(f"v_add_u32 v{AX+4+ks}, {2*SLOT}, v{AX+ks}")
    for t in range(4): F(f"v_add_u32 v{AQ+4+t}, {2*SLOT}, v{AQ+t}")
    class FA_:
        def __call__(self, s): F(s)
    fa = FA_()
    F("s_waitcnt lgkmcnt(0)")
    fill.pop()
    srd(fa, S_WS, 60, 61, WS_USED)
    srd(fa, S_OUT, 56, 57, 1179648)
    F(f"v_and_b32 v{T}, 31, v1")
    F(f"v_and_b32 v{T+2}, 15, v1")
    F(f"v_xor_b32 v{T+2}, v{T+2}, v{T+1}")
    F(f"v_lshlrev_b32 v{T+2}, 4, v{T+2}")
    F(f"v_lshl_add_u32 v{T+2}, v{T}, 8, v{T+2}")
    F(f"v_add_u32 v{T+9}, s{S_LW8}, v{T+2}")
    if base(KPOS) >= 65536-0: F(f"v_add_u32 v{T+9}, {base(KPOS)}, v{T+9}")
    F(f"v_and_b32 v{T}, 3, v1")
    F(f"s_and_b32 s{S_T0}, s2, 0x9f")
    F(f"v_lshlrev_b32 v{T+2}, 5, v{T}")
    F(f"v_add_u32 v{T+2}, s{S_T0}, v{T+2}")
    F(f"v_lshlrev_b32 v{T+2}, 2, v{T+2}")
    e_addr_r(fa, T+3, T+4)
    F(f"s_mov_b32 s{S_T1}, {E_BASE}")
    F(("vm", f"buffer_load_dword v{TAGP}, v{T+2}, s[{S_WS}:{S_WS+3}], s{S_T1} offen sc1", "E"))
    F(("vm", f"buffer_load_dword v{TAGR}, v{T+3}, s[{S_WS}:{S_WS+3}], s{S_T1} offen sc1", "E"))
    F(f"s_lshl_b32 s{S_PG}, s{S_BR}, 3")
    F(f"s_add_u32 s{S_PG}, s{S_PG}, s{S_SPLIT}")
    F(f"s_lshl_b32 s{S_PG}, s{S_PG}, 2")
    F(f"s_add_u32 s{S_PG}, s{S_PG}, s{S_RB}")
    rgroup(fa)
    F(f"s_lshl_b32 s{S_T0}, s{S_PG}, 2")
    F(f"s_add_u32 s{S_T0}, s{S_T0}, s{S_W}")
    F(f"s_lshl_b32 s{S_T0}, s{S_T0}, 9")
    F(f"s_add_u32 s{S_T0}, s{S_T0}, {FP_BASE}")
    F(f"v_lshl_add_u32 v{FPA}, v{T}, 7, s{S_T0}")
    F(f"s_lshl_b32 s{S_SOK}, s{S_CP}, 7")
    F(f"s_add_u32 s{S_SOK}, s{S_SOK}, s{S_T0}")
    F(f"v_lshrrev_b32 v{T}, 4, v1")
    F(f"v_and_b32 v{T+3}, 15, v1")
    F(f"v_xor_b32 v{T+2}, v{T}, v{T+3}")
    F(f"v_lshlrev_b32 v{T+2}, 4, v{T+2}")
    F(f"v_lshl_add_u32 v{T+2}, v{T+3}, 8, v{T+2}")
    F(f"v_add_u32 v{T+2}, {base(10)}, v{T+2}")
    F(f"v_add_u32 v{AV}, s{S_LW8}, v{T+2}")
    for ks in range(1,4): F(f"v_xor_b32 v{AV+ks}, {64*ks}, v{AV}")
    F(f"v_lshlrev_b32 v{VL}, 4, v1")
    F(f"v_lshlrev_b32 v{T}, 4, v{T+1}")
    F(f"v_bfe_u32 v{T+2}, v1, 4, 1")
    F(f"v_lshl_add_u32 v{T}, v{T+2}, 2, v{T}")
    F(f"v_bfe_u32 v{T+4}, v1, 2, 2")
    F(f"v_add_u32 v{T}, v{T}, v{T+4}")
    F(f"v_mul_u32_u24 v{T}, 288, v{T}")
    F(f"v_and_b32 v{T+4}, 3, v1")
    F(f"v_lshl_add_u32 v{T}, v{T+4}, 3, v{T}")
    F(f"v_add_u32 v{AO}, {base(11)}, v{T}")
    F(f"v_add_u32 v{AO+1}, {base(13)}, v{T}")
    F(f"v_lshlrev_b32 v{T+2}, 10, v{T+2}")
    F(f"v_lshl_add_u32 v{T+2}, v{T+1}, 8, v{T+2}")
    F(f"v_lshl_add_u32 v{T+8}, v{T+3}, 4, v{T+2}")
    F(f"v_mul_u32_u24 v{T+6}, 2304, v{T+3}")
    F(f"v_lshrrev_b32 v{T+2}, 4, v1")
    F(f"v_lshlrev_b32 v{T+2}, 3, v{T+2}")
    F(f"v_add_u32 v{T+2}, 256, v{T+2}")
    F(f"v_bfe_u32 v{T}, v1, 4, 1")
    F(f"v_lshlrev_b32 v{T}, 5, v{T}")
    F(f"v_lshl_add_u32 v{T}, v{T+1}, 4, v{T}")
    F(f"v_add_u32 v{T}, 192, v{T}")
    F(f"s_cmp_eq_u32 s{S_W}, 0")
    F(f"s_cselect_b64 vcc, -1, 0")
    F(f"v_cndmask_b32 v{T}, v{T+2}, v{T}, vcc")
    F(f"v_add_u32 v{T+6}, v{T+6}, v{T}")
    F(f"s_lshl_b32 s{S_T0}, s{S_BR}, 4")
    F(f"s_add_u32 s{S_T0}, s{S_T0}, s{S_B}")
    F(f"s_lshl_b32 s{S_SOP}, s{S_T0}, 16")
    for u in range(4):
        head_u(fa, u)
        F(f"s_lshl_b32 s{S_SPU[u]}, s{S_T3}, 11")
        F(f"s_add_u32 s{S_SPU[u]}, s{S_SPU[u]}, s{S_SOP}")
    F(f"s_lshl_b32 s{S_T0}, s{S_H}, 11")
    F(f"s_add_u32 s{S_SOP}, s{S_SOP}, s{S_T0}")
    F(f"s_mov_b32 s{S_C}, 0x3e0293ee")
    F(f"s_lshl_b32 s{S_T0}, s{S_RG}, 2")
    F(f"s_add_u32 s{S_T0}, s{S_T0}, s{S_W}")
    F(f"s_lshl_b32 s{S_T0}, s{S_T0}, 4")
    F(f"s_add_u32 s{S_T0}, s{S_T0}, s{S_SPLIT}")
    F(f"s_mul_i32 s{S_PW}, s{S_T0}, {SLICE}")
    F(f"s_add_u32 s{S_PW}, s{S_PW}, {PART_BASE}")
    F(f"s_add_u32 s{S_PW1}, s{S_PW}, {8*SLICE}")
    red_scalars(fa)
    F(f"s_lshl_b32 s{S_T0}, s{S_W}, 10")
    F(f"s_sub_u32 s{S_RD}, s{S_RD}, s{S_T0}")
    fill2 = []
    def tags_setup():
        a.wait_vm("E")
        lcg(a, TAGP)
        a(f"v_mul_lo_u32 v{TAGR}, v{TAGR}, s{S_T0}")
        a(f"v_add_u32 v{TAGR}, {LCG_C}, v{TAGR}")
        a("s_nop 0")
        a(f"v_readlane_b32 s{S_TAG}, v{TAGR}, s{S_SPLIT}")
        a("s_nop 1")
        a(f"v_mov_b32 v{VTG}, s{S_TAG}")
    def filler(n):
        for _ in range(n):
            if not fill: return
            x = fill.pop(0)
            if isinstance(x, tuple): a.vmop(x[1], x[2])
            else: a(x)

    def rdB(st, ks, buf):
        slot = pos_s1(st)%4; s2 = (slot>>1)*4; off = (slot&1)*SLOT
        a.ds(f"ds_read_b128 a[{FB+4*buf}:{FB+4*buf+3}], v{AX+s2+ks} offset:{off}", f"B{st}_{ks}")
    def rdA(st, ks, t, buf):
        slot = pos_s1(st)%4; s2 = (slot>>1)*4; off = (slot&1)*SLOT + ks*4096
        a.ds(f"ds_read_b64_tr_b16 a[{FA+4*buf}:{FA+4*buf+1}], v{AQ+s2+t} offset:{off}", f"A{st}_{ks}_{t}")
        a.ds(f"ds_read_b64_tr_b16 a[{FA+4*buf+2}:{FA+4*buf+3}], v{AQ+s2+t} offset:{off+1024}", f"A{st}_{ks}_{t}")
    def mm32(st, ks, t, abuf, bbuf):
        a.wait_lg(f"B{st}_{ks}", f"A{st}_{ks}_{t}")
        c = "0" if (st == 0 and ks == 0) else f"v[{ACC+16*t}:{ACC+16*t+15}]"
        a(f"v_mfma_f32_32x32x16_bf16 v[{ACC+16*t}:{ACC+16*t+15}], a[{FA+4*abuf}:{FA+4*abuf+3}], a[{FB+4*bbuf}:{FB+4*bbuf+3}], {c}")
    def rdK(kk):
        koff = base(KPOS) if base(KPOS) < 65536 else 0
        a(f"v_xor_b32 v{T+5}, {32*kk}, v{T+9}")
        a.ds(f"ds_read_b128 a[{KF+4*kk}:{KF+4*kk+3}], v{T+5} offset:{koff}", f"K{kk}")
    a("s_waitcnt lgkmcnt(0)")
    if OPT["tlb"]:
        a(f"s_cmp_lg_u32 s{S_W}, 1")
        a("s_cbranch_scc1 L_notlb")
        kv_soffset(a, S_T2, S_H)
        a(f"s_cmp_eq_u32 s{S_BR}, 0")
        a(f"s_cselect_b32 s98, s38, s48")
        a(f"s_cselect_b32 s99, s39, s49")
        a(f"v_mov_b32 v{T}, s{S_T2}")
        a(f"global_load_dword v{T+7}, v{T}, s[98:99]")
        a(f"s_cmp_eq_u32 s{S_BR}, 0")
        a(f"s_cselect_b32 s98, s40, s50")
        a(f"s_cselect_b32 s99, s41, s51")
        a(f"global_load_dword v{T+7}, v{T}, s[98:99]")
        a(f"s_cselect_b32 s98, s44, s54")
        a(f"s_cselect_b32 s99, s45, s55")
        a(f"s_mul_i32 s{S_T0}, s{S_SPLIT}, 589824")
        a(f"v_and_b32 v{T}, 1, v1")
        a(f"v_mul_u32_u24 v{T}, 589820, v{T}")
        a(f"v_add_u32 v{T}, s{S_T0}, v{T}")
        a(f"global_load_dword v{T+7}, v{T}, s[98:99]")
        a(f"s_mul_i32 s{S_T0}, s{S_RB}, {128*2304}")
        a(f"v_mov_b32 v{T}, s{S_T0}")
        a(f"global_load_dword v{T+7}, v{T}, s[56:57]")
        a(f"v_and_b32 v{T}, 7, v1")
        a(f"v_lshlrev_b32 v{T}, 21, v{T}")
        a(f"v_add_u32 v{T}, {(2<<20)-4}, v{T}")
        a(f"global_load_dword v{T+7}, v{T}, s[60:61] sc1")
        a.label("L_notlb")
    a("s_barrier")
    a.stamp()
    rdB(0,0,0)
    for t in range(4): rdA(0,0,t,t)
    for st in range(8):
        for ks in range(3):
            for t in range(4):
                mm32(st, ks, t, t, ks&1)
                if t == 0: rdB(st, ks+1, (ks+1)&1)
                rdA(st, ks+1, t, t)
                if st == KPOS and ks < 2: rdK(4*ks+t)
                else: filler(3)
            if st == 6 and ks == 1: tags_setup()
        mm32(st, 3, 0, 0, 1)
        mm32(st, 3, 1, 1, 1)
        a.wait_lg0()
        a("s_barrier")
        a.stamp()
        if st < 7:
            rdB(st+1, 0, 0); rdA(st+1, 0, 0, 0); rdA(st+1, 0, 1, 1)
            mm32(st, 3, 2, 2, 1); rdA(st+1, 0, 2, 2)
            mm32(st, 3, 3, 3, 1); rdA(st+1, 0, 3, 3)
        else:
            rdB(8, 0, 0); rdA(8, 0, 0, 0); rdA(8, 1, 0, 1); rdB(8, 2, 2)
            mm32(st, 3, 2, 2, 1); rdA(8, 2, 0, 2); rdB(8, 3, 3)
            mm32(st, 3, 3, 3, 1); rdB(8, 1, 1); rdA(8, 3, 0, 3)
    assert not fill, len(fill)
    def qcvt(t):
        for r in range(8): a(f"v_cvt_pk_bf16_f32 v{QB+8*t+r}, v{ACC+16*t+2*r}, v{ACC+16*t+2*r+1}")
    for t in range(4):
        for ks in range(4):
            mm32(8, ks, t, ks, ks)
            if t < 3: rdA(8, ks, t+1, ks)
            if t == 3 and ks == 1:
                a.wait_lg0()
                a("s_barrier")
                a.stamp()
                a("s_nop 3")
            if ks == 2 and t > 0: qcvt(t-1)
    for kk in range(8):
        if kk == 6: a("s_nop 0")
        c = "0" if kk == 0 else f"v[{SA}:{SA+15}]"
        a(f"v_mfma_f32_32x32x16_bf16 v[{SA}:{SA+15}], a[{KF+4*kk}:{KF+4*kk+3}], v[{QB+4*kk}:{QB+4*kk+3}], {c}")
        if kk == 5:
            a("s_nop 5")
            qcvt(3)
    a("s_nop 11")
    M=T+3; M2=T+4
    a(f"v_max3_f32 v{M}, v{SA}, v{SA+1}, v{SA+2}")
    a(f"v_max3_f32 v{M2}, v{SA+3}, v{SA+4}, v{SA+5}")
    a(f"v_max3_f32 v{M}, v{M}, v{SA+6}, v{SA+7}")
    a(f"v_max3_f32 v{M2}, v{M2}, v{SA+8}, v{SA+9}")
    a(f"v_max3_f32 v{M}, v{M}, v{SA+10}, v{SA+11}")
    a(f"v_max3_f32 v{M2}, v{M2}, v{SA+12}, v{SA+13}")
    a(f"v_max3_f32 v{M}, v{M}, v{SA+14}, v{SA+15}")
    a(f"v_max_f32 v{M}, v{M}, v{M2}")
    a(f"v_mov_b32 v{M2}, v{M}")
    a("s_nop 1")
    a(f"v_permlane32_swap_b32 v{M}, v{M2}")
    a("s_nop 1")
    a(f"v_max_f32 v{M}, v{M}, v{M2}")
    a(f"v_mul_f32 v{M}, s{S_C}, v{M}")
    for r in range(16): a(f"v_fma_f32 v{SA+r}, v{SA+r}, s{S_C}, -v{M}")
    for r in range(16): a(f"v_exp_f32 v{SA+r}, v{SA+r}")
    a("s_nop 0")
    a(f"v_add_f32 v{M}, v{SA}, v{SA+1}")
    a(f"v_add_f32 v{M2}, v{SA+2}, v{SA+3}")
    for r in range(4,16,2):
        a(f"v_add_f32 v{M}, v{M}, v{SA+r}")
        a(f"v_add_f32 v{M2}, v{M2}, v{SA+r+1}")
    a(f"v_add_f32 v{M}, v{M}, v{M2}")
    a(f"v_mov_b32 v{M2}, v{M}")
    a("s_nop 1")
    a(f"v_permlane32_swap_b32 v{M}, v{M2}")
    a("s_nop 1")
    a(f"v_add_f32 v{M}, v{M}, v{M2}")
    a(f"v_rcp_f32 v{M}, v{M}")
    a("s_nop 0")
    for r in range(16): a(f"v_mul_f32 v{SA+r}, v{SA+r}, v{M}")
    PX=QB; PY=QB+4
    for k,r in enumerate([0,2,8,10]): a(f"v_cvt_pk_bf16_f32 v{PX+k}, v{SA+r}, v{SA+r+1}")
    for k,r in enumerate([4,6,12,14]): a(f"v_cvt_pk_bf16_f32 v{PY+k}, v{SA+r}, v{SA+r+1}")
    a.vmop(f"buffer_store_dwordx4 v[{PX}:{PX+3}], v{T+8}, s[{S_WS}:{S_WS+3}], s{S_SOP} offen sc1", "Pst")
    a.vmop(f"buffer_store_dwordx4 v[{PY}:{PY+3}], v{T+8}, s[{S_WS}:{S_WS+3}], s{S_SOP} offen offset:512 sc1", "Pst")
    a(f"v_mov_b32 v{T+9}, 0")

    def flag_store(tagname, soff, off=0):
        a("s_mov_b64 exec, 1")
        a.vmop(f"buffer_store_dword v{VTG}, v{T+9}, s[{S_WS}:{S_WS+3}], s{soff} offen offset:{off} sc1", tagname)
        a("s_mov_b64 exec, -1")
    def mb_add(tp):
        a("s_mov_b64 exec, 1")
        a.ds(f"ds_add_u32 v{T+4}, v{T+2} offset:{4*tp}", "mb")
        a("s_mov_b64 exec, -1")
    def rdW(f):
        g, ks = divmod(f, 4); u, t = divmod(g, 9); sl = BF + 4*(f % NBF)
        for h in range(2):
            a.ds(f"ds_read_b64_tr_b16 a[{sl+2*h}:{sl+2*h+1}], v{AO+(u&1)} offset:{ks*9216+h*2304+t*32}", f"W{f}")
    def rdV(u, ks):
        if u&1:
            d = base(12)-base(10)
            a(f"v_add_u32 v{T+5}, {d & 0xffffffff}, v{AV+ks}")
            ad = T+5
        else: ad = AV+ks
        for st in range(2):
            a.ds(f"ds_read_b128 a[{VF+16*st+4*ks}:{VF+16*st+4*ks+3}], v{ad} offset:{st*4096}", f"V{u}_{ks}")
    def pkreg(u, t): return (STASH+12*t+4*u) if u < 3 else (PK+4*(t&1))
    def outreg(it, t): return RB + 12*t + 4*it
    def cvt(g):
        u, t = divmod(g, 9)
        w = VW+8*(g&1); p = pkreg(u, t)
        for k in range(4): a(f"v_cvt_pk_bf16_f32 v{p+k}, v{w+2*k}, v{w+2*k+1}")
    def pv(u, t):
        p = pkreg(u, t)
        for it in range(2):
            o = outreg(it, t)
            c = "0" if u == 0 else f"v[{o}:{o+3}]"
            a(f"v_mfma_f32_16x16x32_bf16 v[{o}:{o+3}], v[{p}:{p+3}], a[{PF+8*u+4*it}:{PF+8*u+4*it+3}], {c}")
    def store_pair(tp):
        for it in range(2):
            so = S_PW if it == 0 else S_PW1
            d = RB + 12*(2*tp+it) + 8
            for h in range(2):
                o = outreg(it, 2*tp+h)
                a(f"v_cvt_pk_bf16_f32 v{d+2*h}, v{o}, v{o+1}")
                a(f"v_cvt_pk_bf16_f32 v{d+2*h+1}, v{o+2}, v{o+3}")
            a.vmop(f"buffer_store_dwordx4 v[{d}:{d+3}], v{VL}, s[{S_WS}:{S_WS+3}], s{so} offen offset:{1024*tp} sc1", f"part{tp}")
    def store_t8():
        for it in range(2):
            so = S_PW if it == 0 else S_PW1
            d = RB + 12*8 + 8 + 2*it
            o = outreg(it, 8)
            a(f"v_cvt_pk_bf16_f32 v{d}, v{o}, v{o+1}")
            a(f"v_cvt_pk_bf16_f32 v{d+1}, v{o+2}, v{o+3}")
            a.vmop(f"buffer_store_dwordx2 v[{d}:{d+1}], v{T+8}, s[{S_WS}:{S_WS+3}], s{so} offen sc1", "part3")
    def pair(g, ks):
        f = 4*g+ks; sl = BF + 4*(f % NBF)
        for st in range(2):
            w = VW+8*(g&1)+4*st
            c = "0" if ks == 0 else f"v[{w}:{w+3}]"
            a(f"v_mfma_f32_16x16x32_bf16 v[{w}:{w+3}], a[{VF+16*st+4*ks}:{VF+16*st+4*ks+3}], a[{sl}:{sl+3}], {c}")
    a("s_barrier")
    a.stamp()
    a.lq = []
    for ks in range(4):
        rdV(0, ks); rdW(ks)
    for f in range(4, NBF): rdW(f)
    a(f"v_lshlrev_b32 v{T+8}, 3, v1")
    a(f"v_add_u32 v{T+8}, 4096, v{T+8}")
    a(f"v_mov_b32 v{T+4}, {MBOX}")
    a(f"v_mov_b32 v{T+2}, 1")
    a(f"s_lshl_b32 s{S_T0}, s{S_RG}, 3")
    a(f"s_add_u32 s{S_T0}, s{S_T0}, s{S_SPLIT}")
    a(f"s_lshl_b32 s{S_T0}, s{S_T0}, 12")
    a(f"s_add_u32 s{S_T0}, s{S_T0}, {FR_BASE+3072}")
    a(f"v_and_b32 v{T+3}, 7, v1")
    a(f"v_lshl_add_u32 v{T+3}, v{T+3}, 7, s{S_T0}")
    RPOS = OPT["rpos"]
    for g in range(36):
        u, t = divmod(g, 9)
        for ks in range(4):
            f = 4*g+ks
            a.wait_lg(f"W{f}", f"V{u}_{ks}")
            pair(g, ks)
            nf = f + NBF
            hend = 36*(u+1)
            if nf < hend: rdW(nf)
            elif u < 3 and t == 8 and ks >= 1:
                if ks == 1:
                    a.wait_lg0()
                    if u == 0:
                        a.wait_vm("Pst")
                        flag_store("Pflag", S_SOK)
                    a("s_barrier")
                    a.stamp()
                    rdV(u+1, 0); rdW(hend); rdV(u+1, 1)
                    for k in range(1, NBF-2): rdW(hend+k)
                else:
                    rdV(u+1, ks); rdW(hend+NBF-4+ks)
            if ks == 2 and g > 0: cvt(g-1)
            if u == 3 and t > 0 and ks < 3:
                if t == 1 and ks == 0: a.wait_vm("Pld")
                pv(ks, t-1)
            if u == 3 and ks == 1:
                if t in (3, 5, 7): store_pair((t-3)>>1)
            if OPT["midw"] and u == 3 and ks == 3 and t in (5, 7):
                a.wait_vm(f"part{(t-5)>>1}")
                mb_add((t-5)>>1)
            if u == 1 and t == 4 and ks == 0:
                a.vmop(f"buffer_load_dword v{T+7}, v{FPA}, s[{S_WS}:{S_WS+3}], 0 offen sc1", "poll")
            if u == 2 and t == 2 and ks == 3:
                a.wait_vm("poll")
                spin(a, "L_pw", FPA, TAGP, True)
                for uu in range(4):
                    for it in range(2):
                        a.vmop(f"buffer_load_dwordx4 a[{PF+8*uu+4*it}:{PF+8*uu+4*it+3}], v{VL}, s[{S_WS}:{S_WS+3}], s{S_SPU[uu]} offen offset:{1024*it} sc1", "Pld")
        if u == 3 and t > 0: pv(3, t-1)
        if u < 2 and t == RPOS:
            a("s_barrier")
    for uu in range(3): pv(uu, 8)
    a("s_nop 3")
    cvt(35)
    a("s_nop 1")
    pv(3, 8)
    store_pair(3)
    a("s_nop 1")
    store_t8()
    if not OPT["midw"]:
        a.wait_vm("part0"); mb_add(0)
        a.wait_vm("part1"); mb_add(1)
    a.wait_vm("part2")
    mb_add(2)
    a.wait_vm("part3")
    mb_add(3)
    a.stamp()
    a(f"s_cmp_ge_u32 s{S_W}, 2")
    a("s_cbranch_scc1 L_cdone")
    LD=RB; RA=RB+32
    for r in range(8): a(f"v_mov_b32 v{RA+r}, 0")
    spin(a, "L_gw", T+3, TAGR, False, OPT["gsl"])
    a.stamp()
    a(f"s_cmp_eq_u32 s{S_W}, 0")
    a("s_cbranch_scc1 L_c0")
    for j in range(8):
        a(f"buffer_load_dwordx2 v[{LD+2*j}:{LD+2*j+1}], v{T+8}, s[{S_WS}:{S_WS+3}], s{S_RD} offen sc1")
        if j < 7: a(f"s_add_u32 s{S_RD}, s{S_RD}, {SLICE}")
    for j in range(8):
        a(f"s_waitcnt vmcnt({7-j})")
        for d in range(2):
            a(f"v_dot2c_f32_bf16 v{RA+2*d}, s{S_ONE}, v{LD+2*j+d}")
            a(f"v_dot2c_f32_bf16 v{RA+2*d+1}, s{S_ONEH}, v{LD+2*j+d}")
    a("s_nop 2")
    a(f"v_cvt_pk_bf16_f32 v{LD}, v{RA}, v{RA+1}")
    a(f"v_cvt_pk_bf16_f32 v{LD+1}, v{RA+2}, v{RA+3}")
    a(f"buffer_store_dwordx2 v[{LD}:{LD+1}], v{T+6}, s[{S_OUT}:{S_OUT+3}], s{S_OA} offen")
    a("s_branch L_cdone")
    a.label("L_c0")
    for j in range(8):
        a(f"buffer_load_dwordx4 v[{LD+4*j}:{LD+4*j+3}], v{VL}, s[{S_WS}:{S_WS+3}], s{S_RD} offen offset:3072 sc1")
        if j < 7: a(f"s_add_u32 s{S_RD}, s{S_RD}, {SLICE}")
    for j in range(8):
        a(f"s_waitcnt vmcnt({7-j})")
        for d in range(4):
            a(f"v_dot2c_f32_bf16 v{RA+2*d}, s{S_ONE}, v{LD+4*j+d}")
            a(f"v_dot2c_f32_bf16 v{RA+2*d+1}, s{S_ONEH}, v{LD+4*j+d}")
    a("s_nop 2")
    for d in range(4): a(f"v_cvt_pk_bf16_f32 v{LD+d}, v{RA+2*d}, v{RA+2*d+1}")
    a("s_nop 1")
    a(f"v_permlane16_swap_b32 v{LD}, v{LD+2}")
    a(f"v_permlane16_swap_b32 v{LD+1}, v{LD+3}")
    a("s_nop 1")
    a(f"buffer_store_dwordx4 v[{LD}:{LD+3}], v{T+6}, s[{S_OUT}:{S_OUT+3}], s{S_OA} offen")
    a(f"s_cmp_lg_u32 s{S_W}, 0")
    a("s_cbranch_scc1 L_cdone")
    a(f"s_lshl_b32 s{S_T2}, s2, 2")
    a(f"s_add_u32 s{S_T2}, s{S_T2}, {E_BASE}")
    flag_store("Eup", S_T2)
    a.label("L_cdone")
    stamp_out(a, 0)

def gen(a):
    kname = NAME + "_kernel"
    a.raw(f".globl {kname}"); a.raw(".p2align 8"); a.raw(f".type {kname},@function"); a.label(kname)
    a("s_load_dwordx16 s[36:51], s[0:1], 0")
    a("s_load_dwordx8 s[52:59], s[0:1], 64")
    a("s_load_dwordx2 s[60:61], s[0:1], 96")
    a("v_lshrrev_b32 v1, 6, v0")
    a("s_cmp_ge_u32 s2, 256")
    a("s_cbranch_scc1 L_end")
    a(f"v_readfirstlane_b32 s{S_T1}, v1")
    if OPT["stamp"]:
        a(f"v_mov_b32 v{V_STAMP}, 0")
        a.stamp()
    a(f"s_and_b32 s{S_T0}, s2, 7")
    a("v_and_b32 v1, 63, v0")
    a(f"s_lshr_b32 s{S_BR}, s{S_T0}, 2")
    a(f"s_and_b32 s{S_HQ}, s{S_T0}, 3")
    a(f"s_bfe_u32 s{S_RB}, s2, 0x20003")
    a(f"s_lshr_b32 s{S_HL}, s2, 5")
    a(f"s_and_b32 s{S_W}, s{S_T1}, 3")
    a(f"s_lshl_b32 s{S_H}, s{S_HQ}, 3")
    a(f"s_add_u32 s{S_H}, s{S_H}, s{S_HL}")
    a(f"s_lshl_b32 s{S_B}, s{S_RB}, 2")
    a(f"s_add_u32 s{S_B}, s{S_B}, s{S_W}")
    a(f"s_and_b32 s{S_CP}, s{S_HL}, 3")
    a(f"s_lshr_b32 s{S_KQ}, s{S_HL}, 2")
    a(f"s_lshl_b32 s{S_SPLIT}, s{S_HQ}, 1")
    a(f"s_add_u32 s{S_SPLIT}, s{S_SPLIT}, s{S_KQ}")
    a(f"s_lshl_b32 s{S_LW4}, s{S_W}, 12")
    a(f"s_lshl_b32 s{S_LW8}, s{S_W}, 13")
    a(f"s_cmp_ge_u32 s{S_T1}, 4")
    a("s_cbranch_scc1 L_loader")
    gen_compute_pro(a)
    a("s_branch L_compute")
    a.label("L_loader")
    gen_loader(a)
    a.raw(".p2align 6")
    a.label("L_compute")
    gen_compute(a)
    a.label("L_end")
    a("s_endpgm")

def main():
    a = Asm()
    hdr = open("cdna_kernels/%s.s.ref" % NAME).read().split("; Override")[0]
    a.raw(hdr.rstrip())
    a.raw(f"; @launch grid=(256,1,1) block=(512,1,1) lds={LDS_BYTES}")
    a.raw('.amdgcn_target "amdgcn-amd-amdhsa--gfx950"')
    a.raw(".text")
    gen(a)
    a.raw('.section .rodata,"a"')
    a.raw(".p2align 6")
    a.raw(f".amdhsa_kernel {NAME}_kernel")
    a.raw(f"  .amdhsa_next_free_vgpr {NARCH+NACC}")
    a.raw(f"  .amdhsa_next_free_sgpr 102")
    a.raw(f"  .amdhsa_accum_offset {NARCH}")
    a.raw("  .amdhsa_group_segment_fixed_size 0")
    a.raw("  .amdhsa_kernarg_size 104")
    a.raw("  .amdhsa_user_sgpr_count 2")
    a.raw("  .amdhsa_user_sgpr_kernarg_segment_ptr 1")
    a.raw("  .amdhsa_system_sgpr_workgroup_id_x 1")
    a.raw(".end_amdhsa_kernel")
    open(sys.argv[1], "w").write(a.text())
    if os.environ.get("SHOW"): print(schedule())
main()
```

```python
import sys, os
NAME = "concat_heads__gqa_block_cached__mha_block_cached__near_ridge"
OPT = dict(stamp=0, rot1=2, rot2=2, ntx=0, ntq=0, ntk=0, ntv=0, nto=0, prio=0, rpos=4, kpos=3, nbf=6,
           nodma=0, nomfma=0, nolds=0, cyc=0, epos=1, cpf=1, first=0, mbox=1, gsl=4, tlb=0, midw=0, cprio=0, w2=0, apoll=1, nfill=2, mks=0, pksm=1, onep=1, pearly=1, lprio2=1)
for arg in sys.argv[2:]:
    k, v = arg.split("="); assert k in OPT, k; OPT[k] = int(v)

class Asm:
    def __init__(self):
        self.L=[]; self.vm=[]; self.nst=0; self.lq=[]
    def __call__(self, s):
        if OPT["nomfma"] and s.startswith("v_mfma"): return
        if OPT["nolds"] and s.startswith("ds_read"): return
        if OPT["nodma"] and s.endswith(" lds"): return
        self.L.append("    "+s)
    def label(self, n): self.L.append(n+":")
    def raw(self, s): self.L.append(s)
    def text(self): return "\n".join(self.L)+"\n"
    def vmop(self, s, tag): self(s); self.vm.append(tag)
    def wait_vm(self, *tags):
        idx = max((i for i,t in enumerate(self.vm) if t in tags), default=-1)
        assert idx >= 0, tags
        n = len(self.vm)-1-idx
        assert n <= 63
        self(f"s_waitcnt vmcnt({n})")
    def ds(self, s, tag): self(s); self.lq.append(tag)
    def wait_lg(self, *tags):
        idx = max((i for i,t in enumerate(self.lq) if t in tags), default=-1)
        if idx < 0: return
        n = min(15, len(self.lq)-1-idx)
        self(f"s_waitcnt lgkmcnt({n})")
        self.lq = self.lq[len(self.lq)-n:] if n else []
    def wait_lg0(self):
        self("s_waitcnt lgkmcnt(0)"); self.lq = []
    def stamp(self, lvl=1):
        if not OPT["stamp"]: return
        if OPT["stamp"] == 2 and lvl < 2: return
        self.lq = []
        self("s_memtime s[96:97]" if OPT["cyc"] else "s_memrealtime s[96:97]")
        self("s_waitcnt lgkmcnt(0)")
        self(f"v_writelane_b32 v{V_STAMP}, s96, {self.nst}")
        self.nst += 1

SLOT = 36864
MBOX = 4*SLOT
LDS_BYTES = 4*SLOT + 256
KPOS = OPT["kpos"]
def pos_s1(t): return t if t < KPOS else t+1
def base(pos): return (pos % 4)*SLOT
P_BASE = 0
SLICE = 4608
PART_BASE = 2<<20
E_BASE = 15<<20
FP_BASE = E_BASE + 4096
FR_BASE = 14<<20
STAMP_BASE = 13<<20
STAMP_BASE = 16<<20
WS_USED = 17<<20
LCG_A = 1664525; LCG_C = 1013904223
SPIN_MAX = 1<<15

S_X=8; S_WQ=12; S_K=16; S_WS=20; S_V=24; S_WO=28; S_OUT=32
S_W=62; S_BR=63; S_HQ=64; S_RB=65; S_HL=66; S_H=67; S_B=68; S_SPLIT=69
S_T0=70; S_T1=71; S_T2=72; S_T3=73
S_SOX=74; S_SOQ=75; S_SOK=76; S_C=77; S_SOP=78; S_LWO=79; S_CP=80; S_KQ=81; S_LW4=82; S_LW8=83
S_SOV=[84,85,86,87]; S_SOW=[88,89,90,91]; S_SPU=[92,93,94,95]
S_TAG=3; S_CNT=4; S_CH=5; S_RG=6; S_PG=7
S_CC=52
S_TJ=36
S_FR=44; S_RD=45; S_OA=46; S_ONE=47; S_ONEH=48; S_PW=49; S_PW1=50
AX=2; AQ=10; VW=2; PK=18; T=26; AV=36; AO=40; VL=42; TAGP=43; TAGR=44; FPA=45; VTG=46; V_STAMP=47
RB=48
ACC=RB; QB=RB+64; SA=RB+96
STASH=RB+12
NARCH=168
VX=2; VQ=6; VK=10; VO=14; FRA=45
NBF=OPT["nbf"]
FA=0; FB=16; KF=32; PF=0; BF=32; VF=32+4*NBF; NACC=VF+32

def nt(k): return " nt" if OPT[k] else ""

def srd(a, b, lo, hi, nrec):
    a(f"s_mov_b32 s{b}, s{lo}")
    a(f"s_and_b32 s{b+1}, s{hi}, 0xffff")
    a(f"s_mov_b32 s{b+2}, {nrec}")
    a(f"s_mov_b32 s{b+3}, 0x20000")

def kv_soffset(a, dst, head_s):
    a(f"s_lshl_b32 s{S_T0}, s{S_B}, 4")
    a(f"s_lshr_b32 s{S_T1}, s{head_s}, 1")
    a(f"s_add_u32 s{S_T0}, s{S_T0}, s{S_T1}")
    a(f"s_lshl_b32 s{S_T1}, s{S_B}, 5")
    a(f"s_add_u32 s{S_T1}, s{S_T1}, s{head_s}")
    a(f"s_cmp_eq_u32 s{S_BR}, 0")
    a(f"s_cselect_b32 s{dst}, s{S_T0}, s{S_T1}")
    a(f"s_lshl_b32 s{dst}, s{dst}, 13")

def head_u(a, u):
    ORD2 = {0: [[0,1,2,3]]*4, 1: [[0,1,2,3],[1,2,3,0],[2,3,0,1],[3,0,1,2]],
            2: [[0,1,2,3],[1,0,2,3],[0,2,1,3],[0,1,3,2]],
            3: [[0,1,2,3],[1,0,3,2],[0,1,2,3],[1,0,3,2]],
            4: [[0,2,1,3],[1,0,2,3],[0,1,3,2],[1,3,0,2]]}[OPT["rot2"]]
    tab = sum(ORD2[j][u] << (2*j) for j in range(4))
    a(f"s_lshl_b32 s{S_T3}, s{S_SPLIT}, 2")
    if OPT["rot2"]:
        a(f"s_add_u32 s{S_T2}, s{S_RB}, s{S_CP}")
        a(f"s_and_b32 s{S_T2}, s{S_T2}, 3")
        a(f"s_lshl_b32 s{S_T2}, s{S_T2}, 1")
        a(f"s_lshr_b32 s{S_T2}, {tab}, s{S_T2}")
        a(f"s_and_b32 s{S_T2}, s{S_T2}, 3")
        a(f"s_add_u32 s{S_T3}, s{S_T3}, s{S_T2}")
    elif u: a(f"s_add_u32 s{S_T3}, s{S_T3}, {u}")

def rgroup(a):
    a(f"s_lshl_b32 s{S_RG}, s{S_BR}, 2")
    a(f"s_add_u32 s{S_RG}, s{S_RG}, s{S_RB}")
    a(f"s_lshl_b32 s{S_RG}, s{S_RG}, 2")
    a(f"s_add_u32 s{S_RG}, s{S_RG}, s{S_CP}")

def e_addr_r(a, dst, t):
    a(f"s_and_b32 s{S_T0}, s2, 0x7c")
    a(f"v_bfe_u32 v{dst}, v1, 1, 2")
    a(f"v_and_b32 v{t}, 1, v1")
    a(f"v_lshl_add_u32 v{dst}, v{t}, 7, v{dst}")
    a(f"v_add_u32 v{dst}, s{S_T0}, v{dst}")
    a(f"v_lshlrev_b32 v{dst}, 2, v{dst}")

def lcg(a, v):
    a(f"s_mov_b32 s{S_T0}, {LCG_A}")
    a(f"v_mul_lo_u32 v{v}, v{v}, s{S_T0}")
    a(f"v_add_u32 v{v}, {LCG_C}, v{v}")

def red_scalars(a):
    a(f"s_lshl_b32 s{S_T0}, s{S_RG}, 3")
    a(f"s_add_u32 s{S_T0}, s{S_T0}, s{S_SPLIT}")
    a(f"s_mul_i32 s{S_RD}, s{S_T0}, {8*SLICE}")
    a(f"s_add_u32 s{S_RD}, s{S_RD}, {PART_BASE}")
    a(f"s_lshl_b32 s{S_T0}, s{S_W}, 10")
    a(f"s_add_u32 s{S_RD}, s{S_RD}, s{S_T0}")
    a(f"s_lshl_b32 s{S_OA}, s{S_RB}, 3")
    a(f"s_add_u32 s{S_OA}, s{S_OA}, s{S_SPLIT}")
    a(f"s_mul_i32 s{S_OA}, s{S_OA}, {16*2304}")
    a(f"s_mul_i32 s{S_T0}, s{S_BR}, 1152")
    a(f"s_add_u32 s{S_OA}, s{S_OA}, s{S_T0}")
    a(f"s_mul_i32 s{S_T0}, s{S_CP}, 288")
    a(f"s_add_u32 s{S_OA}, s{S_OA}, s{S_T0}")
    a(f"s_mov_b32 s{S_ONE}, 0x3f80")
    a(f"s_mov_b32 s{S_ONEH}, 0x3f800000")

def stamp_out(a, widx):
    if not OPT["stamp"]: return
    a("s_waitcnt vmcnt(0)")
    a.stamp(2)
    a(f"s_lshl_b32 s{S_T2}, s2, 3")
    a(f"s_add_u32 s{S_T2}, s{S_T2}, s{S_W}")
    if widx: a(f"s_add_u32 s{S_T2}, s{S_T2}, 4")
    a(f"s_lshl_b32 s{S_T2}, s{S_T2}, 8")
    a(f"s_add_u32 s{S_T2}, s{S_T2}, {STAMP_BASE}")
    a(f"v_lshlrev_b32 v{T}, 2, v1")
    a(f"buffer_store_dword v{V_STAMP}, v{T}, s[{S_WS}:{S_WS+3}], s{S_T2} offen")

def spin(a, lbl, addr, tag, first_loaded, sleep=False, atomic=False):
    a(f"s_mov_b32 s{S_CNT}, 0")
    if first_loaded: a(f"s_branch {lbl}_chk")
    a.label(f"{lbl}_poll")
    if sleep: a(f"s_sleep {sleep}")
    if atomic:
        a(f"v_mov_b32 v{T+7}, 0")
        a("s_mov_b64 exec, 0xff")
        a(f"buffer_atomic_or v{T+7}, v{addr}, s[{S_WS}:{S_WS+3}], 0 offen sc0 sc1")
    else:
        a(f"buffer_load_dword v{T+7}, v{addr}, s[{S_WS}:{S_WS+3}], 0 offen sc1")
    a("s_waitcnt vmcnt(0)")
    a.label(f"{lbl}_chk")
    a(f"v_cmp_ne_u32 vcc, v{T+7}, v{tag}")
    a(f"s_add_u32 s{S_CNT}, s{S_CNT}, 1")
    a(f"s_cmp_ge_u32 s{S_CNT}, {SPIN_MAX}")
    a(f"s_cbranch_scc1 {lbl}_done")
    a("s_nop 1")
    a(f"s_cbranch_vccnz {lbl}_poll")
    a.label(f"{lbl}_done")
    if atomic: a("s_mov_b64 exec, -1")

def mb_wait(a, lbl, addr_v, off, val):
    a(f"s_mov_b32 s{S_CNT}, 0")
    a.label(lbl)
    a("s_sleep 1")
    a(f"ds_read_b32 v{T+1}, v{addr_v} offset:{off}")
    a(f"s_add_u32 s{S_CNT}, s{S_CNT}, 1")
    a("s_waitcnt lgkmcnt(0)")
    a(f"v_readfirstlane_b32 s{S_T0}, v{T+1}")
    a(f"s_cmp_ge_u32 s{S_CNT}, {SPIN_MAX*64}")
    a(f"s_cbranch_scc1 {lbl}_done")
    a(f"s_cmp_lt_u32 s{S_T0}, {val}")
    a(f"s_cbranch_scc1 {lbl}")
    a.label(f"{lbl}_done")

def schedule():
    seq = []
    nxt = 2
    def free_upto(p):
        nonlocal nxt
        r = list(range(nxt, min(p+4, 17)+1)); nxt = max(nxt, min(p+4, 17)+1); return r
    for t in range(9):
        need = [pos_s1(t)] + ([KPOS] if t == KPOS else [])
        cons = pos_s1(t-1) if t > 0 else -1
        if t == KPOS: cons = KPOS-1
        seq.append((need, free_upto(cons)))
    seq.append(([], free_upto(9)))
    seq.append(([10, 11], []))
    seq.append(([], free_upto(10)))
    seq.append(([12, 13], free_upto(11)))
    seq.append(([], free_upto(12)))
    seq.append(([14, 15], free_upto(13)))
    seq.append(([], []))
    seq.append(([16, 17], []))
    return seq

def gen_loader(a):
    a.vm = []; a.nst = 1
    if OPT["prio"]: a(f"s_setprio {OPT['prio']}")
    a(f"v_lshrrev_b32 v{T+1}, 4, v1")
    a(f"s_lshl_b32 s{S_T0}, s{S_W}, 4")
    a(f"v_add_u32 v{T+3}, s{S_T0}, v{T+1}")
    a(f"v_lshlrev_b32 v{T+3}, 13, v{T+3}")
    a(f"v_and_b32 v{T+4}, 15, v1")
    a(f"v_lshlrev_b32 v{T+5}, 2, v{T+1}")
    a(f"v_xor_b32 v{T+4}, v{T+4}, v{T+5}")
    a(f"v_lshl_add_u32 v{VQ}, v{T+4}, 4, v{T+3}")
    for j in range(1,4):
        a(f"v_add_u32 v{VQ+j}, {31744*j}, v{VQ}")
    a(f"v_lshrrev_b32 v{T}, 3, v1")
    a(f"v_and_b32 v{T+2}, 7, v1")
    a(f"s_lshl_b32 s{S_T0}, s{S_W}, 5")
    a(f"v_add_u32 v{T+3}, s{S_T0}, v{T}")
    a(f"v_mul_u32_u24 v{T+3}, 1152, v{T+3}")
    a(f"v_xor_b32 v{T+2}, v{T+2}, v{T+1}")
    a(f"v_lshl_add_u32 v{VX}, v{T+2}, 4, v{T+3}")
    a(f"v_xor_b32 v{T+2}, 4, v{T+2}")
    a(f"v_lshl_add_u32 v{VX+1}, v{T+2}, 4, v{T+3}")
    a(f"v_add_u32 v{VX+1}, 8192, v{VX+1}")
    a(f"v_add_u32 v{VX+2}, 16384, v{VX}")
    a(f"v_add_u32 v{VX+3}, 16384, v{VX+1}")
    a(f"s_mul_i32 s{S_SOX}, s{S_RB}, 147456")
    a(f"s_lshl_b32 s{S_SOQ}, s{S_H}, 8")
    ORD1 = {0: [[0,1,2,3,4,5,6,7,8]]*4,
            1: [[0,1,4,2,3,5,8,6,7],[1,0,2,5,3,4,6,7,8],[2,0,1,3,6,4,5,7,8],[0,3,1,2,4,7,5,6,8]],
            2: [[0,1,2,4,3,5,6,8,7],[1,0,2,3,5,4,6,7,8],[0,2,1,3,4,6,5,7,8],[0,1,3,2,4,5,7,6,8]],
            3: [[0,4,1,2,3,8,5,6,7],[1,0,5,2,3,4,6,7,8],[2,0,1,6,3,4,5,7,8],[3,0,1,2,7,4,5,6,8]]}[OPT["rot1"]]
    pack = lambda o: sum(c << (4*i) for i, c in enumerate(o))
    a(f"s_sub_u32 s{S_T0}, s{S_RB}, s{S_HL}")
    a(f"s_and_b32 s{S_T0}, s{S_T0}, 3")
    a(f"s_mov_b32 s98, {pack(ORD1[0]) & 0xffffffff}")
    a(f"s_mov_b32 s99, {pack(ORD1[0]) >> 32}")
    for j in range(1, 4):
        if ORD1[j] != ORD1[0]:
            a(f"s_cmp_eq_u32 s{S_T0}, {j}")
            a(f"s_cselect_b32 s98, {pack(ORD1[j]) & 0xffffffff}, s98")
            a(f"s_cselect_b32 s99, {pack(ORD1[j]) >> 32}, s99")
    for b_, n_ in ((S_X, 589824), (S_WQ, 4718592)):
        a(f"s_mov_b32 s{b_+2}, {n_}")
        a(f"s_mov_b32 s{b_+3}, 0x20000")
    a(f"s_cmp_eq_u32 s{S_BR}, 0")
    a("s_waitcnt lgkmcnt(0)")
    a(f"s_cselect_b32 s{S_WQ}, s42, s52")
    a(f"s_cselect_b32 s{S_WQ+1}, s43, s53")
    a(f"s_cselect_b32 s{S_X}, s36, s46")
    a(f"s_cselect_b32 s{S_X+1}, s37, s47")
    a(f"s_and_b32 s{S_WQ+1}, s{S_WQ+1}, 0xffff")
    a(f"s_and_b32 s{S_X+1}, s{S_X+1}, 0xffff")
    a.stamp()
    def dma_s1(t):
        p = pos_s1(t)
        a(f"s_bfe_u32 s{S_CH}, s{98 + (t>>3)}, {(4 << 16) | (4*(t&7))}")
        a(f"s_add_u32 m0, s{S_LW4}, {base(p)+16384}")
        a(f"s_lshl_b32 s{S_T2}, s{S_CH}, 19")
        a(f"s_add_u32 s{S_T2}, s{S_T2}, s{S_SOQ}")
        for j in range(4):
            a.vmop(f"buffer_load_dwordx4 v{VQ+j}, s[{S_WQ}:{S_WQ+3}], s{S_T2} offen offset:{1024*j}{nt('ntq')} lds", f"p{p}")
        a(f"s_add_u32 m0, s{S_LW4}, {base(p)}")
        a(f"s_lshl_b32 s{S_T2}, s{S_CH}, 7")
        a(f"s_add_u32 s{S_T2}, s{S_T2}, s{S_SOX}")
        for j in range(4):
            a.vmop(f"buffer_load_dwordx4 v{VX+j}, s[{S_X}:{S_X+3}], s{S_T2} offen offset:{1024*j}{nt('ntx')} lds", f"p{p}")
    def dma_kv(srdb, soff, p, ntk):
        for half in range(2):
            a(f"s_add_u32 m0, s{S_LW8}, {base(p) + half*4096}")
            if half == 0: a(f"s_mov_b32 s{S_T2}, s{soff}")
            else: a(f"s_add_u32 s{S_T2}, s{soff}, 4096")
            for j in range(4):
                a.vmop(f"buffer_load_dwordx4 v{VK+j}, s[{srdb}:{srdb+3}], s{S_T2} offen offset:{1024*j}{nt(ntk)} lds", f"p{p}")
    def dma_wo(u, p):
        for j in range(9):
            if j%4 == 0:
                a(f"s_add_u32 m0, s{S_LWO}, {base(p) + 4096*(j>>2)}")
                a("s_nop 0")
            a.vmop(f"buffer_load_dwordx4 v{VO+j}, s[{S_WO}:{S_WO+3}], s{S_SOW[u]} offen offset:{1024*(j&3)}{nt('nto')} lds", f"p{p}")
    def dma_item(p):
        if p == KPOS: dma_kv(S_K, S_SOK, p, "ntk")
        elif p < 10: dma_s1(p if p < KPOS else p-1)
        else:
            u = (p-10)>>1
            if p & 1: dma_wo(u, p)
            else: dma_kv(S_V, S_SOV[u], p, "ntv")
    def setup_kv():
        a(f"s_mov_b32 s{S_T3}, 4194304")
        a(f"s_cmp_eq_u32 s{S_BR}, 0")
        for b_, idx, na in ((S_K,1,2097152),(S_V,2,2097152),(S_WO,4,None)):
            la = 36+2*idx; lb = 46+2*idx
            a(f"s_cselect_b32 s{b_}, s{la}, s{lb}")
            a(f"s_cselect_b32 s{b_+1}, s{la+1}, s{lb+1}")
            if na: a(f"s_cselect_b32 s{b_+2}, {na}, s{S_T3}")
            else: a(f"s_mov_b32 s{b_+2}, 4718592")
            a(f"s_mov_b32 s{b_+3}, 0x20000")
        for b_ in (S_K, S_V, S_WO): a(f"s_and_b32 s{b_+1}, s{b_+1}, 0xffff")
        a(f"v_lshrrev_b32 v{T}, 4, v1")
        a(f"v_and_b32 v{T+1}, 15, v1")
        for j in range(4):
            a(f"v_add_u32 v{VK+j}, {4*j}, v{T}")
            a(f"v_xor_b32 v{VK+j}, v{VK+j}, v{T+1}")
            a(f"v_lshlrev_b32 v{VK+j}, 4, v{VK+j}")
            a(f"v_lshl_add_u32 v{VK+j}, v{T}, 8, v{VK+j}")
        kv_soffset(a, S_SOK, S_H)
    def setup_vo(js):
        a(f"s_movk_i32 s{S_T0}, 3641")
        for j in js:
            a(f"v_add_u32 v{T}, {64*j}, v1")
            a(f"v_mul_u32_u24 v{T+1}, s{S_T0}, v{T}")
            a(f"v_lshrrev_b32 v{T+1}, 16, v{T+1}")
            a(f"v_mul_u32_u24 v{T+2}, 18, v{T+1}")
            a(f"v_sub_u32 v{T+2}, v{T}, v{T+2}")
            a(f"v_and_b32 v{T+3}, 0x13, v{T+1}")
            a(f"v_bfe_u32 v{T+4}, v{T+1}, 2, 1")
            a(f"v_lshl_add_u32 v{T+3}, v{T+4}, 3, v{T+3}")
            a(f"v_bfe_u32 v{T+4}, v{T+1}, 3, 1")
            a(f"v_lshl_add_u32 v{T+3}, v{T+4}, 2, v{T+3}")
            a(f"v_mul_u32_u24 v{T+3}, 1152, v{T+3}")
            a(f"v_lshl_add_u32 v{VO+j}, v{T+2}, 4, v{T+3}")
            if j&3: a(f"v_subrev_u32 v{VO+j}, {1024*(j&3)}, v{VO+j}")
    def setup_heads(us):
        for u in us:
            head_u(a, u)
            a(f"s_lshl_b32 s{S_T2}, s{S_T3}, 2")
            a(f"s_add_u32 s{S_T2}, s{S_T2}, s{S_W}")
            a(f"s_mul_i32 s{S_SOW[u]}, s{S_T2}, {32*1152}")
            a(f"s_mul_i32 s{S_T2}, s{S_CP}, 288")
            a(f"s_add_u32 s{S_SOW[u]}, s{S_SOW[u]}, s{S_T2}")
            a(f"s_mov_b32 s{S_SPU[u]}, s{S_T3}")
            kv_soffset(a, S_SOV[u], S_T3)
    PL = RB; PE = RB+32
    def setup_p():
        lcg(a, TAGP)
        a(f"v_lshlrev_b32 v{VL}, 4, v1")
        a(f"v_and_b32 v{T}, 3, v1")
        a(f"v_lshlrev_b32 v{T}, 1, v{T}")
        a(f"v_sub_u32 v{T}, 32, v{T}")
        a(f"s_lshl_b32 s{S_T0}, s{S_BR}, 4")
        a(f"s_add_u32 s{S_T0}, s{S_T0}, s{S_B}")
        a(f"s_lshl_b32 s{S_SOP}, s{S_T0}, 16")
        for u in range(4):
            a(f"s_and_b32 s{S_T0}, s{S_SPU[u]}, 3")
            a(f"v_readlane_b32 s{S_T1}, v{TAGP}, s{S_T0}")
            a(f"s_lshl_b32 s{S_SPU[u]}, s{S_SPU[u]}, 11")
            a(f"s_add_u32 s{S_SPU[u]}, s{S_SPU[u]}, s{S_SOP}")
            a(f"v_alignbit_b32 v{PE+2*u}, s{S_T1}, s{S_T1}, v{T}")
            a(f"v_lshlrev_b32 v{PE+2*u+1}, 1, v{PE+2*u}")
        a(f"s_mov_b32 s{S_C}, 0x07050301")
        a(f"s_mov_b32 s{S_TJ}, 0x7fff7fff")
        a(f"v_add_u32 v{T+6}, s{S_LW8}, v{VL}")
        a(f"v_add_u32 v{T+6}, {base(14)}, v{T+6}")
    def p_loads(track):
        for uu in range(4):
            for it in range(2):
                ins = f"buffer_load_dwordx4 v[{PL+8*uu+4*it}:{PL+8*uu+4*it+3}], v{VL}, s[{S_WS}:{S_WS+3}], s{S_SPU[uu]} offen offset:{1024*it} sc1"
                if track: a.vmop(ins, "Pld")
                else: a(ins)
    def p_check():
        a.wait_vm("Pld")
        a(f"s_mov_b32 s{S_CNT}, 0")
        a("s_branch L_pc_chk")
        a.label("L_pc_retry")
        a("s_sleep 4")
        p_loads(False)
        a("s_waitcnt vmcnt(0)")
        a.label("L_pc_chk")
        a(f"v_mov_b32 v{T}, 0")
        for q in range(8):
            d = PL+4*q; e = PE+2*(q>>1)
            a(f"v_perm_b32 v{T+1}, v{d+1}, v{d}, s{S_C}")
            a(f"v_perm_b32 v{T+2}, v{d+3}, v{d+2}, s{S_C}")
            a(f"v_xor_b32 v{T+1}, v{T+1}, v{e}")
            a(f"v_xor_b32 v{T+2}, v{T+2}, v{e+1}")
            a(f"v_or3_b32 v{T}, v{T}, v{T+1}, v{T+2}")
        a(f"v_and_b32 v{T}, 0x80808080, v{T}")
        a(f"v_cmp_ne_u32 vcc, 0, v{T}")
        a(f"s_add_u32 s{S_CNT}, s{S_CNT}, 1")
        a(f"s_cmp_ge_u32 s{S_CNT}, {SPIN_MAX}")
        a("s_cbranch_scc1 L_pc_done")
        a("s_nop 1")
        a("s_cbranch_vccnz L_pc_retry")
        a.label("L_pc_done")
        for q in range(8):
            d = PL+4*q
            for k in range(4): a(f"v_and_b32 v{d+k}, s{S_TJ}, v{d+k}")
    def p_write():
        for q in range(8):
            d = PL+4*q
            a(f"ds_write_b128 v{T+6}, v[{d}:{d+3}] offset:{1024*q}")
        a("s_waitcnt lgkmcnt(0)")
    def setup_e():
        a(f"v_and_b32 v{T}, 3, v1")
        a(f"v_lshlrev_b32 v{T}, 2, v{T}")
        a(f"v_mov_b32 v{T+1}, 0")
        a(f"ds_write_b32 v{T}, v{T+1} offset:{0}") if False else None
        a(f"v_add_u32 v{T}, {MBOX}, v{T}")
        a(f"ds_write_b32 v{T}, v{T+1}")
        e_addr_r(a, T, T+1)
        a(f"s_mov_b32 s{S_T1}, {E_BASE}")
        a.vmop(f"buffer_load_dword v{TAGR}, v{T}, s[{S_WS}:{S_WS+3}], s{S_T1} offen sc1", "E")
        a(f"v_and_b32 v{T}, 3, v1")
        a(f"s_and_b32 s{S_T0}, s2, 0x9f")
        a(f"v_lshlrev_b32 v{T}, 5, v{T}")
        a(f"v_add_u32 v{T}, s{S_T0}, v{T}")
        a(f"v_lshlrev_b32 v{T}, 2, v{T}")
        a.vmop(f"buffer_load_dword v{TAGP}, v{T}, s[{S_WS}:{S_WS+3}], s{S_T1} offen sc1", "E")
        a("s_waitcnt lgkmcnt(0)")
    def setup_red():
        rgroup(a)
        red_scalars(a)
        lcg(a, TAGR)
        a(f"v_and_b32 v{T}, 7, v1")
        a(f"s_lshl_b32 s{S_T0}, s{S_RG}, 3")
        a(f"s_add_u32 s{S_T1}, s{S_T0}, s{S_SPLIT}")
        a(f"s_lshl_b32 s{S_T1}, s{S_T1}, 10")
        a(f"s_add_u32 s{S_T1}, s{S_T1}, {FR_BASE}")
        a(f"v_lshl_add_u32 v{FRA}, v{T}, 7, s{S_T1}")
        a(f"v_and_b32 v{T+8}, 15, v1")
        a(f"v_mul_u32_u24 v{T+8}, 2304, v{T+8}")
        a(f"v_bfe_u32 v{T+3}, v1, 4, 1")
        a(f"v_lshl_add_u32 v{T+8}, v{T+3}, 5, v{T+8}")
        a(f"v_bfe_u32 v{T+3}, v1, 5, 1")
        a(f"v_lshl_add_u32 v{T+8}, v{T+3}, 4, v{T+8}")
        a(f"s_lshl_b32 s{S_T0}, s{S_W}, 6")
        a(f"v_add_u32 v{T+8}, s{S_T0}, v{T+8}")
    dma_item(0); dma_item(1)
    setup_kv()
    srd(a, S_WS, 60, 61, WS_USED)
    srd(a, S_OUT, 56, 57, 1179648)
    a.stamp()
    extra = {1: lambda: (setup_e(), setup_heads([0])), 2: lambda: setup_vo([0,1,2]), 3: lambda: setup_vo([3,4,5]), 4: lambda: setup_vo([6,7,8]),
             5: lambda: (a(f"s_mul_i32 s{S_LWO}, s{S_W}, 9216"), setup_heads([1])), 6: lambda: setup_heads([2,3]), 10: setup_p, 12: setup_red}
    if OPT['pearly']: extra[14] = p_check; extra[15] = p_write
    else: extra[15] = lambda: (p_check(), p_write())
    for i,(need,iss) in enumerate(schedule()):
        if need: a.wait_vm(*[f"p{s}" for s in need])
        a("s_barrier")
        if i == (13 if OPT['pearly'] else 14): p_loads(True)
        if i == 14 and OPT['lprio2']: a('s_setprio 1')
        for s in iss: dma_item(s)
        if i in extra: extra[i]()
        a.stamp()
    LD=RB; RA=RB+32
    for r in range(8): a(f"v_mov_b32 v{RA+r}, 0")
    a(f"v_mov_b32 v{T}, {MBOX}")
    if OPT["onep"]:
        a(f"s_cmp_lg_u32 s{S_W}, 0")
        a("s_cbranch_scc1 L_lgo")
        mb_wait(a, "L_mb", T, 0, 4)
        spin(a, "L_rw", FRA, TAGR, False, OPT["gsl"], OPT["apoll"])
        a(f"v_mov_b32 v{T+1}, 1")
        a(f"ds_write_b32 v{T}, v{T+1} offset:4")
        a("s_branch L_lred")
        a.label("L_lgo")
        mb_wait(a, "L_go", T, 4, 1)
        a.label("L_lred")
    else:
        mb_wait(a, "L_mb", T, 0, 4)
        spin(a, "L_rw", FRA, TAGR, False, OPT["gsl"], OPT["apoll"])
    a.stamp()
    for j in range(8):
        a(f"buffer_load_dwordx4 v[{LD+4*j}:{LD+4*j+3}], v{VL}, s[{S_WS}:{S_WS+3}], s{S_RD} offen sc1")
        if j < 7: a(f"s_add_u32 s{S_RD}, s{S_RD}, {SLICE}")
    for j in range(8):
        a(f"s_waitcnt vmcnt({7-j})")
        for d in range(4):
            a(f"v_dot2c_f32_bf16 v{RA+2*d}, s{S_ONE}, v{LD+4*j+d}")
            a(f"v_dot2c_f32_bf16 v{RA+2*d+1}, s{S_ONEH}, v{LD+4*j+d}")
    a("s_nop 2")
    for d in range(4): a(f"v_cvt_pk_bf16_f32 v{LD+d}, v{RA+2*d}, v{RA+2*d+1}")
    a("s_nop 1")
    a(f"v_permlane16_swap_b32 v{LD}, v{LD+2}")
    a(f"v_permlane16_swap_b32 v{LD+1}, v{LD+3}")
    a("s_nop 1")
    a(f"buffer_store_dwordx4 v[{LD}:{LD+3}], v{T+8}, s[{S_OUT}:{S_OUT+3}], s{S_OA} offen")
    a.label("L_ldone")
    stamp_out(a, 1)
    a("s_endpgm")

def gen_compute_pro(a):
    a.vm = []; a.nst = 1
    if OPT["cprio"]: a(f"s_setprio {OPT['cprio']}")
    if OPT["cpf"]:
        a("s_getpc_b64 s[98:99]")
        a.label("L_pc")
        a(f"s_lshr_b32 s{S_T0}, s2, 3")
        a(f"s_mul_i32 s{S_T0}, s{S_T0}, 640")
        a(f"v_min_u32 v{T}, 4, v1")
        a(f"v_lshlrev_b32 v{T}, 7, v{T}")
        a(f"v_add_u32 v{T}, s{S_T0}, v{T}")
        a(f"v_min_u32 v{T}, L_end-L_pc, v{T}")
        a(f"s_cmp_lg_u32 s{S_W}, 0")
        a("s_cbranch_scc1 L_nopf")
        a(f"global_load_dword v{T+7}, v{T}, s[98:99]")
        a.label("L_nopf")
    a(f"v_and_b32 v{T}, 31, v1")
    a(f"v_lshrrev_b32 v{T+1}, 5, v1")
    a(f"v_bfe_u32 v{T+2}, v1, 1, 3")
    a(f"v_xor_b32 v{T+2}, v{T+2}, v{T+1}")
    a(f"v_lshlrev_b32 v{T+2}, 4, v{T+2}")
    a(f"v_lshl_add_u32 v{T+2}, v{T}, 7, v{T+2}")
    a(f"v_add_u32 v{AX}, s{S_LW4}, v{T+2}")
    for ks in range(1,4): a(f"v_xor_b32 v{AX+ks}, {32*ks}, v{AX}")
    a(f"v_bfe_u32 v{T}, v1, 2, 2")
    a(f"v_lshl_add_u32 v{T+2}, v{T+1}, 3, v{T}")
    a(f"v_lshlrev_b32 v{T+2}, 8, v{T+2}")
    a(f"v_lshl_add_u32 v{T+2}, v{T}, 6, v{T+2}")
    a(f"v_bfe_u32 v{T+3}, v1, 4, 1")
    a(f"v_lshl_add_u32 v{T+2}, v{T+3}, 5, v{T+2}")
    a(f"v_and_b32 v{T+3}, 1, v1")
    a(f"v_lshl_add_u32 v{T+2}, v{T+3}, 4, v{T+2}")
    a(f"v_bfe_u32 v{T+3}, v1, 1, 1")
    a(f"v_lshl_add_u32 v{T+2}, v{T+3}, 3, v{T+2}")
    a(f"v_add_u32 v{AQ}, 16384, v{T+2}")
    for t in range(1,4): a(f"v_xor_b32 v{AQ+t}, {64*t}, v{AQ}")
    a.stamp()


def gen_compute(a):
    a.vm = []; a.nst = 2 if OPT['stamp'] == 1 else 1
    fill = []
    F = fill.append
    for ks in range(4): F(f"v_add_u32 v{AX+4+ks}, {2*SLOT}, v{AX+ks}")
    for t in range(4): F(f"v_add_u32 v{AQ+4+t}, {2*SLOT}, v{AQ+t}")
    class FA_:
        def __call__(self, s): F(s)
    fa = FA_()
    F("s_waitcnt lgkmcnt(0)")
    fill.pop()
    srd(fa, S_WS, 60, 61, WS_USED)
    srd(fa, S_OUT, 56, 57, 1179648)
    F(f"v_and_b32 v{T}, 31, v1")
    F(f"v_and_b32 v{T+2}, 15, v1")
    F(f"v_xor_b32 v{T+2}, v{T+2}, v{T+1}")
    F(f"v_lshlrev_b32 v{T+2}, 4, v{T+2}")
    F(f"v_lshl_add_u32 v{T+2}, v{T}, 8, v{T+2}")
    F(f"v_add_u32 v{T+9}, s{S_LW8}, v{T+2}")
    if base(KPOS) >= 65536-0: F(f"v_add_u32 v{T+9}, {base(KPOS)}, v{T+9}")
    e_addr_r(fa, T+3, T+4)
    F(f"s_mov_b32 s{S_T1}, {E_BASE}")
    F(("vm", f"buffer_load_dword v{TAGR}, v{T+3}, s[{S_WS}:{S_WS+3}], s{S_T1} offen sc1", "E"))
    rgroup(fa)
    F(f"v_lshrrev_b32 v{T}, 4, v1")
    F(f"v_and_b32 v{T+3}, 15, v1")
    F(f"v_xor_b32 v{T+2}, v{T}, v{T+3}")
    F(f"v_lshlrev_b32 v{T+2}, 4, v{T+2}")
    F(f"v_lshl_add_u32 v{T+2}, v{T+3}, 8, v{T+2}")
    F(f"v_add_u32 v{T+2}, {base(10)}, v{T+2}")
    F(f"v_add_u32 v{AV}, s{S_LW8}, v{T+2}")
    for ks in range(1,4): F(f"v_xor_b32 v{AV+ks}, {64*ks}, v{AV}")
    F(f"v_lshlrev_b32 v{VL}, 4, v1")
    F(f"v_lshlrev_b32 v{T}, 4, v{T+1}")
    F(f"v_bfe_u32 v{T+2}, v1, 4, 1")
    F(f"v_lshl_add_u32 v{T}, v{T+2}, 2, v{T}")
    F(f"v_bfe_u32 v{T+4}, v1, 2, 2")
    F(f"v_add_u32 v{T}, v{T}, v{T+4}")
    F(f"v_mul_u32_u24 v{T}, 288, v{T}")
    F(f"v_and_b32 v{T+4}, 3, v1")
    F(f"v_lshl_add_u32 v{T}, v{T+4}, 3, v{T}")
    F(f"v_add_u32 v{AO}, {base(11)}, v{T}")
    F(f"v_add_u32 v{AO+1}, {base(13)}, v{T}")
    F(f"v_lshlrev_b32 v{T+2}, 10, v{T+2}")
    F(f"v_lshl_add_u32 v{T+2}, v{T+1}, 8, v{T+2}")
    F(f"v_lshl_add_u32 v{T+8}, v{T+3}, 4, v{T+2}")
    F(f"v_mul_u32_u24 v{T+6}, 2304, v{T+3}")
    F(f"v_lshrrev_b32 v{T+2}, 4, v1")
    F(f"v_lshlrev_b32 v{T+2}, 3, v{T+2}")
    F(f"v_add_u32 v{T+2}, 256, v{T+2}")
    F(f"v_add_u32 v{T+6}, v{T+6}, v{T+2}")
    F(f"s_lshl_b32 s{S_T0}, s{S_BR}, 4")
    F(f"s_add_u32 s{S_T0}, s{S_T0}, s{S_B}")
    F(f"s_lshl_b32 s{S_SOP}, s{S_T0}, 16")
    F(f"s_lshl_b32 s{S_T0}, s{S_H}, 11")
    F(f"s_add_u32 s{S_SOP}, s{S_SOP}, s{S_T0}")
    F(f"s_mov_b32 s{S_C}, 0x3e0293ee")
    F(f"s_mov_b32 s{S_CC}, 0x3e0293ee")
    F(f"s_mov_b32 s{S_CC+1}, 0x3e0293ee")
    F(f"s_lshl_b32 s{S_T0}, s{S_RG}, 2")
    F(f"s_add_u32 s{S_T0}, s{S_T0}, s{S_W}")
    F(f"s_lshl_b32 s{S_T0}, s{S_T0}, 4")
    F(f"s_add_u32 s{S_T0}, s{S_T0}, s{S_SPLIT}")
    F(f"s_mul_i32 s{S_PW}, s{S_T0}, {SLICE}")
    F(f"s_add_u32 s{S_PW}, s{S_PW}, {PART_BASE}")
    F(f"s_add_u32 s{S_PW1}, s{S_PW}, {8*SLICE}")
    red_scalars(fa)
    F(f"s_lshl_b32 s{S_T0}, s{S_W}, 10")
    F(f"s_sub_u32 s{S_RD}, s{S_RD}, s{S_T0}")
    fill2 = []
    PM = TAGP
    PMASK = [43, 45, PK+6, PK+7]
    def tags_setup():
        a.wait_vm("E")
        lcg(a, TAGR)
        a(f"v_and_b32 v{T}, 3, v1")
        a(f"v_readlane_b32 s{S_TAG}, v{TAGR}, s{S_SPLIT}")
        a(f"v_lshlrev_b32 v{T}, 1, v{T}")
        a(f"v_sub_u32 v{T}, 32, v{T}")
        a(f"v_mov_b32 v{VTG}, s{S_TAG}")
        a(f"v_alignbit_b32 v{T}, v{VTG}, v{VTG}, v{T}")
        a(f"v_lshlrev_b32 v{T+2}, 1, v{T}")
        a(f"v_and_b32 v{T}, 0x80808080, v{T}")
        a(f"v_and_b32 v{T+2}, 0x80808080, v{T+2}")
        a(f"s_mov_b32 s{S_T0}, 0x010c000c")
        a(f"s_mov_b32 s{S_T1}, 0x030c020c")
        a(f"v_perm_b32 v{PMASK[0]}, v{T}, v{T}, s{S_T0}")
        a(f"v_perm_b32 v{PMASK[1]}, v{T}, v{T}, s{S_T1}")
        a(f"v_perm_b32 v{PMASK[2]}, v{T+2}, v{T+2}, s{S_T0}")
        a(f"v_perm_b32 v{PMASK[3]}, v{T+2}, v{T+2}, s{S_T1}")
    def filler(n):
        for _ in range(n):
            if not fill: return
            x = fill.pop(0)
            if isinstance(x, tuple): a.vmop(x[1], x[2])
            else: a(x)

    def rdB(st, ks, buf):
        slot = pos_s1(st)%4; s2 = (slot>>1)*4; off = (slot&1)*SLOT
        a.ds(f"ds_read_b128 a[{FB+4*buf}:{FB+4*buf+3}], v{AX+s2+ks} offset:{off}", f"B{st}_{ks}")
    def rdA(st, ks, t, buf):
        slot = pos_s1(st)%4; s2 = (slot>>1)*4; off = (slot&1)*SLOT + ks*4096
        a.ds(f"ds_read_b64_tr_b16 a[{FA+4*buf}:{FA+4*buf+1}], v{AQ+s2+t} offset:{off}", f"A{st}_{ks}_{t}")
        a.ds(f"ds_read_b64_tr_b16 a[{FA+4*buf+2}:{FA+4*buf+3}], v{AQ+s2+t} offset:{off+1024}", f"A{st}_{ks}_{t}")
    def mm32(st, ks, t, abuf, bbuf):
        a.wait_lg(f"B{st}_{ks}", f"A{st}_{ks}_{t}")
        c = "0" if (st == 0 and ks == 0) else f"v[{ACC+16*t}:{ACC+16*t+15}]"
        a(f"v_mfma_f32_32x32x16_bf16 v[{ACC+16*t}:{ACC+16*t+15}], a[{FA+4*abuf}:{FA+4*abuf+3}], a[{FB+4*bbuf}:{FB+4*bbuf+3}], {c}")
    def rdK(kk):
        koff = base(KPOS) if base(KPOS) < 65536 else 0
        a(f"v_xor_b32 v{T+5}, {32*kk}, v{T+9}")
        a.ds(f"ds_read_b128 a[{KF+4*kk}:{KF+4*kk+3}], v{T+5} offset:{koff}", f"K{kk}")
    a("s_waitcnt lgkmcnt(0)")
    if OPT["tlb"]:
        a(f"s_cmp_lg_u32 s{S_W}, 1")
        a("s_cbranch_scc1 L_notlb")
        kv_soffset(a, S_T2, S_H)
        a(f"s_cmp_eq_u32 s{S_BR}, 0")
        a(f"s_cselect_b32 s98, s38, s48")
        a(f"s_cselect_b32 s99, s39, s49")
        a(f"v_mov_b32 v{T}, s{S_T2}")
        a(f"global_load_dword v{T+7}, v{T}, s[98:99]")
        a(f"s_cmp_eq_u32 s{S_BR}, 0")
        a(f"s_cselect_b32 s98, s40, s50")
        a(f"s_cselect_b32 s99, s41, s51")
        a(f"global_load_dword v{T+7}, v{T}, s[98:99]")
        a(f"s_cselect_b32 s98, s44, s54")
        a(f"s_cselect_b32 s99, s45, s55")
        a(f"s_mul_i32 s{S_T0}, s{S_SPLIT}, 589824")
        a(f"v_and_b32 v{T}, 1, v1")
        a(f"v_mul_u32_u24 v{T}, 589820, v{T}")
        a(f"v_add_u32 v{T}, s{S_T0}, v{T}")
        a(f"global_load_dword v{T+7}, v{T}, s[98:99]")
        a(f"s_mul_i32 s{S_T0}, s{S_RB}, {128*2304}")
        a(f"v_mov_b32 v{T}, s{S_T0}")
        a(f"global_load_dword v{T+7}, v{T}, s[56:57]")
        a(f"v_and_b32 v{T}, 7, v1")
        a(f"v_lshlrev_b32 v{T}, 21, v{T}")
        a(f"v_add_u32 v{T}, {(2<<20)-4}, v{T}")
        a(f"global_load_dword v{T+7}, v{T}, s[60:61] sc1")
        a.label("L_notlb")
    a("s_barrier")
    a.stamp(2)
    rdB(0,0,0)
    for t in range(4): rdA(0,0,t,t)
    for st in range(8):
        for ks in range(3):
            for t in range(4):
                mm32(st, ks, t, t, ks&1)
                if t == 0: rdB(st, ks+1, (ks+1)&1)
                rdA(st, ks+1, t, t)
                if st == KPOS and ks < 2: rdK(4*ks+t)
                else: filler(OPT["nfill"] if st else 3)
            if st == 7 and ks == 1: tags_setup()
        mm32(st, 3, 0, 0, 1)
        mm32(st, 3, 1, 1, 1)
        a.wait_lg0()
        a("s_barrier")
        a.stamp()
        if st < 7:
            rdB(st+1, 0, 0); rdA(st+1, 0, 0, 0); rdA(st+1, 0, 1, 1)
            mm32(st, 3, 2, 2, 1); rdA(st+1, 0, 2, 2)
            mm32(st, 3, 3, 3, 1); rdA(st+1, 0, 3, 3)
        else:
            rdB(8, 0, 0); rdA(8, 0, 0, 0); rdA(8, 1, 0, 1); rdB(8, 2, 2)
            mm32(st, 3, 2, 2, 1); rdA(8, 2, 0, 2); rdB(8, 3, 3)
            mm32(st, 3, 3, 3, 1); rdB(8, 1, 1); rdA(8, 3, 0, 3)
    assert not fill, len(fill)
    def qcvt(t):
        for r in range(8): a(f"v_cvt_pk_bf16_f32 v{QB+8*t+r}, v{ACC+16*t+2*r}, v{ACC+16*t+2*r+1}")
    for t in range(4):
        for ks in range(4):
            mm32(8, ks, t, ks, ks)
            if t < 3: rdA(8, ks, t+1, ks)
            if t == 3 and ks == 1:
                a.wait_lg0()
                a("s_barrier")
                a.stamp(2)
                a("s_nop 3")
            if ks == 2 and t > 0: qcvt(t-1)
    for kk in range(8):
        if kk == 6: a("s_nop 0")
        c = "0" if kk == 0 else f"v[{SA}:{SA+15}]"
        a(f"v_mfma_f32_32x32x16_bf16 v[{SA}:{SA+15}], a[{KF+4*kk}:{KF+4*kk+3}], v[{QB+4*kk}:{QB+4*kk+3}], {c}")
        if kk == 5:
            a("s_nop 5")
            qcvt(3)
    a("s_nop 11")
    M=T+4; M2=T+5
    a(f"v_max3_f32 v{M}, v{SA}, v{SA+1}, v{SA+2}")
    a(f"v_max3_f32 v{M2}, v{SA+3}, v{SA+4}, v{SA+5}")
    a(f"v_max3_f32 v{M}, v{M}, v{SA+6}, v{SA+7}")
    a(f"v_max3_f32 v{M2}, v{M2}, v{SA+8}, v{SA+9}")
    a(f"v_max3_f32 v{M}, v{M}, v{SA+10}, v{SA+11}")
    a(f"v_max3_f32 v{M2}, v{M2}, v{SA+12}, v{SA+13}")
    a(f"v_max3_f32 v{M}, v{M}, v{SA+14}, v{SA+15}")
    a(f"v_max_f32 v{M}, v{M}, v{M2}")
    a(f"v_mov_b32 v{M2}, v{M}")
    a("s_nop 1")
    a(f"v_permlane32_swap_b32 v{M}, v{M2}")
    a("s_nop 1")
    a(f"v_max_f32 v{M}, v{M}, v{M2}")
    a(f"v_mul_f32 v{M}, s{S_C}, v{M}")
    if OPT["pksm"]:
        a(f"v_mov_b32 v{M2}, v{M}")
        a(f"s_mov_b32 s{S_C+1}, s{S_C}") if False else None
        for r in range(0,16,2): a(f"v_pk_fma_f32 v[{SA+r}:{SA+r+1}], v[{SA+r}:{SA+r+1}], s[{S_CC}:{S_CC+1}], v[{M}:{M2}] neg_lo:[0,0,1] neg_hi:[0,0,1]")
    else:
        for r in range(16): a(f"v_fma_f32 v{SA+r}, v{SA+r}, s{S_C}, -v{M}")
    for r in range(16): a(f"v_exp_f32 v{SA+r}, v{SA+r}")
    a("s_nop 0")
    if OPT["pksm"]:
        a(f"v_pk_add_f32 v[{M}:{M2}], v[{SA}:{SA+1}], v[{SA+2}:{SA+3}]")
        a(f"v_pk_add_f32 v[{QB}:{QB+1}], v[{SA+4}:{SA+5}], v[{SA+6}:{SA+7}]")
        a(f"v_pk_add_f32 v[{M}:{M2}], v[{M}:{M2}], v[{SA+8}:{SA+9}]")
        a(f"v_pk_add_f32 v[{QB}:{QB+1}], v[{QB}:{QB+1}], v[{SA+10}:{SA+11}]")
        a(f"v_pk_add_f32 v[{M}:{M2}], v[{M}:{M2}], v[{SA+12}:{SA+13}]")
        a(f"v_pk_add_f32 v[{QB}:{QB+1}], v[{QB}:{QB+1}], v[{SA+14}:{SA+15}]")
        a(f"v_pk_add_f32 v[{M}:{M2}], v[{M}:{M2}], v[{QB}:{QB+1}]")
    else:
        a(f"v_add_f32 v{M}, v{SA}, v{SA+1}")
        a(f"v_add_f32 v{M2}, v{SA+2}, v{SA+3}")
        for r in range(4,16,2):
            a(f"v_add_f32 v{M}, v{M}, v{SA+r}")
            a(f"v_add_f32 v{M2}, v{M2}, v{SA+r+1}")
    a(f"v_add_f32 v{M}, v{M}, v{M2}")
    a(f"v_mov_b32 v{M2}, v{M}")
    a("s_nop 1")
    a(f"v_permlane32_swap_b32 v{M}, v{M2}")
    a("s_nop 1")
    a(f"v_add_f32 v{M}, v{M}, v{M2}")
    a(f"v_rcp_f32 v{M}, v{M}")
    a("s_nop 0")
    if OPT["pksm"]:
        a(f"v_mov_b32 v{M2}, v{M}")
        for r in range(0,16,2): a(f"v_pk_mul_f32 v[{SA+r}:{SA+r+1}], v[{SA+r}:{SA+r+1}], v[{M}:{M2}]")
    else:
        for r in range(16): a(f"v_mul_f32 v{SA+r}, v{SA+r}, v{M}")
    PX=QB; PY=QB+4
    for k,r in enumerate([0,2,8,10]): a(f"v_cvt_pk_bf16_f32 v{PX+k}, v{SA+r}, v{SA+r+1}")
    for k,r in enumerate([4,6,12,14]): a(f"v_cvt_pk_bf16_f32 v{PY+k}, v{SA+r}, v{SA+r+1}")
    for k in range(8): a(f"v_or_b32 v{PX+k}, v{PX+k}, v{PMASK[k&3]}")
    a.vmop(f"buffer_store_dwordx4 v[{PX}:{PX+3}], v{T+8}, s[{S_WS}:{S_WS+3}], s{S_SOP} offen sc1", "Pst")
    a.vmop(f"buffer_store_dwordx4 v[{PY}:{PY+3}], v{T+8}, s[{S_WS}:{S_WS+3}], s{S_SOP} offen offset:512 sc1", "Pst")
    a(f"v_mov_b32 v{T+9}, 0")

    def flag_store(tagname, soff, off=0):
        a("s_mov_b64 exec, 1")
        a.vmop(f"buffer_store_dword v{VTG}, v{T+9}, s[{S_WS}:{S_WS+3}], s{soff} offen offset:{off} sc1", tagname)
        a("s_mov_b64 exec, -1")
    def mb_add(tp):
        a("s_mov_b64 exec, 1")
        a.ds(f"ds_add_u32 v{T+4}, v{T+2} offset:{4*tp}", "mb")
        a("s_mov_b64 exec, -1")
    def rdW(f):
        g, ks = divmod(f, 4); u, t = divmod(g, 9); sl = BF + 4*(f % NBF)
        for h in range(2):
            a.ds(f"ds_read_b64_tr_b16 a[{sl+2*h}:{sl+2*h+1}], v{AO+(u&1)} offset:{ks*9216+h*2304+t*32}", f"W{f}")
    def rdV(u, ks):
        if u&1:
            d = base(12)-base(10)
            a(f"v_add_u32 v{T+5}, {d & 0xffffffff}, v{AV+ks}")
            ad = T+5
        else: ad = AV+ks
        for st in range(2):
            a.ds(f"ds_read_b128 a[{VF+16*st+4*ks}:{VF+16*st+4*ks+3}], v{ad} offset:{st*4096}", f"V{u}_{ks}")
    def pkreg(u, t): return (STASH+12*t+4*u) if u < 3 else (PK+4*(t&1))
    def outreg(it, t): return RB + 12*t + 4*it
    def cvt(g):
        u, t = divmod(g, 9)
        w = VW+8*(g&1); p = pkreg(u, t)
        for k in range(4): a(f"v_cvt_pk_bf16_f32 v{p+k}, v{w+2*k}, v{w+2*k+1}")
    def pv(u, t):
        p = pkreg(u, t)
        for it in range(2):
            o = outreg(it, t)
            c = "0" if u == 0 else f"v[{o}:{o+3}]"
            a(f"v_mfma_f32_16x16x32_bf16 v[{o}:{o+3}], v[{p}:{p+3}], a[{PF+8*u+4*it}:{PF+8*u+4*it+3}], {c}")
    def store_pair(tp):
        for it in range(2):
            so = S_PW if it == 0 else S_PW1
            d = RB + 12*(2*tp+it) + 8
            for h in range(2):
                o = outreg(it, 2*tp+h)
                a(f"v_cvt_pk_bf16_f32 v{d+2*h}, v{o}, v{o+1}")
                a(f"v_cvt_pk_bf16_f32 v{d+2*h+1}, v{o+2}, v{o+3}")
            a.vmop(f"buffer_store_dwordx4 v[{d}:{d+3}], v{VL}, s[{S_WS}:{S_WS+3}], s{so} offen offset:{1024*tp} sc1", f"part{tp}")
    def store_t8():
        for it in range(2):
            so = S_PW if it == 0 else S_PW1
            d = RB + 12*8 + 8 + 2*it
            o = outreg(it, 8)
            a(f"v_cvt_pk_bf16_f32 v{d}, v{o}, v{o+1}")
            a(f"v_cvt_pk_bf16_f32 v{d+1}, v{o+2}, v{o+3}")
            a.vmop(f"buffer_store_dwordx2 v[{d}:{d+1}], v{T+8}, s[{S_WS}:{S_WS+3}], s{so} offen sc1", "part3")
    def pair(g, ks):
        f = 4*g+ks; sl = BF + 4*(f % NBF)
        for st in range(2):
            w = VW+8*(g&1)+4*st
            c = "0" if ks == 0 else f"v[{w}:{w+3}]"
            a(f"v_mfma_f32_16x16x32_bf16 v[{w}:{w+3}], a[{VF+16*st+4*ks}:{VF+16*st+4*ks+3}], a[{sl}:{sl+3}], {c}")
    a("s_barrier")
    a.stamp(2)
    a.lq = []
    for ks in range(4):
        rdV(0, ks); rdW(ks)
    for f in range(4, NBF): rdW(f)
    a(f"v_lshlrev_b32 v{T+8}, 3, v1")
    a(f"v_add_u32 v{T+8}, 4096, v{T+8}")
    a(f"v_mov_b32 v{T+4}, {MBOX}")
    a(f"v_mov_b32 v{T+2}, 1")
    a(f"s_lshl_b32 s{S_T0}, s{S_RG}, 2")
    a(f"s_add_u32 s{S_T0}, s{S_T0}, s{S_W}")
    a(f"s_lshl_b32 s{S_T0}, s{S_T0}, 4")
    a(f"s_add_u32 s{S_T0}, s{S_T0}, s{S_SPLIT}")
    a(f"s_lshl_b32 s{S_T0}, s{S_T0}, 7")
    a(f"s_add_u32 s{S_T0}, s{S_T0}, {FR_BASE}")
    a(f"v_lshl_add_u32 v{T+3}, v1, 10, s{S_T0}")
    if not OPT["onep"]:
        a(f"s_lshl_b32 s{S_T0}, s{S_RG}, 3")
        a(f"s_add_u32 s{S_T0}, s{S_T0}, s{S_SPLIT}")
        a(f"s_lshl_b32 s{S_T0}, s{S_T0}, 10")
        a(f"s_add_u32 s{S_T0}, s{S_T0}, {FR_BASE}")
        a(f"v_and_b32 v{FPA}, 7, v1")
        a(f"v_lshl_add_u32 v{FPA}, v{FPA}, 7, s{S_T0}")
    a(f"v_add_u32 v{T+7}, s{S_LW8}, v{VL}")
    a(f"v_add_u32 v{T+7}, {base(14)}, v{T+7}")
    RPOS = OPT["rpos"]; MKS = OPT["mks"]
    for g in range(36):
        u, t = divmod(g, 9)
        for ks in range(4):
            f = 4*g+ks
            if OPT["w2"] and 0 < t < 8 and not ks&1: a.wait_lg(f"W{f}", f"W{f+1}")
            else: a.wait_lg(f"W{f}", f"V{u}_{ks}")
            pair(g, ks)
            nf = f + NBF
            hend = 36*(u+1)
            if nf < hend: rdW(nf)
            elif u < 3 and t == 8 and ks >= MKS:
                if ks == MKS:
                    a.wait_lg0()
                    a("s_barrier")
                    a.stamp(2)
                    nfree = NBF - (3 - MKS)
                    for k in range(max(nfree, MKS+1)):
                        if k <= MKS: rdV(u+1, k)
                        if k < nfree: rdW(hend+k)
                    if u == 2:
                        pass
                else:
                    rdV(u+1, ks); rdW(hend+NBF-4+ks)
            if u == 3 and t == 0:
                for q in (2*ks, 2*ks+1):
                    a.ds(f"ds_read_b128 a[{PF+4*q}:{PF+4*q+3}], v{T+7} offset:{1024*q}", f"P{q>>1}")
            if ks == 2 and g > 0: cvt(g-1)
            if u == 3 and t > 0 and ks < 3:
                if t == 1: a.wait_lg(f"P{ks}")
                pv(ks, t-1)
            if u == 3 and ks == 1:
                if t in (3, 5, 7): store_pair((t-3)>>1)
        if u == 3 and t > 0:
            if t == 1: a.wait_lg('P3')
            pv(3, t-1)
        if u < 3 and t == RPOS:
            a("s_barrier")
    for uu in range(3): pv(uu, 8)
    a("s_nop 3")
    cvt(35)
    a("s_nop 1")
    pv(3, 8)
    store_pair(3)
    a("s_nop 1")
    store_t8()
    a.stamp(2)
    a("s_waitcnt vmcnt(0)")
    a("s_mov_b64 exec, 3")
    a(f"buffer_store_dword v{VTG}, v{T+3}, s[{S_WS}:{S_WS+3}], 0 offen sc1")
    a("s_mov_b64 exec, 1")
    a(f"ds_add_u32 v{T+4}, v{T+2}")
    a("s_mov_b64 exec, -1")
    a.stamp(2)
    a(f"s_cmp_lg_u32 s{S_W}, 0")
    a("s_cbranch_scc1 L_cdone")
    LD=RB; RA=RB+32
    for r in range(4): a(f"v_mov_b32 v{RA+r}, 0")
    if OPT["onep"]: mb_wait(a, "L_cgo", T+4, 4, 1)
    else: spin(a, "L_gw", FPA, TAGR, False, OPT["gsl"], OPT["apoll"])
    a.stamp()
    for j in range(8):
        a(f"buffer_load_dwordx2 v[{LD+2*j}:{LD+2*j+1}], v{T+8}, s[{S_WS}:{S_WS+3}], s{S_RD} offen sc1")
        if j < 7: a(f"s_add_u32 s{S_RD}, s{S_RD}, {SLICE}")
    for j in range(8):
        a(f"s_waitcnt vmcnt({7-j})")
        for d in range(2):
            a(f"v_dot2c_f32_bf16 v{RA+2*d}, s{S_ONE}, v{LD+2*j+d}")
            a(f"v_dot2c_f32_bf16 v{RA+2*d+1}, s{S_ONEH}, v{LD+2*j+d}")
    a("s_nop 2")
    a(f"v_cvt_pk_bf16_f32 v{LD}, v{RA}, v{RA+1}")
    a(f"v_cvt_pk_bf16_f32 v{LD+1}, v{RA+2}, v{RA+3}")
    a(f"buffer_store_dwordx2 v[{LD}:{LD+1}], v{T+6}, s[{S_OUT}:{S_OUT+3}], s{S_OA} offen")
    a(f"s_lshl_b32 s{S_T2}, s2, 2")
    a(f"s_add_u32 s{S_T2}, s{S_T2}, {E_BASE}")
    flag_store("Eup", S_T2)
    a.label("L_cdone")
    stamp_out(a, 0)

def gen(a):
    kname = NAME + "_kernel"
    a.raw(f".globl {kname}"); a.raw(".p2align 8"); a.raw(f".type {kname},@function"); a.label(kname)
    a("s_load_dwordx16 s[36:51], s[0:1], 0")
    a("s_load_dwordx8 s[52:59], s[0:1], 64")
    a("s_load_dwordx2 s[60:61], s[0:1], 96")
    a("v_lshrrev_b32 v1, 6, v0")
    a("s_cmp_ge_u32 s2, 256")
    a("s_cbranch_scc1 L_end")
    a(f"v_readfirstlane_b32 s{S_T1}, v1")
    if OPT["stamp"]:
        a(f"v_mov_b32 v{V_STAMP}, 0")
        a.stamp(2)
    a(f"s_and_b32 s{S_T0}, s2, 7")
    a("v_and_b32 v1, 63, v0")
    a(f"s_lshr_b32 s{S_BR}, s{S_T0}, 2")
    a(f"s_and_b32 s{S_HQ}, s{S_T0}, 3")
    a(f"s_bfe_u32 s{S_RB}, s2, 0x20003")
    a(f"s_lshr_b32 s{S_HL}, s2, 5")
    a(f"s_and_b32 s{S_W}, s{S_T1}, 3")
    a(f"s_lshl_b32 s{S_H}, s{S_HQ}, 3")
    a(f"s_add_u32 s{S_H}, s{S_H}, s{S_HL}")
    a(f"s_lshl_b32 s{S_B}, s{S_RB}, 2")
    a(f"s_add_u32 s{S_B}, s{S_B}, s{S_W}")
    a(f"s_and_b32 s{S_CP}, s{S_HL}, 3")
    a(f"s_lshr_b32 s{S_KQ}, s{S_HL}, 2")
    a(f"s_lshl_b32 s{S_SPLIT}, s{S_HQ}, 1")
    a(f"s_add_u32 s{S_SPLIT}, s{S_SPLIT}, s{S_KQ}")
    a(f"s_lshl_b32 s{S_LW4}, s{S_W}, 12")
    a(f"s_lshl_b32 s{S_LW8}, s{S_W}, 13")
    a(f"s_cmp_ge_u32 s{S_T1}, 4")
    a("s_cbranch_scc1 L_loader")
    gen_compute_pro(a)
    a("s_branch L_compute")
    a.label("L_loader")
    gen_loader(a)
    a.raw(".p2align 6")
    a.label("L_compute")
    gen_compute(a)
    a.label("L_end")
    a("s_endpgm")

def main():
    a = Asm()
    hdr = open("cdna_kernels/%s.s.ref" % NAME).read().split("; Override")[0]
    a.raw(hdr.rstrip())
    a.raw(f"; @launch grid=(256,1,1) block=(512,1,1) lds={LDS_BYTES}")
    a.raw('.amdgcn_target "amdgcn-amd-amdhsa--gfx950"')
    a.raw(".text")
    gen(a)
    a.raw('.section .rodata,"a"')
    a.raw(".p2align 6")
    a.raw(f".amdhsa_kernel {NAME}_kernel")
    a.raw(f"  .amdhsa_next_free_vgpr {NARCH+NACC}")
    a.raw(f"  .amdhsa_next_free_sgpr 102")
    a.raw(f"  .amdhsa_accum_offset {NARCH}")
    a.raw("  .amdhsa_group_segment_fixed_size 0")
    a.raw("  .amdhsa_kernarg_size 104")
    a.raw("  .amdhsa_user_sgpr_count 2")
    a.raw("  .amdhsa_user_sgpr_kernarg_segment_ptr 1")
    a.raw("  .amdhsa_system_sgpr_workgroup_id_x 1")
    a.raw(".end_amdhsa_kernel")
    open(sys.argv[1], "w").write(a.text())
    if os.environ.get("SHOW"): print(schedule())
main()
```

```python
import sys, os
NAME = "concat_heads__gqa_block_cached__mha_block_cached__near_ridge"
OPT = dict(stamp=0, rot1=2, rot2=2, ntx=0, ntq=0, ntk=0, ntv=0, nto=0, prio=0, rpos=4, kpos=3, nbf=6,
           nodma=0, nomfma=0, nolds=0, cyc=0, epos=1, cpf=1, first=0, mbox=1, gsl=4, tlb=0, midw=0, cprio=0, w2=0, apoll=1, nfill=2, mks=0, pksm=1, onep=1, pearly=0, lprio2=1, r0pos=0, r1pos=4, two=0, osc=0)
for arg in sys.argv[2:]:
    k, v = arg.split("="); assert k in OPT, k; OPT[k] = int(v)

class Asm:
    def __init__(self):
        self.L=[]; self.vm=[]; self.nst=0; self.lq=[]
    def __call__(self, s):
        if OPT["nomfma"] and s.startswith("v_mfma"): return
        if OPT["nolds"] and s.startswith("ds_read"): return
        if OPT["nodma"] and s.endswith(" lds"): return
        self.L.append("    "+s)
    def label(self, n): self.L.append(n+":")
    def raw(self, s): self.L.append(s)
    def text(self): return "\n".join(self.L)+"\n"
    def vmop(self, s, tag): self(s); self.vm.append(tag)
    def wait_vm(self, *tags):
        idx = max((i for i,t in enumerate(self.vm) if t in tags), default=-1)
        assert idx >= 0, tags
        n = len(self.vm)-1-idx
        assert n <= 63
        self(f"s_waitcnt vmcnt({n})")
    def ds(self, s, tag): self(s); self.lq.append(tag)
    def wait_lg(self, *tags):
        idx = max((i for i,t in enumerate(self.lq) if t in tags), default=-1)
        if idx < 0: return
        n = min(15, len(self.lq)-1-idx)
        self(f"s_waitcnt lgkmcnt({n})")
        self.lq = self.lq[len(self.lq)-n:] if n else []
    def wait_lg0(self):
        self("s_waitcnt lgkmcnt(0)"); self.lq = []
    def stamp(self, lvl=1):
        if not OPT["stamp"]: return
        if OPT["stamp"] == 2 and lvl < 2: return
        self.lq = []
        self("s_memtime s[96:97]" if OPT["cyc"] else "s_memrealtime s[96:97]")
        self("s_waitcnt lgkmcnt(0)")
        self(f"v_writelane_b32 v{V_STAMP}, s96, {self.nst}")
        self.nst += 1

SLOT = 36864
MBOX = 4*SLOT
LDS_BYTES = 4*SLOT + 256
KPOS = OPT["kpos"]
def pos_s1(t): return t if t < KPOS else t+1
def base(pos): return (pos % 4)*SLOT
P_BASE = 0
SLICE = 4608
PART_BASE = 2<<20
E_BASE = 15<<20
FP_BASE = E_BASE + 4096
FR_BASE = 14<<20
STAMP_BASE = 13<<20
STAMP_BASE = 16<<20
WS_USED = 17<<20
LCG_A = 1664525; LCG_C = 1013904223
SPIN_MAX = 1<<15

S_X=8; S_WQ=12; S_K=16; S_WS=20; S_V=24; S_WO=28; S_OUT=32
S_W=62; S_BR=63; S_HQ=64; S_RB=65; S_HL=66; S_H=67; S_B=68; S_SPLIT=69
S_T0=70; S_T1=71; S_T2=72; S_T3=73
S_SOX=74; S_SOQ=75; S_SOK=76; S_C=77; S_SOP=78; S_LWO=79; S_CP=80; S_KQ=81; S_LW4=82; S_LW8=83
S_SOV=[84,85,86,87]; S_SOW=[88,89,90,91]; S_SPU=[92,93,94,95]
S_TAG=3; S_CNT=4; S_CH=5; S_RG=6; S_PG=7
S_CC=52
S_TJ=36
S_FR=44; S_RD=45; S_OA=46; S_ONE=47; S_ONEH=48; S_PW=49; S_PW1=50
AX=2; AQ=10; VW=2; PK=18; T=26; AV=36; AO=40; VL=42; TAGP=43; TAGR=44; FPA=45; VTG=46; V_STAMP=47
RB=48
ACC=RB; QB=RB+64; SA=RB+96
STASH=RB+12
NARCH=168
VX=2; VQ=6; VK=10; VO=14; FRA=45
NBF=OPT["nbf"]
FA=0; FB=16; KF=32; PF=0; BF=32; VF=32+4*NBF; NACC=VF+32

OSC = ["", " sc1", " nt", " sc0 sc1"][OPT["osc"]]
def nt(k): return " nt" if OPT[k] else ""

def srd(a, b, lo, hi, nrec):
    a(f"s_mov_b32 s{b}, s{lo}")
    a(f"s_and_b32 s{b+1}, s{hi}, 0xffff")
    a(f"s_mov_b32 s{b+2}, {nrec}")
    a(f"s_mov_b32 s{b+3}, 0x20000")

def kv_soffset(a, dst, head_s):
    a(f"s_lshl_b32 s{S_T0}, s{S_B}, 4")
    a(f"s_lshr_b32 s{S_T1}, s{head_s}, 1")
    a(f"s_add_u32 s{S_T0}, s{S_T0}, s{S_T1}")
    a(f"s_lshl_b32 s{S_T1}, s{S_B}, 5")
    a(f"s_add_u32 s{S_T1}, s{S_T1}, s{head_s}")
    a(f"s_cmp_eq_u32 s{S_BR}, 0")
    a(f"s_cselect_b32 s{dst}, s{S_T0}, s{S_T1}")
    a(f"s_lshl_b32 s{dst}, s{dst}, 13")

def head_u(a, u):
    ORD2 = {0: [[0,1,2,3]]*4, 1: [[0,1,2,3],[1,2,3,0],[2,3,0,1],[3,0,1,2]],
            2: [[0,1,2,3],[1,0,2,3],[0,2,1,3],[0,1,3,2]],
            3: [[0,1,2,3],[1,0,3,2],[0,1,2,3],[1,0,3,2]],
            4: [[0,2,1,3],[1,0,2,3],[0,1,3,2],[1,3,0,2]]}[OPT["rot2"]]
    tab = sum(ORD2[j][u] << (2*j) for j in range(4))
    a(f"s_lshl_b32 s{S_T3}, s{S_SPLIT}, 2")
    if OPT["rot2"]:
        a(f"s_add_u32 s{S_T2}, s{S_RB}, s{S_CP}")
        a(f"s_and_b32 s{S_T2}, s{S_T2}, 3")
        a(f"s_lshl_b32 s{S_T2}, s{S_T2}, 1")
        a(f"s_lshr_b32 s{S_T2}, {tab}, s{S_T2}")
        a(f"s_and_b32 s{S_T2}, s{S_T2}, 3")
        a(f"s_add_u32 s{S_T3}, s{S_T3}, s{S_T2}")
    elif u: a(f"s_add_u32 s{S_T3}, s{S_T3}, {u}")

def rgroup(a):
    a(f"s_lshl_b32 s{S_RG}, s{S_BR}, 2")
    a(f"s_add_u32 s{S_RG}, s{S_RG}, s{S_RB}")
    a(f"s_lshl_b32 s{S_RG}, s{S_RG}, 2")
    a(f"s_add_u32 s{S_RG}, s{S_RG}, s{S_CP}")

def e_addr_r(a, dst, t):
    a(f"s_and_b32 s{S_T0}, s2, 0x7c")
    a(f"v_bfe_u32 v{dst}, v1, 1, 2")
    a(f"v_and_b32 v{t}, 1, v1")
    a(f"v_lshl_add_u32 v{dst}, v{t}, 7, v{dst}")
    a(f"v_add_u32 v{dst}, s{S_T0}, v{dst}")
    a(f"v_lshlrev_b32 v{dst}, 2, v{dst}")

def lcg(a, v):
    a(f"s_mov_b32 s{S_T0}, {LCG_A}")
    a(f"v_mul_lo_u32 v{v}, v{v}, s{S_T0}")
    a(f"v_add_u32 v{v}, {LCG_C}, v{v}")

def red_scalars(a):
    a(f"s_lshl_b32 s{S_T0}, s{S_RG}, 3")
    a(f"s_add_u32 s{S_T0}, s{S_T0}, s{S_SPLIT}")
    a(f"s_mul_i32 s{S_RD}, s{S_T0}, {8*SLICE}")
    a(f"s_add_u32 s{S_RD}, s{S_RD}, {PART_BASE}")
    a(f"s_lshl_b32 s{S_T0}, s{S_W}, 10")
    a(f"s_add_u32 s{S_RD}, s{S_RD}, s{S_T0}")
    a(f"s_lshl_b32 s{S_OA}, s{S_RB}, 3")
    a(f"s_add_u32 s{S_OA}, s{S_OA}, s{S_SPLIT}")
    a(f"s_mul_i32 s{S_OA}, s{S_OA}, {16*2304}")
    a(f"s_mul_i32 s{S_T0}, s{S_BR}, 1152")
    a(f"s_add_u32 s{S_OA}, s{S_OA}, s{S_T0}")
    a(f"s_mul_i32 s{S_T0}, s{S_CP}, 288")
    a(f"s_add_u32 s{S_OA}, s{S_OA}, s{S_T0}")
    a(f"s_mov_b32 s{S_ONE}, 0x3f80")
    a(f"s_mov_b32 s{S_ONEH}, 0x3f800000")

def stamp_out(a, widx):
    if not OPT["stamp"]: return
    a("s_waitcnt vmcnt(0)")
    a.stamp(2)
    a(f"s_lshl_b32 s{S_T2}, s2, 3")
    a(f"s_add_u32 s{S_T2}, s{S_T2}, s{S_W}")
    if widx: a(f"s_add_u32 s{S_T2}, s{S_T2}, 4")
    a(f"s_lshl_b32 s{S_T2}, s{S_T2}, 8")
    a(f"s_add_u32 s{S_T2}, s{S_T2}, {STAMP_BASE}")
    a(f"v_lshlrev_b32 v{T}, 2, v1")
    a(f"buffer_store_dword v{V_STAMP}, v{T}, s[{S_WS}:{S_WS+3}], s{S_T2} offen")

def spin(a, lbl, addr, tag, first_loaded, sleep=False, atomic=False):
    a(f"s_mov_b32 s{S_CNT}, 0")
    if first_loaded: a(f"s_branch {lbl}_chk")
    a.label(f"{lbl}_poll")
    if sleep: a(f"s_sleep {sleep}")
    if atomic:
        a(f"v_mov_b32 v{T+7}, 0")
        a("s_mov_b64 exec, 0xff")
        a(f"buffer_atomic_or v{T+7}, v{addr}, s[{S_WS}:{S_WS+3}], 0 offen sc0 sc1")
    else:
        a(f"buffer_load_dword v{T+7}, v{addr}, s[{S_WS}:{S_WS+3}], 0 offen sc1")
    a("s_waitcnt vmcnt(0)")
    a.label(f"{lbl}_chk")
    a(f"v_cmp_ne_u32 vcc, v{T+7}, v{tag}")
    a(f"s_add_u32 s{S_CNT}, s{S_CNT}, 1")
    a(f"s_cmp_ge_u32 s{S_CNT}, {SPIN_MAX}")
    a(f"s_cbranch_scc1 {lbl}_done")
    a("s_nop 1")
    a(f"s_cbranch_vccnz {lbl}_poll")
    a.label(f"{lbl}_done")
    if atomic: a("s_mov_b64 exec, -1")

def mb_wait(a, lbl, addr_v, off, val):
    a(f"s_mov_b32 s{S_CNT}, 0")
    a.label(lbl)
    a("s_sleep 1")
    a(f"ds_read_b32 v{T+1}, v{addr_v} offset:{off}")
    a(f"s_add_u32 s{S_CNT}, s{S_CNT}, 1")
    a("s_waitcnt lgkmcnt(0)")
    a(f"v_readfirstlane_b32 s{S_T0}, v{T+1}")
    a(f"s_cmp_ge_u32 s{S_CNT}, {SPIN_MAX*64}")
    a(f"s_cbranch_scc1 {lbl}_done")
    a(f"s_cmp_lt_u32 s{S_T0}, {val}")
    a(f"s_cbranch_scc1 {lbl}")
    a.label(f"{lbl}_done")

def schedule():
    seq = []
    nxt = 2
    def free_upto(p):
        nonlocal nxt
        r = list(range(nxt, min(p+4, 17)+1)); nxt = max(nxt, min(p+4, 17)+1); return r
    for t in range(9):
        need = [pos_s1(t)] + ([KPOS] if t == KPOS else [])
        cons = pos_s1(t-1) if t > 0 else -1
        if t == KPOS: cons = KPOS-1
        seq.append((need, free_upto(cons)))
    seq.append(([], free_upto(9)))
    seq.append(([10, 11], []))
    seq.append(([], free_upto(10)))
    seq.append(([12, 13], free_upto(11)))
    seq.append(([], free_upto(12)))
    seq.append(([14, 15], free_upto(13)))
    seq.append(([], []))
    seq.append(([16, 17], []))
    return seq

def gen_loader(a):
    a.vm = []; a.nst = 1
    if OPT["prio"]: a(f"s_setprio {OPT['prio']}")
    a(f"v_lshrrev_b32 v{T+1}, 4, v1")
    a(f"s_lshl_b32 s{S_T0}, s{S_W}, 4")
    a(f"v_add_u32 v{T+3}, s{S_T0}, v{T+1}")
    a(f"v_lshlrev_b32 v{T+3}, 13, v{T+3}")
    a(f"v_and_b32 v{T+4}, 15, v1")
    a(f"v_lshlrev_b32 v{T+5}, 2, v{T+1}")
    a(f"v_xor_b32 v{T+4}, v{T+4}, v{T+5}")
    a(f"v_lshl_add_u32 v{VQ}, v{T+4}, 4, v{T+3}")
    for j in range(1,4):
        a(f"v_add_u32 v{VQ+j}, {31744*j}, v{VQ}")
    a(f"v_lshrrev_b32 v{T}, 3, v1")
    a(f"v_and_b32 v{T+2}, 7, v1")
    a(f"s_lshl_b32 s{S_T0}, s{S_W}, 5")
    a(f"v_add_u32 v{T+3}, s{S_T0}, v{T}")
    a(f"v_mul_u32_u24 v{T+3}, 1152, v{T+3}")
    a(f"v_xor_b32 v{T+2}, v{T+2}, v{T+1}")
    a(f"v_lshl_add_u32 v{VX}, v{T+2}, 4, v{T+3}")
    a(f"v_xor_b32 v{T+2}, 4, v{T+2}")
    a(f"v_lshl_add_u32 v{VX+1}, v{T+2}, 4, v{T+3}")
    a(f"v_add_u32 v{VX+1}, 8192, v{VX+1}")
    a(f"v_add_u32 v{VX+2}, 16384, v{VX}")
    a(f"v_add_u32 v{VX+3}, 16384, v{VX+1}")
    a(f"s_mul_i32 s{S_SOX}, s{S_RB}, 147456")
    a(f"s_lshl_b32 s{S_SOQ}, s{S_H}, 8")
    ORD1 = {0: [[0,1,2,3,4,5,6,7,8]]*4,
            1: [[0,1,4,2,3,5,8,6,7],[1,0,2,5,3,4,6,7,8],[2,0,1,3,6,4,5,7,8],[0,3,1,2,4,7,5,6,8]],
            2: [[0,1,2,4,3,5,6,8,7],[1,0,2,3,5,4,6,7,8],[0,2,1,3,4,6,5,7,8],[0,1,3,2,4,5,7,6,8]],
            3: [[0,4,1,2,3,8,5,6,7],[1,0,5,2,3,4,6,7,8],[2,0,1,6,3,4,5,7,8],[3,0,1,2,7,4,5,6,8]]}[OPT["rot1"]]
    pack = lambda o: sum(c << (4*i) for i, c in enumerate(o))
    a(f"s_sub_u32 s{S_T0}, s{S_RB}, s{S_HL}")
    a(f"s_and_b32 s{S_T0}, s{S_T0}, 3")
    a(f"s_mov_b32 s98, {pack(ORD1[0]) & 0xffffffff}")
    a(f"s_mov_b32 s99, {pack(ORD1[0]) >> 32}")
    for j in range(1, 4):
        if ORD1[j] != ORD1[0]:
            a(f"s_cmp_eq_u32 s{S_T0}, {j}")
            a(f"s_cselect_b32 s98, {pack(ORD1[j]) & 0xffffffff}, s98")
            a(f"s_cselect_b32 s99, {pack(ORD1[j]) >> 32}, s99")
    for b_, n_ in ((S_X, 589824), (S_WQ, 4718592)):
        a(f"s_mov_b32 s{b_+2}, {n_}")
        a(f"s_mov_b32 s{b_+3}, 0x20000")
    a(f"s_cmp_eq_u32 s{S_BR}, 0")
    a("s_waitcnt lgkmcnt(0)")
    a(f"s_cselect_b32 s{S_WQ}, s42, s52")
    a(f"s_cselect_b32 s{S_WQ+1}, s43, s53")
    a(f"s_cselect_b32 s{S_X}, s36, s46")
    a(f"s_cselect_b32 s{S_X+1}, s37, s47")
    a(f"s_and_b32 s{S_WQ+1}, s{S_WQ+1}, 0xffff")
    a(f"s_and_b32 s{S_X+1}, s{S_X+1}, 0xffff")
    a.stamp()
    def dma_s1(t):
        p = pos_s1(t)
        a(f"s_bfe_u32 s{S_CH}, s{98 + (t>>3)}, {(4 << 16) | (4*(t&7))}")
        a(f"s_add_u32 m0, s{S_LW4}, {base(p)+16384}")
        a(f"s_lshl_b32 s{S_T2}, s{S_CH}, 19")
        a(f"s_add_u32 s{S_T2}, s{S_T2}, s{S_SOQ}")
        for j in range(4):
            a.vmop(f"buffer_load_dwordx4 v{VQ+j}, s[{S_WQ}:{S_WQ+3}], s{S_T2} offen offset:{1024*j}{nt('ntq')} lds", f"p{p}")
        a(f"s_add_u32 m0, s{S_LW4}, {base(p)}")
        a(f"s_lshl_b32 s{S_T2}, s{S_CH}, 7")
        a(f"s_add_u32 s{S_T2}, s{S_T2}, s{S_SOX}")
        for j in range(4):
            a.vmop(f"buffer_load_dwordx4 v{VX+j}, s[{S_X}:{S_X+3}], s{S_T2} offen offset:{1024*j}{nt('ntx')} lds", f"p{p}")
    def dma_kv(srdb, soff, p, ntk):
        for half in range(2):
            a(f"s_add_u32 m0, s{S_LW8}, {base(p) + half*4096}")
            if half == 0: a(f"s_mov_b32 s{S_T2}, s{soff}")
            else: a(f"s_add_u32 s{S_T2}, s{soff}, 4096")
            for j in range(4):
                a.vmop(f"buffer_load_dwordx4 v{VK+j}, s[{srdb}:{srdb+3}], s{S_T2} offen offset:{1024*j}{nt(ntk)} lds", f"p{p}")
    def dma_wo(u, p):
        for j in range(9):
            if j%4 == 0:
                a(f"s_add_u32 m0, s{S_LWO}, {base(p) + 4096*(j>>2)}")
                a("s_nop 0")
            a.vmop(f"buffer_load_dwordx4 v{VO+j}, s[{S_WO}:{S_WO+3}], s{S_SOW[u]} offen offset:{1024*(j&3)}{nt('nto')} lds", f"p{p}")
    def dma_item(p):
        if p == KPOS: dma_kv(S_K, S_SOK, p, "ntk")
        elif p < 10: dma_s1(p if p < KPOS else p-1)
        else:
            u = (p-10)>>1
            if p & 1: dma_wo(u, p)
            else: dma_kv(S_V, S_SOV[u], p, "ntv")
    def setup_kv():
        a(f"s_mov_b32 s{S_T3}, 4194304")
        a(f"s_cmp_eq_u32 s{S_BR}, 0")
        for b_, idx, na in ((S_K,1,2097152),(S_V,2,2097152),(S_WO,4,None)):
            la = 36+2*idx; lb = 46+2*idx
            a(f"s_cselect_b32 s{b_}, s{la}, s{lb}")
            a(f"s_cselect_b32 s{b_+1}, s{la+1}, s{lb+1}")
            if na: a(f"s_cselect_b32 s{b_+2}, {na}, s{S_T3}")
            else: a(f"s_mov_b32 s{b_+2}, 4718592")
            a(f"s_mov_b32 s{b_+3}, 0x20000")
        for b_ in (S_K, S_V, S_WO): a(f"s_and_b32 s{b_+1}, s{b_+1}, 0xffff")
        a(f"v_lshrrev_b32 v{T}, 4, v1")
        a(f"v_and_b32 v{T+1}, 15, v1")
        for j in range(4):
            a(f"v_add_u32 v{VK+j}, {4*j}, v{T}")
            a(f"v_xor_b32 v{VK+j}, v{VK+j}, v{T+1}")
            a(f"v_lshlrev_b32 v{VK+j}, 4, v{VK+j}")
            a(f"v_lshl_add_u32 v{VK+j}, v{T}, 8, v{VK+j}")
        kv_soffset(a, S_SOK, S_H)
    def setup_vo(js):
        a(f"s_movk_i32 s{S_T0}, 3641")
        for j in js:
            a(f"v_add_u32 v{T}, {64*j}, v1")
            a(f"v_mul_u32_u24 v{T+1}, s{S_T0}, v{T}")
            a(f"v_lshrrev_b32 v{T+1}, 16, v{T+1}")
            a(f"v_mul_u32_u24 v{T+2}, 18, v{T+1}")
            a(f"v_sub_u32 v{T+2}, v{T}, v{T+2}")
            a(f"v_and_b32 v{T+3}, 0x13, v{T+1}")
            a(f"v_bfe_u32 v{T+4}, v{T+1}, 2, 1")
            a(f"v_lshl_add_u32 v{T+3}, v{T+4}, 3, v{T+3}")
            a(f"v_bfe_u32 v{T+4}, v{T+1}, 3, 1")
            a(f"v_lshl_add_u32 v{T+3}, v{T+4}, 2, v{T+3}")
            a(f"v_mul_u32_u24 v{T+3}, 1152, v{T+3}")
            a(f"v_lshl_add_u32 v{VO+j}, v{T+2}, 4, v{T+3}")
            if j&3: a(f"v_subrev_u32 v{VO+j}, {1024*(j&3)}, v{VO+j}")
    def setup_heads(us):
        for u in us:
            head_u(a, u)
            a(f"s_lshl_b32 s{S_T2}, s{S_T3}, 2")
            a(f"s_add_u32 s{S_T2}, s{S_T2}, s{S_W}")
            a(f"s_mul_i32 s{S_SOW[u]}, s{S_T2}, {32*1152}")
            a(f"s_mul_i32 s{S_T2}, s{S_CP}, 288")
            a(f"s_add_u32 s{S_SOW[u]}, s{S_SOW[u]}, s{S_T2}")
            a(f"s_mov_b32 s{S_SPU[u]}, s{S_T3}")
            kv_soffset(a, S_SOV[u], S_T3)
    PL = RB; PE = RB+32
    def setup_p():
        lcg(a, TAGP)
        a(f"v_lshlrev_b32 v{VL}, 4, v1")
        a(f"v_and_b32 v{T}, 3, v1")
        a(f"v_lshlrev_b32 v{T}, 1, v{T}")
        a(f"v_sub_u32 v{T}, 32, v{T}")
        a(f"s_lshl_b32 s{S_T0}, s{S_BR}, 4")
        a(f"s_add_u32 s{S_T0}, s{S_T0}, s{S_B}")
        a(f"s_lshl_b32 s{S_SOP}, s{S_T0}, 16")
        for u in range(4):
            a(f"s_and_b32 s{S_T0}, s{S_SPU[u]}, 3")
            a(f"v_readlane_b32 s{S_T1}, v{TAGP}, s{S_T0}")
            a(f"s_lshl_b32 s{S_SPU[u]}, s{S_SPU[u]}, 11")
            a(f"s_add_u32 s{S_SPU[u]}, s{S_SPU[u]}, s{S_SOP}")
            a(f"v_alignbit_b32 v{PE+2*u}, s{S_T1}, s{S_T1}, v{T}")
            a(f"v_lshlrev_b32 v{PE+2*u+1}, 1, v{PE+2*u}")
        a(f"s_mov_b32 s{S_C}, 0x07050301")
        a(f"s_mov_b32 s{S_TJ}, 0x7fff7fff")
        a(f"v_add_u32 v{T+6}, s{S_LW8}, v{VL}")
        a(f"v_add_u32 v{T+6}, {base(14)}, v{T+6}")
    def p_loads(track):
        for uu in range(4):
            for it in range(2):
                ins = f"buffer_load_dwordx4 v[{PL+8*uu+4*it}:{PL+8*uu+4*it+3}], v{VL}, s[{S_WS}:{S_WS+3}], s{S_SPU[uu]} offen offset:{1024*it} sc1"
                if track: a.vmop(ins, "Pld")
                else: a(ins)
    def p_check():
        a.wait_vm("Pld")
        a(f"s_mov_b32 s{S_CNT}, 0")
        a("s_branch L_pc_chk")
        a.label("L_pc_retry")
        a("s_sleep 4")
        p_loads(False)
        a("s_waitcnt vmcnt(0)")
        a.label("L_pc_chk")
        a(f"v_mov_b32 v{T}, 0")
        for q in range(8):
            d = PL+4*q; e = PE+2*(q>>1)
            a(f"v_perm_b32 v{T+1}, v{d+1}, v{d}, s{S_C}")
            a(f"v_perm_b32 v{T+2}, v{d+3}, v{d+2}, s{S_C}")
            a(f"v_xor_b32 v{T+1}, v{T+1}, v{e}")
            a(f"v_xor_b32 v{T+2}, v{T+2}, v{e+1}")
            a(f"v_or3_b32 v{T}, v{T}, v{T+1}, v{T+2}")
        a(f"v_and_b32 v{T}, 0x80808080, v{T}")
        a(f"v_cmp_ne_u32 vcc, 0, v{T}")
        a(f"s_add_u32 s{S_CNT}, s{S_CNT}, 1")
        a(f"s_cmp_ge_u32 s{S_CNT}, {SPIN_MAX}")
        a("s_cbranch_scc1 L_pc_done")
        a("s_nop 1")
        a("s_cbranch_vccnz L_pc_retry")
        a.label("L_pc_done")
        for q in range(8):
            d = PL+4*q
            for k in range(4): a(f"v_and_b32 v{d+k}, s{S_TJ}, v{d+k}")
    def p_write():
        for q in range(8):
            d = PL+4*q
            a(f"ds_write_b128 v{T+6}, v[{d}:{d+3}] offset:{1024*q}")
        a("s_waitcnt lgkmcnt(0)")
    def setup_e():
        a(f"v_and_b32 v{T}, 3, v1")
        a(f"v_lshlrev_b32 v{T}, 2, v{T}")
        a(f"v_mov_b32 v{T+1}, 0")
        a(f"ds_write_b32 v{T}, v{T+1} offset:{0}") if False else None
        a(f"v_add_u32 v{T}, {MBOX}, v{T}")
        a(f"ds_write_b32 v{T}, v{T+1}")
        e_addr_r(a, T, T+1)
        a(f"s_mov_b32 s{S_T1}, {E_BASE}")
        a.vmop(f"buffer_load_dword v{TAGR}, v{T}, s[{S_WS}:{S_WS+3}], s{S_T1} offen sc1", "E")
        a(f"v_and_b32 v{T}, 3, v1")
        a(f"s_and_b32 s{S_T0}, s2, 0x9f")
        a(f"v_lshlrev_b32 v{T}, 5, v{T}")
        a(f"v_add_u32 v{T}, s{S_T0}, v{T}")
        a(f"v_lshlrev_b32 v{T}, 2, v{T}")
        a.vmop(f"buffer_load_dword v{TAGP}, v{T}, s[{S_WS}:{S_WS+3}], s{S_T1} offen sc1", "E")
        a("s_waitcnt lgkmcnt(0)")
    def setup_red():
        rgroup(a)
        red_scalars(a)
        lcg(a, TAGR)
        a(f"v_and_b32 v{T}, 7, v1")
        a(f"s_lshl_b32 s{S_T0}, s{S_RG}, 3")
        a(f"s_add_u32 s{S_T1}, s{S_T0}, s{S_SPLIT}")
        a(f"s_lshl_b32 s{S_T1}, s{S_T1}, 10")
        a(f"s_add_u32 s{S_T1}, s{S_T1}, {FR_BASE}")
        a(f"v_lshl_add_u32 v{FRA}, v{T}, 7, s{S_T1}")
        a(f"v_and_b32 v{T+8}, 15, v1")
        a(f"v_mul_u32_u24 v{T+8}, 2304, v{T+8}")
        a(f"v_bfe_u32 v{T+3}, v1, 4, 1")
        a(f"v_lshl_add_u32 v{T+8}, v{T+3}, 5, v{T+8}")
        a(f"v_bfe_u32 v{T+3}, v1, 5, 1")
        a(f"v_lshl_add_u32 v{T+8}, v{T+3}, 4, v{T+8}")
        a(f"s_lshl_b32 s{S_T0}, s{S_W}, 6")
        a(f"v_add_u32 v{T+8}, s{S_T0}, v{T+8}")
    dma_item(0); dma_item(1)
    setup_kv()
    srd(a, S_WS, 60, 61, WS_USED)
    srd(a, S_OUT, 56, 57, 1179648)
    a.stamp()
    extra = {1: lambda: (setup_e(), setup_heads([0])), 2: lambda: setup_vo([0,1,2]), 3: lambda: setup_vo([3,4,5]), 4: lambda: setup_vo([6,7,8]),
             5: lambda: (a(f"s_mul_i32 s{S_LWO}, s{S_W}, 9216"), setup_heads([1])), 6: lambda: setup_heads([2,3]), 10: setup_p, 12: setup_red}
    if OPT['pearly']: extra[14] = p_check; extra[15] = p_write
    else: extra[15] = lambda: (p_check(), p_write())
    for i,(need,iss) in enumerate(schedule()):
        if need: a.wait_vm(*[f"p{s}" for s in need])
        a("s_barrier")
        if i == (13 if OPT['pearly'] == 1 else 14 if OPT['pearly'] == 0 else -1): p_loads(True)
        if i == 14 and OPT['lprio2']: a('s_setprio 1')
        for s in iss: dma_item(s)
        if i == 13 and OPT['pearly'] == 2: p_loads(True)
        if i in extra: extra[i]()
        a.stamp()
    LD=RB; RA=RB+32
    for r in range(8): a(f"v_mov_b32 v{RA+r}, 0")
    a(f"v_mov_b32 v{T}, {MBOX}")
    if OPT["two"]:
        a(f"s_cmp_eq_u32 s{S_W}, 3")
        a(f"s_cselect_b32 s{S_T2}, 8, 0")
        a(f"s_cselect_b32 s{S_T3}, {256<<10}, 0")
        a(f"v_add_u32 v{T}, s{S_T2}, v{T}")
        a(f"v_add_u32 v{FRA}, s{S_T3}, v{FRA}")
        a(f"s_and_b32 s{S_T2}, s{S_W}, 3")
        a(f"s_cmp_eq_u32 s{S_W}, 1")
        a("s_cbranch_scc1 L_lgo")
        a(f"s_cmp_eq_u32 s{S_W}, 2")
        a("s_cbranch_scc1 L_lgo")
        mb_wait(a, "L_mb", T, 0, 4)
        spin(a, "L_rw", FRA, TAGR, False, OPT["gsl"], OPT["apoll"])
        a(f"v_mov_b32 v{T+1}, 1")
        a(f"ds_write_b32 v{T}, v{T+1} offset:4")
        a("s_branch L_lred")
        a.label("L_lgo")
        mb_wait(a, "L_go", T, 4, 1)
        a.label("L_lred")
    elif OPT["onep"]:
        a(f"s_cmp_lg_u32 s{S_W}, 0")
        a("s_cbranch_scc1 L_lgo")
        mb_wait(a, "L_mb", T, 0, 4)
        spin(a, "L_rw", FRA, TAGR, False, OPT["gsl"], OPT["apoll"])
        a(f"v_mov_b32 v{T+1}, 1")
        a(f"ds_write_b32 v{T}, v{T+1} offset:4")
        a("s_branch L_lred")
        a.label("L_lgo")
        mb_wait(a, "L_go", T, 4, 1)
        a.label("L_lred")
    else:
        mb_wait(a, "L_mb", T, 0, 4)
        spin(a, "L_rw", FRA, TAGR, False, OPT["gsl"], OPT["apoll"])
    a.stamp(2)
    for j in range(8):
        a(f"buffer_load_dwordx4 v[{LD+4*j}:{LD+4*j+3}], v{VL}, s[{S_WS}:{S_WS+3}], s{S_RD} offen sc1")
        if j < 7: a(f"s_add_u32 s{S_RD}, s{S_RD}, {SLICE}")
    for j in range(8):
        a(f"s_waitcnt vmcnt({7-j})")
        for d in range(4):
            a(f"v_dot2c_f32_bf16 v{RA+2*d}, s{S_ONE}, v{LD+4*j+d}")
            a(f"v_dot2c_f32_bf16 v{RA+2*d+1}, s{S_ONEH}, v{LD+4*j+d}")
    a("s_nop 2")
    for d in range(4): a(f"v_cvt_pk_bf16_f32 v{LD+d}, v{RA+2*d}, v{RA+2*d+1}")
    a("s_nop 1")
    a(f"v_permlane16_swap_b32 v{LD}, v{LD+2}")
    a(f"v_permlane16_swap_b32 v{LD+1}, v{LD+3}")
    a("s_nop 1")
    a(f"buffer_store_dwordx4 v[{LD}:{LD+3}], v{T+8}, s[{S_OUT}:{S_OUT+3}], s{S_OA} offen{OSC}")
    a.label("L_ldone")
    stamp_out(a, 1)
    a("s_endpgm")

def gen_compute_pro(a):
    a.vm = []; a.nst = 1
    if OPT["cprio"]: a(f"s_setprio {OPT['cprio']}")
    if OPT["cpf"]:
        a("s_getpc_b64 s[98:99]")
        a.label("L_pc")
        a(f"s_lshr_b32 s{S_T0}, s2, 3")
        a(f"s_mul_i32 s{S_T0}, s{S_T0}, 640")
        a(f"v_min_u32 v{T}, 4, v1")
        a(f"v_lshlrev_b32 v{T}, 7, v{T}")
        a(f"v_add_u32 v{T}, s{S_T0}, v{T}")
        a(f"v_min_u32 v{T}, L_end-L_pc, v{T}")
        a(f"s_cmp_lg_u32 s{S_W}, 0")
        a("s_cbranch_scc1 L_nopf")
        a(f"global_load_dword v{T+7}, v{T}, s[98:99]")
        a.label("L_nopf")
    a(f"v_and_b32 v{T}, 31, v1")
    a(f"v_lshrrev_b32 v{T+1}, 5, v1")
    a(f"v_bfe_u32 v{T+2}, v1, 1, 3")
    a(f"v_xor_b32 v{T+2}, v{T+2}, v{T+1}")
    a(f"v_lshlrev_b32 v{T+2}, 4, v{T+2}")
    a(f"v_lshl_add_u32 v{T+2}, v{T}, 7, v{T+2}")
    a(f"v_add_u32 v{AX}, s{S_LW4}, v{T+2}")
    for ks in range(1,4): a(f"v_xor_b32 v{AX+ks}, {32*ks}, v{AX}")
    a(f"v_bfe_u32 v{T}, v1, 2, 2")
    a(f"v_lshl_add_u32 v{T+2}, v{T+1}, 3, v{T}")
    a(f"v_lshlrev_b32 v{T+2}, 8, v{T+2}")
    a(f"v_lshl_add_u32 v{T+2}, v{T}, 6, v{T+2}")
    a(f"v_bfe_u32 v{T+3}, v1, 4, 1")
    a(f"v_lshl_add_u32 v{T+2}, v{T+3}, 5, v{T+2}")
    a(f"v_and_b32 v{T+3}, 1, v1")
    a(f"v_lshl_add_u32 v{T+2}, v{T+3}, 4, v{T+2}")
    a(f"v_bfe_u32 v{T+3}, v1, 1, 1")
    a(f"v_lshl_add_u32 v{T+2}, v{T+3}, 3, v{T+2}")
    a(f"v_add_u32 v{AQ}, 16384, v{T+2}")
    for t in range(1,4): a(f"v_xor_b32 v{AQ+t}, {64*t}, v{AQ}")
    a.stamp()


def gen_compute(a):
    a.vm = []; a.nst = 2 if OPT['stamp'] == 1 else 1
    fill = []
    F = fill.append
    for ks in range(4): F(f"v_add_u32 v{AX+4+ks}, {2*SLOT}, v{AX+ks}")
    for t in range(4): F(f"v_add_u32 v{AQ+4+t}, {2*SLOT}, v{AQ+t}")
    class FA_:
        def __call__(self, s): F(s)
    fa = FA_()
    F("s_waitcnt lgkmcnt(0)")
    fill.pop()
    srd(fa, S_WS, 60, 61, WS_USED)
    srd(fa, S_OUT, 56, 57, 1179648)
    F(f"v_and_b32 v{T}, 31, v1")
    F(f"v_and_b32 v{T+2}, 15, v1")
    F(f"v_xor_b32 v{T+2}, v{T+2}, v{T+1}")
    F(f"v_lshlrev_b32 v{T+2}, 4, v{T+2}")
    F(f"v_lshl_add_u32 v{T+2}, v{T}, 8, v{T+2}")
    F(f"v_add_u32 v{T+9}, s{S_LW8}, v{T+2}")
    if base(KPOS) >= 65536-0: F(f"v_add_u32 v{T+9}, {base(KPOS)}, v{T+9}")
    e_addr_r(fa, T+3, T+4)
    F(f"s_mov_b32 s{S_T1}, {E_BASE}")
    F(("vm", f"buffer_load_dword v{TAGR}, v{T+3}, s[{S_WS}:{S_WS+3}], s{S_T1} offen sc1", "E"))
    rgroup(fa)
    F(f"v_lshrrev_b32 v{T}, 4, v1")
    F(f"v_and_b32 v{T+3}, 15, v1")
    F(f"v_xor_b32 v{T+2}, v{T}, v{T+3}")
    F(f"v_lshlrev_b32 v{T+2}, 4, v{T+2}")
    F(f"v_lshl_add_u32 v{T+2}, v{T+3}, 8, v{T+2}")
    F(f"v_add_u32 v{T+2}, {base(10)}, v{T+2}")
    F(f"v_add_u32 v{AV}, s{S_LW8}, v{T+2}")
    for ks in range(1,4): F(f"v_xor_b32 v{AV+ks}, {64*ks}, v{AV}")
    F(f"v_lshlrev_b32 v{VL}, 4, v1")
    F(f"v_lshlrev_b32 v{T}, 4, v{T+1}")
    F(f"v_bfe_u32 v{T+2}, v1, 4, 1")
    F(f"v_lshl_add_u32 v{T}, v{T+2}, 2, v{T}")
    F(f"v_bfe_u32 v{T+4}, v1, 2, 2")
    F(f"v_add_u32 v{T}, v{T}, v{T+4}")
    F(f"v_mul_u32_u24 v{T}, 288, v{T}")
    F(f"v_and_b32 v{T+4}, 3, v1")
    F(f"v_lshl_add_u32 v{T}, v{T+4}, 3, v{T}")
    F(f"v_add_u32 v{AO}, {base(11)}, v{T}")
    F(f"v_add_u32 v{AO+1}, {base(13)}, v{T}")
    F(f"v_lshlrev_b32 v{T+2}, 10, v{T+2}")
    F(f"v_lshl_add_u32 v{T+2}, v{T+1}, 8, v{T+2}")
    F(f"v_lshl_add_u32 v{T+8}, v{T+3}, 4, v{T+2}")
    F(f"v_mul_u32_u24 v{T+6}, 2304, v{T+3}")
    F(f"v_lshrrev_b32 v{T+2}, 4, v1")
    F(f"v_lshlrev_b32 v{T+2}, 3, v{T+2}")
    F(f"v_add_u32 v{T+2}, 256, v{T+2}")
    F(f"v_add_u32 v{T+6}, v{T+6}, v{T+2}")
    F(f"s_lshl_b32 s{S_T0}, s{S_BR}, 4")
    F(f"s_add_u32 s{S_T0}, s{S_T0}, s{S_B}")
    F(f"s_lshl_b32 s{S_SOP}, s{S_T0}, 16")
    F(f"s_lshl_b32 s{S_T0}, s{S_H}, 11")
    F(f"s_add_u32 s{S_SOP}, s{S_SOP}, s{S_T0}")
    F(f"s_mov_b32 s{S_C}, 0x3e0293ee")
    F(f"s_mov_b32 s{S_CC}, 0x3e0293ee")
    F(f"s_mov_b32 s{S_CC+1}, 0x3e0293ee")
    F(f"s_lshl_b32 s{S_T0}, s{S_RG}, 2")
    F(f"s_add_u32 s{S_T0}, s{S_T0}, s{S_W}")
    F(f"s_lshl_b32 s{S_T0}, s{S_T0}, 4")
    F(f"s_add_u32 s{S_T0}, s{S_T0}, s{S_SPLIT}")
    F(f"s_mul_i32 s{S_PW}, s{S_T0}, {SLICE}")
    F(f"s_add_u32 s{S_PW}, s{S_PW}, {PART_BASE}")
    F(f"s_add_u32 s{S_PW1}, s{S_PW}, {8*SLICE}")
    red_scalars(fa)
    F(f"s_lshl_b32 s{S_T0}, s{S_W}, 10")
    F(f"s_sub_u32 s{S_RD}, s{S_RD}, s{S_T0}")
    fill2 = []
    PM = TAGP
    PMASK = [43, 45, PK+6, PK+7]
    def tags_setup():
        a.wait_vm("E")
        lcg(a, TAGR)
        a(f"v_and_b32 v{T}, 3, v1")
        a(f"v_readlane_b32 s{S_TAG}, v{TAGR}, s{S_SPLIT}")
        a(f"v_lshlrev_b32 v{T}, 1, v{T}")
        a(f"v_sub_u32 v{T}, 32, v{T}")
        a(f"v_mov_b32 v{VTG}, s{S_TAG}")
        a(f"v_alignbit_b32 v{T}, v{VTG}, v{VTG}, v{T}")
        a(f"v_lshlrev_b32 v{T+2}, 1, v{T}")
        a(f"v_and_b32 v{T}, 0x80808080, v{T}")
        a(f"v_and_b32 v{T+2}, 0x80808080, v{T+2}")
        a(f"s_mov_b32 s{S_T0}, 0x010c000c")
        a(f"s_mov_b32 s{S_T1}, 0x030c020c")
        a(f"v_perm_b32 v{PMASK[0]}, v{T}, v{T}, s{S_T0}")
        a(f"v_perm_b32 v{PMASK[1]}, v{T}, v{T}, s{S_T1}")
        a(f"v_perm_b32 v{PMASK[2]}, v{T+2}, v{T+2}, s{S_T0}")
        a(f"v_perm_b32 v{PMASK[3]}, v{T+2}, v{T+2}, s{S_T1}")
    def filler(n):
        for _ in range(n):
            if not fill: return
            x = fill.pop(0)
            if isinstance(x, tuple): a.vmop(x[1], x[2])
            else: a(x)

    def rdB(st, ks, buf):
        slot = pos_s1(st)%4; s2 = (slot>>1)*4; off = (slot&1)*SLOT
        a.ds(f"ds_read_b128 a[{FB+4*buf}:{FB+4*buf+3}], v{AX+s2+ks} offset:{off}", f"B{st}_{ks}")
    def rdA(st, ks, t, buf):
        slot = pos_s1(st)%4; s2 = (slot>>1)*4; off = (slot&1)*SLOT + ks*4096
        a.ds(f"ds_read_b64_tr_b16 a[{FA+4*buf}:{FA+4*buf+1}], v{AQ+s2+t} offset:{off}", f"A{st}_{ks}_{t}")
        a.ds(f"ds_read_b64_tr_b16 a[{FA+4*buf+2}:{FA+4*buf+3}], v{AQ+s2+t} offset:{off+1024}", f"A{st}_{ks}_{t}")
    def mm32(st, ks, t, abuf, bbuf):
        a.wait_lg(f"B{st}_{ks}", f"A{st}_{ks}_{t}")
        c = "0" if (st == 0 and ks == 0) else f"v[{ACC+16*t}:{ACC+16*t+15}]"
        a(f"v_mfma_f32_32x32x16_bf16 v[{ACC+16*t}:{ACC+16*t+15}], a[{FA+4*abuf}:{FA+4*abuf+3}], a[{FB+4*bbuf}:{FB+4*bbuf+3}], {c}")
    def rdK(kk):
        koff = base(KPOS) if base(KPOS) < 65536 else 0
        a(f"v_xor_b32 v{T+5}, {32*kk}, v{T+9}")
        a.ds(f"ds_read_b128 a[{KF+4*kk}:{KF+4*kk+3}], v{T+5} offset:{koff}", f"K{kk}")
    a("s_waitcnt lgkmcnt(0)")
    if OPT["tlb"]:
        a(f"s_cmp_lg_u32 s{S_W}, 1")
        a("s_cbranch_scc1 L_notlb")
        kv_soffset(a, S_T2, S_H)
        a(f"s_cmp_eq_u32 s{S_BR}, 0")
        a(f"s_cselect_b32 s98, s38, s48")
        a(f"s_cselect_b32 s99, s39, s49")
        a(f"v_mov_b32 v{T}, s{S_T2}")
        a(f"global_load_dword v{T+7}, v{T}, s[98:99]")
        a(f"s_cmp_eq_u32 s{S_BR}, 0")
        a(f"s_cselect_b32 s98, s40, s50")
        a(f"s_cselect_b32 s99, s41, s51")
        a(f"global_load_dword v{T+7}, v{T}, s[98:99]")
        a(f"s_cselect_b32 s98, s44, s54")
        a(f"s_cselect_b32 s99, s45, s55")
        a(f"s_mul_i32 s{S_T0}, s{S_SPLIT}, 589824")
        a(f"v_and_b32 v{T}, 1, v1")
        a(f"v_mul_u32_u24 v{T}, 589820, v{T}")
        a(f"v_add_u32 v{T}, s{S_T0}, v{T}")
        a(f"global_load_dword v{T+7}, v{T}, s[98:99]")
        a(f"s_mul_i32 s{S_T0}, s{S_RB}, {128*2304}")
        a(f"v_mov_b32 v{T}, s{S_T0}")
        a(f"global_load_dword v{T+7}, v{T}, s[56:57]")
        a(f"v_and_b32 v{T}, 7, v1")
        a(f"v_lshlrev_b32 v{T}, 21, v{T}")
        a(f"v_add_u32 v{T}, {(2<<20)-4}, v{T}")
        a(f"global_load_dword v{T+7}, v{T}, s[60:61] sc1")
        a.label("L_notlb")
    a("s_barrier")
    a.stamp(2)
    rdB(0,0,0)
    for t in range(4): rdA(0,0,t,t)
    for st in range(8):
        for ks in range(3):
            for t in range(4):
                mm32(st, ks, t, t, ks&1)
                if t == 0: rdB(st, ks+1, (ks+1)&1)
                rdA(st, ks+1, t, t)
                if st == KPOS and ks < 2: rdK(4*ks+t)
                else: filler(OPT["nfill"] if st else 3)
            if st == 7 and ks == 1: tags_setup()
        mm32(st, 3, 0, 0, 1)
        mm32(st, 3, 1, 1, 1)
        a.wait_lg0()
        a("s_barrier")
        a.stamp()
        if st < 7:
            rdB(st+1, 0, 0); rdA(st+1, 0, 0, 0); rdA(st+1, 0, 1, 1)
            mm32(st, 3, 2, 2, 1); rdA(st+1, 0, 2, 2)
            mm32(st, 3, 3, 3, 1); rdA(st+1, 0, 3, 3)
        else:
            rdB(8, 0, 0); rdA(8, 0, 0, 0); rdA(8, 1, 0, 1); rdB(8, 2, 2)
            mm32(st, 3, 2, 2, 1); rdA(8, 2, 0, 2); rdB(8, 3, 3)
            mm32(st, 3, 3, 3, 1); rdB(8, 1, 1); rdA(8, 3, 0, 3)
    assert not fill, len(fill)
    def qcvt(t):
        for r in range(8): a(f"v_cvt_pk_bf16_f32 v{QB+8*t+r}, v{ACC+16*t+2*r}, v{ACC+16*t+2*r+1}")
    for t in range(4):
        for ks in range(4):
            mm32(8, ks, t, ks, ks)
            if t < 3: rdA(8, ks, t+1, ks)
            if t == 3 and ks == 1:
                a.wait_lg0()
                a("s_barrier")
                a.stamp(2)
                a("s_nop 3")
            if ks == 2 and t > 0: qcvt(t-1)
    for kk in range(8):
        if kk == 6: a("s_nop 0")
        c = "0" if kk == 0 else f"v[{SA}:{SA+15}]"
        a(f"v_mfma_f32_32x32x16_bf16 v[{SA}:{SA+15}], a[{KF+4*kk}:{KF+4*kk+3}], v[{QB+4*kk}:{QB+4*kk+3}], {c}")
        if kk == 5:
            a("s_nop 5")
            qcvt(3)
    a("s_nop 11")
    M=T+4; M2=T+5
    a(f"v_max3_f32 v{M}, v{SA}, v{SA+1}, v{SA+2}")
    a(f"v_max3_f32 v{M2}, v{SA+3}, v{SA+4}, v{SA+5}")
    a(f"v_max3_f32 v{M}, v{M}, v{SA+6}, v{SA+7}")
    a(f"v_max3_f32 v{M2}, v{M2}, v{SA+8}, v{SA+9}")
    a(f"v_max3_f32 v{M}, v{M}, v{SA+10}, v{SA+11}")
    a(f"v_max3_f32 v{M2}, v{M2}, v{SA+12}, v{SA+13}")
    a(f"v_max3_f32 v{M}, v{M}, v{SA+14}, v{SA+15}")
    a(f"v_max_f32 v{M}, v{M}, v{M2}")
    a(f"v_mov_b32 v{M2}, v{M}")
    a("s_nop 1")
    a(f"v_permlane32_swap_b32 v{M}, v{M2}")
    a("s_nop 1")
    a(f"v_max_f32 v{M}, v{M}, v{M2}")
    a(f"v_mul_f32 v{M}, s{S_C}, v{M}")
    if OPT["pksm"]:
        a(f"v_mov_b32 v{M2}, v{M}")
        a(f"s_mov_b32 s{S_C+1}, s{S_C}") if False else None
        for r in range(0,16,2): a(f"v_pk_fma_f32 v[{SA+r}:{SA+r+1}], v[{SA+r}:{SA+r+1}], s[{S_CC}:{S_CC+1}], v[{M}:{M2}] neg_lo:[0,0,1] neg_hi:[0,0,1]")
    else:
        for r in range(16): a(f"v_fma_f32 v{SA+r}, v{SA+r}, s{S_C}, -v{M}")
    for r in range(16): a(f"v_exp_f32 v{SA+r}, v{SA+r}")
    a("s_nop 0")
    if OPT["pksm"]:
        a(f"v_pk_add_f32 v[{M}:{M2}], v[{SA}:{SA+1}], v[{SA+2}:{SA+3}]")
        a(f"v_pk_add_f32 v[{QB}:{QB+1}], v[{SA+4}:{SA+5}], v[{SA+6}:{SA+7}]")
        a(f"v_pk_add_f32 v[{M}:{M2}], v[{M}:{M2}], v[{SA+8}:{SA+9}]")
        a(f"v_pk_add_f32 v[{QB}:{QB+1}], v[{QB}:{QB+1}], v[{SA+10}:{SA+11}]")
        a(f"v_pk_add_f32 v[{M}:{M2}], v[{M}:{M2}], v[{SA+12}:{SA+13}]")
        a(f"v_pk_add_f32 v[{QB}:{QB+1}], v[{QB}:{QB+1}], v[{SA+14}:{SA+15}]")
        a(f"v_pk_add_f32 v[{M}:{M2}], v[{M}:{M2}], v[{QB}:{QB+1}]")
    else:
        a(f"v_add_f32 v{M}, v{SA}, v{SA+1}")
        a(f"v_add_f32 v{M2}, v{SA+2}, v{SA+3}")
        for r in range(4,16,2):
            a(f"v_add_f32 v{M}, v{M}, v{SA+r}")
            a(f"v_add_f32 v{M2}, v{M2}, v{SA+r+1}")
    a(f"v_add_f32 v{M}, v{M}, v{M2}")
    a(f"v_mov_b32 v{M2}, v{M}")
    a("s_nop 1")
    a(f"v_permlane32_swap_b32 v{M}, v{M2}")
    a("s_nop 1")
    a(f"v_add_f32 v{M}, v{M}, v{M2}")
    a(f"v_rcp_f32 v{M}, v{M}")
    a("s_nop 0")
    if OPT["pksm"]:
        a(f"v_mov_b32 v{M2}, v{M}")
        for r in range(0,16,2): a(f"v_pk_mul_f32 v[{SA+r}:{SA+r+1}], v[{SA+r}:{SA+r+1}], v[{M}:{M2}]")
    else:
        for r in range(16): a(f"v_mul_f32 v{SA+r}, v{SA+r}, v{M}")
    PX=QB; PY=QB+4
    for k,r in enumerate([0,2,8,10]): a(f"v_cvt_pk_bf16_f32 v{PX+k}, v{SA+r}, v{SA+r+1}")
    for k,r in enumerate([4,6,12,14]): a(f"v_cvt_pk_bf16_f32 v{PY+k}, v{SA+r}, v{SA+r+1}")
    for k in range(8): a(f"v_or_b32 v{PX+k}, v{PX+k}, v{PMASK[k&3]}")
    a.vmop(f"buffer_store_dwordx4 v[{PX}:{PX+3}], v{T+8}, s[{S_WS}:{S_WS+3}], s{S_SOP} offen sc1", "Pst")
    a.vmop(f"buffer_store_dwordx4 v[{PY}:{PY+3}], v{T+8}, s[{S_WS}:{S_WS+3}], s{S_SOP} offen offset:512 sc1", "Pst")
    a(f"v_mov_b32 v{T+9}, 0")

    def flag_store(tagname, soff, off=0):
        a("s_mov_b64 exec, 1")
        a.vmop(f"buffer_store_dword v{VTG}, v{T+9}, s[{S_WS}:{S_WS+3}], s{soff} offen offset:{off} sc1", tagname)
        a("s_mov_b64 exec, -1")
    def mb_add(tp):
        a("s_mov_b64 exec, 1")
        a.ds(f"ds_add_u32 v{T+4}, v{T+2} offset:{4*tp}", "mb")
        a("s_mov_b64 exec, -1")
    def pkreg(u, t): return (STASH+12*t+4*u) if u < 3 else (PK+4*(t&1))
    def outreg(it, t): return RB + 12*t + 4*it
    dsq = []
    for f in range(144):
        g, ks = divmod(f, 4); u, t = divmod(g, 9); sl = BF + 4*(f % NBF)
        if t == 0:
            for st in range(2):
                pre = None; ad = AV+ks
                if u&1:
                    ad = T+5
                    if st == 0: pre = f"v_add_u32 v{T+5}, {(base(12)-base(10)) & 0xffffffff}, v{AV+ks}"
                dsq.append([f-4 if u else -1, u, f"ds_read_b128 a[{VF+16*st+4*ks}:{VF+16*st+4*ks+3}], v{ad} offset:{st*4096}", f"V{u}_{ks}", pre, f])
        for h in range(2):
            dsq.append([f-NBF, u, f"ds_read_b64_tr_b16 a[{sl+2*h}:{sl+2*h+1}], v{AO+(u&1)} offset:{ks*9216+h*2304+t*32}", f"W{f}", None, f])
    state = dict(pairs=-1, head=0)
    def ds_pop(n=1):
        k = 0
        while k < n:
            cand = [e for e in dsq if e[0] <= state["pairs"] and e[1] <= state["head"]]
            if not cand: break
            e = min(cand, key=lambda e: e[5]); dsq.remove(e)
            if e[4]: a(e[4])
            a.ds(e[2], e[3]); k += 1
        return k
    vq = []
    def v_pop(n):
        for _ in range(n):
            if not vq: return
            x = vq.pop(0)
            if isinstance(x, tuple): a.vmop(x[0], x[1])
            else: a(x)
    def q_cvt(g):
        u, t = divmod(g, 9)
        w = VW+8*(g&1); p = pkreg(u, t)
        for k in range(4): vq.append(f"v_cvt_pk_bf16_f32 v{p+k}, v{w+2*k}, v{w+2*k+1}")
    def q_pair(tp):
        for it in range(2):
            so = S_PW if it == 0 else S_PW1
            d = RB + 12*(2*tp+it) + 8
            for h in range(2):
                o = outreg(it, 2*tp+h)
                vq.append(f"v_cvt_pk_bf16_f32 v{d+2*h}, v{o}, v{o+1}")
                vq.append(f"v_cvt_pk_bf16_f32 v{d+2*h+1}, v{o+2}, v{o+3}")
            vq.append((f"buffer_store_dwordx4 v[{d}:{d+3}], v{VL}, s[{S_WS}:{S_WS+3}], s{so} offen offset:{1024*tp} sc1", f"part{tp}"))
    def q_t8():
        for it in range(2):
            so = S_PW if it == 0 else S_PW1
            d = RB + 12*8 + 8 + 2*it
            o = outreg(it, 8)
            vq.append(f"v_cvt_pk_bf16_f32 v{d}, v{o}, v{o+1}")
            vq.append(f"v_cvt_pk_bf16_f32 v{d+1}, v{o+2}, v{o+3}")
            vq.append((f"buffer_store_dwordx2 v[{d}:{d+1}], v{T+8}, s[{S_WS}:{S_WS+3}], s{so} offen sc1", "part3"))
    def vw(g, ks, st):
        f = 4*g+ks; sl = BF + 4*(f % NBF)
        w = VW+8*(g&1)+4*st
        c = "0" if ks == 0 else f"v[{w}:{w+3}]"
        a(f"v_mfma_f32_16x16x32_bf16 v[{w}:{w+3}], a[{VF+16*st+4*ks}:{VF+16*st+4*ks+3}], a[{sl}:{sl+3}], {c}")
    def pv1(u, t, it):
        p = pkreg(u, t); o = outreg(it, t)
        c = "0" if u == 0 else f"v[{o}:{o+3}]"
        a(f"v_mfma_f32_16x16x32_bf16 v[{o}:{o+3}], v[{p}:{p+3}], a[{PF+8*u+4*it}:{PF+8*u+4*it+3}], {c}")
    a("s_barrier")
    a.stamp(2)
    a.lq = []
    ds_pop(8+2*NBF)
    a(f"v_lshlrev_b32 v{T+8}, 3, v1")
    a(f"v_add_u32 v{T+8}, 4096, v{T+8}")
    a(f"v_mov_b32 v{T+4}, {MBOX}")
    a(f"v_mov_b32 v{T+2}, 1")
    a(f"s_lshl_b32 s{S_T0}, s{S_RG}, 2")
    a(f"s_add_u32 s{S_T0}, s{S_T0}, s{S_W}")
    a(f"s_lshl_b32 s{S_T0}, s{S_T0}, 4")
    a(f"s_add_u32 s{S_T0}, s{S_T0}, s{S_SPLIT}")
    a(f"s_lshl_b32 s{S_T0}, s{S_T0}, 7")
    a(f"s_add_u32 s{S_T0}, s{S_T0}, {FR_BASE}")
    a(f"v_lshl_add_u32 v{T+3}, v1, 10, s{S_T0}")
    a(f"v_add_u32 v{T+7}, s{S_LW8}, v{VL}")
    a(f"v_add_u32 v{T+7}, {base(14)}, v{T+7}")
    MKS = OPT["mks"]
    for g in range(36):
        u, t = divmod(g, 9)
        haspv = (u == 3 and t > 0)
        for ks in range(4):
            f = 4*g+ks
            assert not any(e[5] <= f for e in dsq), (f, dsq[0])
            a.wait_lg(f"W{f}", f"V{u}_{ks}")
            extra_ds = 2 if (t == 0 or (t == 8 and ks > MKS)) else 1
            vw(g, ks, 0)
            ds_pop(extra_ds)
            if not haspv and ks >= 2: v_pop(1)
            vw(g, ks, 1)
            state["pairs"] = f
            if u < 3 and t == 8 and ks == MKS:
                assert not any(e[1] <= u for e in dsq)
                a.wait_lg0()
                a("s_barrier")
                a.stamp(2)
                state["head"] = u+1
                ds_pop(6)
            else:
                ds_pop(extra_ds)
            if not haspv and ks >= 2: v_pop(1)
            if g > 0 and ks == 1 and not haspv: q_cvt(g-1)
            if u == 3 and t == 0:
                for q in (2*ks, 2*ks+1):
                    a.ds(f"ds_read_b128 a[{PF+4*q}:{PF+4*q+3}], v{T+7} offset:{1024*q}", f"P{q>>1}")
            if haspv:
                if t == 1: a.wait_lg(f"P{ks}")
                if ks == 1 and t in (3, 5, 7): q_pair((t-3)>>1)
                pv1(ks, t-1, 0); v_pop(2)
                if ks == 0: q_cvt(g-1)
                pv1(ks, t-1, 1)
                if ks < 3 or True: v_pop(2)
        assert not vq, (g, vq)
        if u < 3 and t == [OPT['r0pos'], OPT['r1pos'], OPT['rpos']][u]:
            a.wait_lg(f"V{u}_3")
            a("s_barrier")
    pv1(0, 8, 0); pv1(0, 8, 1); pv1(1, 8, 0); pv1(1, 8, 1); pv1(2, 8, 0)
    q_cvt(35); v_pop(2)
    pv1(2, 8, 1); v_pop(2)
    q_pair(3)
    v_pop(2)
    pv1(3, 8, 0); v_pop(2); pv1(3, 8, 1); v_pop(100)
    a("s_nop 0")
    q_t8(); v_pop(100)
    a.stamp(2)
    if OPT["two"]:
        a.wait_vm("part2")
        a("s_mov_b64 exec, 3")
        a(f"buffer_store_dword v{VTG}, v{T+3}, s[{S_WS}:{S_WS+3}], 0 offen sc1")
        a("s_mov_b64 exec, 1")
        a(f"ds_add_u32 v{T+4}, v{T+2}")
        a(f"s_mov_b32 s{S_T0}, {256<<10}")
        a("s_waitcnt vmcnt(1)")
        a("s_mov_b64 exec, 3")
        a(f"buffer_store_dword v{VTG}, v{T+3}, s[{S_WS}:{S_WS+3}], s{S_T0} offen sc1")
        a("s_mov_b64 exec, 1")
        a(f"ds_add_u32 v{T+4}, v{T+2} offset:8")
        a("s_mov_b64 exec, -1")
    else:
        a("s_waitcnt vmcnt(0)")
        a("s_mov_b64 exec, 3")
        a(f"buffer_store_dword v{VTG}, v{T+3}, s[{S_WS}:{S_WS+3}], 0 offen sc1")
        a("s_mov_b64 exec, 1")
        a(f"ds_add_u32 v{T+4}, v{T+2}")
        a("s_mov_b64 exec, -1")
    a.stamp(2)
    a(f"s_cmp_lg_u32 s{S_W}, 0")
    a("s_cbranch_scc1 L_cdone")
    LD=RB; RA=RB+32
    for r in range(4): a(f"v_mov_b32 v{RA+r}, 0")
    if OPT["two"]: mb_wait(a, "L_cgo", T+4, 12, 1)
    elif OPT["onep"]: mb_wait(a, "L_cgo", T+4, 4, 1)
    else: spin(a, "L_gw", FPA, TAGR, False, OPT["gsl"], OPT["apoll"])
    a.stamp()
    for j in range(8):
        a(f"buffer_load_dwordx2 v[{LD+2*j}:{LD+2*j+1}], v{T+8}, s[{S_WS}:{S_WS+3}], s{S_RD} offen sc1")
        if j < 7: a(f"s_add_u32 s{S_RD}, s{S_RD}, {SLICE}")
    for j in range(8):
        a(f"s_waitcnt vmcnt({7-j})")
        for d in range(2):
            a(f"v_dot2c_f32_bf16 v{RA+2*d}, s{S_ONE}, v{LD+2*j+d}")
            a(f"v_dot2c_f32_bf16 v{RA+2*d+1}, s{S_ONEH}, v{LD+2*j+d}")
    a("s_nop 2")
    a(f"v_cvt_pk_bf16_f32 v{LD}, v{RA}, v{RA+1}")
    a(f"v_cvt_pk_bf16_f32 v{LD+1}, v{RA+2}, v{RA+3}")
    a(f"buffer_store_dwordx2 v[{LD}:{LD+1}], v{T+6}, s[{S_OUT}:{S_OUT+3}], s{S_OA} offen{OSC}")
    a(f"s_lshl_b32 s{S_T2}, s2, 2")
    a(f"s_add_u32 s{S_T2}, s{S_T2}, {E_BASE}")
    flag_store("Eup", S_T2)
    a.label("L_cdone")
    stamp_out(a, 0)

def gen(a):
    kname = NAME + "_kernel"
    a.raw(f".globl {kname}"); a.raw(".p2align 8"); a.raw(f".type {kname},@function"); a.label(kname)
    a("s_load_dwordx16 s[36:51], s[0:1], 0")
    a("s_load_dwordx8 s[52:59], s[0:1], 64")
    a("s_load_dwordx2 s[60:61], s[0:1], 96")
    a("v_lshrrev_b32 v1, 6, v0")
    a("s_cmp_ge_u32 s2, 256")
    a("s_cbranch_scc1 L_end")
    a(f"v_readfirstlane_b32 s{S_T1}, v1")
    if OPT["stamp"]:
        a(f"v_mov_b32 v{V_STAMP}, 0")
        a.stamp(2)
    a(f"s_and_b32 s{S_T0}, s2, 7")
    a("v_and_b32 v1, 63, v0")
    a(f"s_lshr_b32 s{S_BR}, s{S_T0}, 2")
    a(f"s_and_b32 s{S_HQ}, s{S_T0}, 3")
    a(f"s_bfe_u32 s{S_RB}, s2, 0x20003")
    a(f"s_lshr_b32 s{S_HL}, s2, 5")
    a(f"s_and_b32 s{S_W}, s{S_T1}, 3")
    a(f"s_lshl_b32 s{S_H}, s{S_HQ}, 3")
    a(f"s_add_u32 s{S_H}, s{S_H}, s{S_HL}")
    a(f"s_lshl_b32 s{S_B}, s{S_RB}, 2")
    a(f"s_add_u32 s{S_B}, s{S_B}, s{S_W}")
    a(f"s_and_b32 s{S_CP}, s{S_HL}, 3")
    a(f"s_lshr_b32 s{S_KQ}, s{S_HL}, 2")
    a(f"s_lshl_b32 s{S_SPLIT}, s{S_HQ}, 1")
    a(f"s_add_u32 s{S_SPLIT}, s{S_SPLIT}, s{S_KQ}")
    a(f"s_lshl_b32 s{S_LW4}, s{S_W}, 12")
    a(f"s_lshl_b32 s{S_LW8}, s{S_W}, 13")
    a(f"s_cmp_ge_u32 s{S_T1}, 4")
    a("s_cbranch_scc1 L_loader")
    gen_compute_pro(a)
    a("s_branch L_compute")
    a.label("L_loader")
    gen_loader(a)
    a.raw(".p2align 6")
    a.label("L_compute")
    gen_compute(a)
    a.label("L_end")
    a("s_endpgm")

def main():
    a = Asm()
    hdr = open("cdna_kernels/%s.s.ref" % NAME).read().split("; Override")[0]
    a.raw(hdr.rstrip())
    a.raw(f"; @launch grid=(256,1,1) block=(512,1,1) lds={LDS_BYTES}")
    a.raw('.amdgcn_target "amdgcn-amd-amdhsa--gfx950"')
    a.raw(".text")
    gen(a)
    a.raw('.section .rodata,"a"')
    a.raw(".p2align 6")
    a.raw(f".amdhsa_kernel {NAME}_kernel")
    a.raw(f"  .amdhsa_next_free_vgpr {NARCH+NACC}")
    a.raw(f"  .amdhsa_next_free_sgpr 102")
    a.raw(f"  .amdhsa_accum_offset {NARCH}")
    a.raw("  .amdhsa_group_segment_fixed_size 0")
    a.raw("  .amdhsa_kernarg_size 104")
    a.raw("  .amdhsa_user_sgpr_count 2")
    a.raw("  .amdhsa_user_sgpr_kernarg_segment_ptr 1")
    a.raw("  .amdhsa_system_sgpr_workgroup_id_x 1")
    a.raw(".end_amdhsa_kernel")
    open(sys.argv[1], "w").write(a.text())
    if os.environ.get("SHOW"): print(schedule())
main()
```

```python
import sys, os
NAME = "concat_heads__gqa_block_cached__mha_block_cached__near_ridge"
OPT = dict(stamp=0, rot1=2, rot2=2, ntx=0, ntq=0, ntk=0, ntv=0, nto=0, prio=0, rpos=4, kpos=3, nbf=6,
           nodma=0, nomfma=0, nolds=0, cyc=0, epos=1, cpf=1, first=0, mbox=1, gsl=4, tlb=0, midw=0, cprio=0, w2=0, apoll=1, nfill=2, mks=0, pksm=1, onep=1, pearly=0, lprio2=1, r0pos=0, r1pos=4, two=0, osc=0, pp=0, ppsl=8, own=1)
for arg in sys.argv[2:]:
    k, v = arg.split("="); assert k in OPT, k; OPT[k] = int(v)

class Asm:
    def __init__(self):
        self.L=[]; self.vm=[]; self.nst=0; self.lq=[]; self.ool=[]
    def __call__(self, s):
        if OPT["nomfma"] and s.startswith("v_mfma"): return
        if OPT["nolds"] and s.startswith("ds_read"): return
        if OPT["nodma"] and s.endswith(" lds"): return
        self.L.append("    "+s)
    def label(self, n): self.L.append(n+":")
    def raw(self, s): self.L.append(s)
    def text(self): return "\n".join(self.L)+"\n"
    def vmop(self, s, tag): self(s); self.vm.append(tag)
    def wait_vm(self, *tags):
        idx = max((i for i,t in enumerate(self.vm) if t in tags), default=-1)
        assert idx >= 0, tags
        n = len(self.vm)-1-idx
        assert n <= 63
        self(f"s_waitcnt vmcnt({n})")
    def ds(self, s, tag): self(s); self.lq.append(tag)
    def wait_lg(self, *tags):
        idx = max((i for i,t in enumerate(self.lq) if t in tags), default=-1)
        if idx < 0: return
        n = min(15, len(self.lq)-1-idx)
        self(f"s_waitcnt lgkmcnt({n})")
        self.lq = self.lq[len(self.lq)-n:] if n else []
    def wait_lg0(self):
        self("s_waitcnt lgkmcnt(0)"); self.lq = []
    def stamp(self, lvl=1):
        if not OPT["stamp"]: return
        if OPT["stamp"] == 2 and lvl < 2: return
        self.lq = []
        self("s_memtime s[96:97]" if OPT["cyc"] else "s_memrealtime s[96:97]")
        self("s_waitcnt lgkmcnt(0)")
        self(f"v_writelane_b32 v{V_STAMP}, s96, {self.nst}")
        self.nst += 1

SLOT = 36864
MBOX = 4*SLOT
LDS_BYTES = 4*SLOT + 256
KPOS = OPT["kpos"]
def pos_s1(t): return t if t < KPOS else t+1
def base(pos): return (pos % 4)*SLOT
P_BASE = 0
SLICE = 4608
PART_BASE = 2<<20
E_BASE = 15<<20
FP_BASE = E_BASE + 4096
FR_BASE = 14<<20
STAMP_BASE = 13<<20
STAMP_BASE = 16<<20
WS_USED = 17<<20
LCG_A = 1664525; LCG_C = 1013904223
SPIN_MAX = 1<<15

S_X=8; S_WQ=12; S_K=16; S_WS=20; S_V=24; S_WO=28; S_OUT=32
S_W=62; S_BR=63; S_HQ=64; S_RB=65; S_HL=66; S_H=67; S_B=68; S_SPLIT=69
S_T0=70; S_T1=71; S_T2=72; S_T3=73
S_SOX=74; S_SOQ=75; S_SOK=76; S_C=77; S_SOP=78; S_LWO=79; S_CP=80; S_KQ=81; S_LW4=82; S_LW8=83
S_SOV=[84,85,86,87]; S_SOW=[88,89,90,91]; S_SPU=[92,93,94,95]
S_TAG=3; S_CNT=4; S_CH=5; S_RG=6; S_PG=7
S_CC=52
S_OWN=54
S_TJ=36
S_FR=44; S_RD=45; S_OA=46; S_ONE=47; S_ONEH=48; S_PW=49; S_PW1=50
AX=2; AQ=10; VW=2; PK=18; T=26; AV=36; AO=40; VL=42; TAGP=43; TAGR=44; FPA=45; VTG=46; V_STAMP=47
RB=48
ACC=RB; QB=RB+64; SA=RB+96
STASH=RB+12
NARCH=168
VX=2; VQ=6; VK=10; VO=14; FRA=45
NBF=OPT["nbf"]
FA=0; FB=16; KF=32; PF=0; BF=32; VF=32+4*NBF; NACC=VF+32

OSC = ["", " sc1", " nt", " sc0 sc1"][OPT["osc"]]
def nt(k): return " nt" if OPT[k] else ""

def srd(a, b, lo, hi, nrec):
    a(f"s_mov_b32 s{b}, s{lo}")
    a(f"s_and_b32 s{b+1}, s{hi}, 0xffff")
    a(f"s_mov_b32 s{b+2}, {nrec}")
    a(f"s_mov_b32 s{b+3}, 0x20000")

def kv_soffset(a, dst, head_s):
    a(f"s_lshl_b32 s{S_T0}, s{S_B}, 4")
    a(f"s_lshr_b32 s{S_T1}, s{head_s}, 1")
    a(f"s_add_u32 s{S_T0}, s{S_T0}, s{S_T1}")
    a(f"s_lshl_b32 s{S_T1}, s{S_B}, 5")
    a(f"s_add_u32 s{S_T1}, s{S_T1}, s{head_s}")
    a(f"s_cmp_eq_u32 s{S_BR}, 0")
    a(f"s_cselect_b32 s{dst}, s{S_T0}, s{S_T1}")
    a(f"s_lshl_b32 s{dst}, s{dst}, 13")

def head_u(a, u):
    ORD2 = {0: [[0,1,2,3]]*4, 1: [[0,1,2,3],[1,2,3,0],[2,3,0,1],[3,0,1,2]],
            2: [[0,1,2,3],[1,0,2,3],[0,2,1,3],[0,1,3,2]],
            3: [[0,1,2,3],[1,0,3,2],[0,1,2,3],[1,0,3,2]],
            4: [[0,2,1,3],[1,0,2,3],[0,1,3,2],[1,3,0,2]]}[OPT["rot2"]]
    tab = sum(ORD2[j][u] << (2*j) for j in range(4))
    a(f"s_lshl_b32 s{S_T3}, s{S_SPLIT}, 2")
    if OPT["rot2"]:
        a(f"s_add_u32 s{S_T2}, s{S_RB}, s{S_CP}")
        a(f"s_and_b32 s{S_T2}, s{S_T2}, 3")
        a(f"s_lshl_b32 s{S_T2}, s{S_T2}, 1")
        a(f"s_lshr_b32 s{S_T2}, {tab}, s{S_T2}")
        a(f"s_and_b32 s{S_T2}, s{S_T2}, 3")
        a(f"s_add_u32 s{S_T3}, s{S_T3}, s{S_T2}")
    elif u: a(f"s_add_u32 s{S_T3}, s{S_T3}, {u}")

def rgroup(a):
    a(f"s_lshl_b32 s{S_RG}, s{S_BR}, 2")
    a(f"s_add_u32 s{S_RG}, s{S_RG}, s{S_RB}")
    a(f"s_lshl_b32 s{S_RG}, s{S_RG}, 2")
    a(f"s_add_u32 s{S_RG}, s{S_RG}, s{S_CP}")

def e_addr_r(a, dst, t):
    a(f"s_and_b32 s{S_T0}, s2, 0x7c")
    a(f"v_bfe_u32 v{dst}, v1, 1, 2")
    a(f"v_and_b32 v{t}, 1, v1")
    a(f"v_lshl_add_u32 v{dst}, v{t}, 7, v{dst}")
    a(f"v_add_u32 v{dst}, s{S_T0}, v{dst}")
    a(f"v_lshlrev_b32 v{dst}, 2, v{dst}")

def lcg(a, v):
    a(f"s_mov_b32 s{S_T0}, {LCG_A}")
    a(f"v_mul_lo_u32 v{v}, v{v}, s{S_T0}")
    a(f"v_add_u32 v{v}, {LCG_C}, v{v}")

def red_scalars(a):
    a(f"s_lshl_b32 s{S_T0}, s{S_RG}, 3")
    a(f"s_add_u32 s{S_T0}, s{S_T0}, s{S_SPLIT}")
    a(f"s_mul_i32 s{S_RD}, s{S_T0}, {8*SLICE}")
    a(f"s_add_u32 s{S_RD}, s{S_RD}, {PART_BASE}")
    a(f"s_lshl_b32 s{S_T0}, s{S_W}, 10")
    a(f"s_add_u32 s{S_RD}, s{S_RD}, s{S_T0}")
    a(f"s_lshl_b32 s{S_OA}, s{S_RB}, 3")
    a(f"s_add_u32 s{S_OA}, s{S_OA}, s{S_SPLIT}")
    a(f"s_mul_i32 s{S_OA}, s{S_OA}, {16*2304}")
    a(f"s_mul_i32 s{S_T0}, s{S_BR}, 1152")
    a(f"s_add_u32 s{S_OA}, s{S_OA}, s{S_T0}")
    a(f"s_mul_i32 s{S_T0}, s{S_CP}, 288")
    a(f"s_add_u32 s{S_OA}, s{S_OA}, s{S_T0}")
    a(f"s_mov_b32 s{S_ONE}, 0x3f80")
    a(f"s_mov_b32 s{S_ONEH}, 0x3f800000")

def stamp_out(a, widx):
    if not OPT["stamp"]: return
    a("s_waitcnt vmcnt(0)")
    a.stamp(2)
    a(f"s_lshl_b32 s{S_T2}, s2, 3")
    a(f"s_add_u32 s{S_T2}, s{S_T2}, s{S_W}")
    if widx: a(f"s_add_u32 s{S_T2}, s{S_T2}, 4")
    a(f"s_lshl_b32 s{S_T2}, s{S_T2}, 8")
    a(f"s_add_u32 s{S_T2}, s{S_T2}, {STAMP_BASE}")
    a(f"v_lshlrev_b32 v{T}, 2, v1")
    a(f"buffer_store_dword v{V_STAMP}, v{T}, s[{S_WS}:{S_WS+3}], s{S_T2} offen")

def spin(a, lbl, addr, tag, first_loaded, sleep=False, atomic=False):
    a(f"s_mov_b32 s{S_CNT}, 0")
    if first_loaded: a(f"s_branch {lbl}_chk")
    a.label(f"{lbl}_poll")
    if sleep: a(f"s_sleep {sleep}")
    if atomic:
        a(f"v_mov_b32 v{T+7}, 0")
        a("s_mov_b64 exec, 0xff")
        a(f"buffer_atomic_or v{T+7}, v{addr}, s[{S_WS}:{S_WS+3}], 0 offen sc0 sc1")
    else:
        a(f"buffer_load_dword v{T+7}, v{addr}, s[{S_WS}:{S_WS+3}], 0 offen sc1")
    a("s_waitcnt vmcnt(0)")
    a.label(f"{lbl}_chk")
    a(f"v_cmp_ne_u32 vcc, v{T+7}, v{tag}")
    a(f"s_add_u32 s{S_CNT}, s{S_CNT}, 1")
    a(f"s_cmp_ge_u32 s{S_CNT}, {SPIN_MAX}")
    a(f"s_cbranch_scc1 {lbl}_done")
    a("s_nop 1")
    a(f"s_cbranch_vccnz {lbl}_poll")
    a.label(f"{lbl}_done")
    if atomic: a("s_mov_b64 exec, -1")

def mb_wait(a, lbl, addr_v, off, val):
    a(f"s_mov_b32 s{S_CNT}, 0")
    a.label(lbl)
    a("s_sleep 1")
    a(f"ds_read_b32 v{T+1}, v{addr_v} offset:{off}")
    a(f"s_add_u32 s{S_CNT}, s{S_CNT}, 1")
    a("s_waitcnt lgkmcnt(0)")
    a(f"v_readfirstlane_b32 s{S_T0}, v{T+1}")
    a(f"s_cmp_ge_u32 s{S_CNT}, {SPIN_MAX*64}")
    a(f"s_cbranch_scc1 {lbl}_done")
    a(f"s_cmp_lt_u32 s{S_T0}, {val}")
    a(f"s_cbranch_scc1 {lbl}")
    a.label(f"{lbl}_done")

S_MO = 84
def member_offs(a):
    for k in range(1, 8):
        a(f"s_add_u32 s{S_T0}, s{S_SPLIT}, {k}")
        a(f"s_and_b32 s{S_T0}, s{S_T0}, 7")
        a(f"s_mul_i32 s{S_T0}, s{S_T0}, {SLICE}")
        a(f"s_add_u32 s{S_MO+k}, s{S_T0}, s{S_RD}")

def schedule():
    seq = []
    nxt = 2
    def free_upto(p):
        nonlocal nxt
        r = list(range(nxt, min(p+4, 17)+1)); nxt = max(nxt, min(p+4, 17)+1); return r
    for t in range(9):
        need = [pos_s1(t)] + ([KPOS] if t == KPOS else [])
        cons = pos_s1(t-1) if t > 0 else -1
        if t == KPOS: cons = KPOS-1
        seq.append((need, free_upto(cons)))
    seq.append(([], free_upto(9)))
    seq.append(([10, 11], []))
    seq.append(([], free_upto(10)))
    seq.append(([12, 13], free_upto(11)))
    seq.append(([], free_upto(12)))
    seq.append(([14, 15], free_upto(13)))
    seq.append(([], []))
    seq.append(([16, 17], []))
    return seq

def gen_loader(a):
    a.vm = []; a.nst = 1
    if OPT["prio"]: a(f"s_setprio {OPT['prio']}")
    a(f"v_lshrrev_b32 v{T+1}, 4, v1")
    a(f"s_lshl_b32 s{S_T0}, s{S_W}, 4")
    a(f"v_add_u32 v{T+3}, s{S_T0}, v{T+1}")
    a(f"v_lshlrev_b32 v{T+3}, 13, v{T+3}")
    a(f"v_and_b32 v{T+4}, 15, v1")
    a(f"v_lshlrev_b32 v{T+5}, 2, v{T+1}")
    a(f"v_xor_b32 v{T+4}, v{T+4}, v{T+5}")
    a(f"v_lshl_add_u32 v{VQ}, v{T+4}, 4, v{T+3}")
    for j in range(1,4):
        a(f"v_add_u32 v{VQ+j}, {31744*j}, v{VQ}")
    a(f"v_lshrrev_b32 v{T}, 3, v1")
    a(f"v_and_b32 v{T+2}, 7, v1")
    a(f"s_lshl_b32 s{S_T0}, s{S_W}, 5")
    a(f"v_add_u32 v{T+3}, s{S_T0}, v{T}")
    a(f"v_mul_u32_u24 v{T+3}, 1152, v{T+3}")
    a(f"v_xor_b32 v{T+2}, v{T+2}, v{T+1}")
    a(f"v_lshl_add_u32 v{VX}, v{T+2}, 4, v{T+3}")
    a(f"v_xor_b32 v{T+2}, 4, v{T+2}")
    a(f"v_lshl_add_u32 v{VX+1}, v{T+2}, 4, v{T+3}")
    a(f"v_add_u32 v{VX+1}, 8192, v{VX+1}")
    a(f"v_add_u32 v{VX+2}, 16384, v{VX}")
    a(f"v_add_u32 v{VX+3}, 16384, v{VX+1}")
    a(f"s_mul_i32 s{S_SOX}, s{S_RB}, 147456")
    a(f"s_lshl_b32 s{S_SOQ}, s{S_H}, 8")
    ORD1 = {0: [[0,1,2,3,4,5,6,7,8]]*4,
            1: [[0,1,4,2,3,5,8,6,7],[1,0,2,5,3,4,6,7,8],[2,0,1,3,6,4,5,7,8],[0,3,1,2,4,7,5,6,8]],
            2: [[0,1,2,4,3,5,6,8,7],[1,0,2,3,5,4,6,7,8],[0,2,1,3,4,6,5,7,8],[0,1,3,2,4,5,7,6,8]],
            3: [[0,4,1,2,3,8,5,6,7],[1,0,5,2,3,4,6,7,8],[2,0,1,6,3,4,5,7,8],[3,0,1,2,7,4,5,6,8]],
            5: [[0,2,1,3,5,4,6,8,7],[1,0,2,4,3,5,7,6,8],[0,1,3,2,4,5,6,7,8],[0,1,2,3,4,6,5,7,8]],
            6: [[0,2,1,4,3,6,5,8,7],[1,0,3,2,5,4,7,6,8],[0,1,2,3,4,5,6,7,8],[0,1,2,3,4,5,6,7,8]],
            7: [[0,1,2,4,3,5,6,8,7],[1,0,2,3,5,4,6,7,8],[0,2,1,3,4,6,5,7,8],[0,1,3,2,4,5,7,6,8]]}[OPT["rot1"]]
    pack = lambda o: sum(c << (4*i) for i, c in enumerate(o))
    a(f"s_{'add' if OPT['rot1'] >= 5 else 'sub'}_u32 s{S_T0}, s{S_RB}, s{S_HL}")
    a(f"s_and_b32 s{S_T0}, s{S_T0}, 3")
    a(f"s_mov_b32 s98, {pack(ORD1[0]) & 0xffffffff}")
    a(f"s_mov_b32 s99, {pack(ORD1[0]) >> 32}")
    for j in range(1, 4):
        if ORD1[j] != ORD1[0]:
            a(f"s_cmp_eq_u32 s{S_T0}, {j}")
            a(f"s_cselect_b32 s98, {pack(ORD1[j]) & 0xffffffff}, s98")
            a(f"s_cselect_b32 s99, {pack(ORD1[j]) >> 32}, s99")
    for b_, n_ in ((S_X, 589824), (S_WQ, 4718592)):
        a(f"s_mov_b32 s{b_+2}, {n_}")
        a(f"s_mov_b32 s{b_+3}, 0x20000")
    a(f"s_cmp_eq_u32 s{S_BR}, 0")
    a("s_waitcnt lgkmcnt(0)")
    a(f"s_cselect_b32 s{S_WQ}, s42, s52")
    a(f"s_cselect_b32 s{S_WQ+1}, s43, s53")
    a(f"s_cselect_b32 s{S_X}, s36, s46")
    a(f"s_cselect_b32 s{S_X+1}, s37, s47")
    a(f"s_and_b32 s{S_WQ+1}, s{S_WQ+1}, 0xffff")
    a(f"s_and_b32 s{S_X+1}, s{S_X+1}, 0xffff")
    a.stamp()
    def dma_s1(t):
        p = pos_s1(t)
        a(f"s_bfe_u32 s{S_CH}, s{98 + (t>>3)}, {(4 << 16) | (4*(t&7))}")
        a(f"s_add_u32 m0, s{S_LW4}, {base(p)+16384}")
        a(f"s_lshl_b32 s{S_T2}, s{S_CH}, 19")
        a(f"s_add_u32 s{S_T2}, s{S_T2}, s{S_SOQ}")
        for j in range(4):
            a.vmop(f"buffer_load_dwordx4 v{VQ+j}, s[{S_WQ}:{S_WQ+3}], s{S_T2} offen offset:{1024*j}{nt('ntq')} lds", f"p{p}")
        a(f"s_add_u32 m0, s{S_LW4}, {base(p)}")
        a(f"s_lshl_b32 s{S_T2}, s{S_CH}, 7")
        a(f"s_add_u32 s{S_T2}, s{S_T2}, s{S_SOX}")
        for j in range(4):
            a.vmop(f"buffer_load_dwordx4 v{VX+j}, s[{S_X}:{S_X+3}], s{S_T2} offen offset:{1024*j}{nt('ntx')} lds", f"p{p}")
    def dma_kv(srdb, soff, p, ntk):
        for half in range(2):
            a(f"s_add_u32 m0, s{S_LW8}, {base(p) + half*4096}")
            if half == 0: a(f"s_mov_b32 s{S_T2}, s{soff}")
            else: a(f"s_add_u32 s{S_T2}, s{soff}, 4096")
            for j in range(4):
                a.vmop(f"buffer_load_dwordx4 v{VK+j}, s[{srdb}:{srdb+3}], s{S_T2} offen offset:{1024*j}{nt(ntk)} lds", f"p{p}")
    def dma_wo(u, p):
        for j in range(9):
            if j%4 == 0:
                a(f"s_add_u32 m0, s{S_LWO}, {base(p) + 4096*(j>>2)}")
                a("s_nop 0")
            a.vmop(f"buffer_load_dwordx4 v{VO+j}, s[{S_WO}:{S_WO+3}], s{S_SOW[u]} offen offset:{1024*(j&3)}{nt('nto')} lds", f"p{p}")
    def dma_item(p):
        if p == KPOS: dma_kv(S_K, S_SOK, p, "ntk")
        elif p < 10: dma_s1(p if p < KPOS else p-1)
        else:
            u = (p-10)>>1
            if p & 1: dma_wo(u, p)
            else: dma_kv(S_V, S_SOV[u], p, "ntv")
    def setup_kv():
        a(f"s_mov_b32 s{S_T3}, 4194304")
        a(f"s_cmp_eq_u32 s{S_BR}, 0")
        for b_, idx, na in ((S_K,1,2097152),(S_V,2,2097152),(S_WO,4,None)):
            la = 36+2*idx; lb = 46+2*idx
            a(f"s_cselect_b32 s{b_}, s{la}, s{lb}")
            a(f"s_cselect_b32 s{b_+1}, s{la+1}, s{lb+1}")
            if na: a(f"s_cselect_b32 s{b_+2}, {na}, s{S_T3}")
            else: a(f"s_mov_b32 s{b_+2}, 4718592")
            a(f"s_mov_b32 s{b_+3}, 0x20000")
        for b_ in (S_K, S_V, S_WO): a(f"s_and_b32 s{b_+1}, s{b_+1}, 0xffff")
        a(f"v_lshrrev_b32 v{T}, 4, v1")
        a(f"v_and_b32 v{T+1}, 15, v1")
        for j in range(4):
            a(f"v_add_u32 v{VK+j}, {4*j}, v{T}")
            a(f"v_xor_b32 v{VK+j}, v{VK+j}, v{T+1}")
            a(f"v_lshlrev_b32 v{VK+j}, 4, v{VK+j}")
            a(f"v_lshl_add_u32 v{VK+j}, v{T}, 8, v{VK+j}")
        kv_soffset(a, S_SOK, S_H)
    def setup_vo(js):
        a(f"s_movk_i32 s{S_T0}, 3641")
        for j in js:
            a(f"v_add_u32 v{T}, {64*j}, v1")
            a(f"v_mul_u32_u24 v{T+1}, s{S_T0}, v{T}")
            a(f"v_lshrrev_b32 v{T+1}, 16, v{T+1}")
            a(f"v_mul_u32_u24 v{T+2}, 18, v{T+1}")
            a(f"v_sub_u32 v{T+2}, v{T}, v{T+2}")
            a(f"v_and_b32 v{T+3}, 0x13, v{T+1}")
            a(f"v_bfe_u32 v{T+4}, v{T+1}, 2, 1")
            a(f"v_lshl_add_u32 v{T+3}, v{T+4}, 3, v{T+3}")
            a(f"v_bfe_u32 v{T+4}, v{T+1}, 3, 1")
            a(f"v_lshl_add_u32 v{T+3}, v{T+4}, 2, v{T+3}")
            a(f"v_mul_u32_u24 v{T+3}, 1152, v{T+3}")
            a(f"v_lshl_add_u32 v{VO+j}, v{T+2}, 4, v{T+3}")
            if j&3: a(f"v_subrev_u32 v{VO+j}, {1024*(j&3)}, v{VO+j}")
    def setup_heads(us):
        for u in us:
            head_u(a, u)
            a(f"s_lshl_b32 s{S_T2}, s{S_T3}, 2")
            a(f"s_add_u32 s{S_T2}, s{S_T2}, s{S_W}")
            a(f"s_mul_i32 s{S_SOW[u]}, s{S_T2}, {32*1152}")
            a(f"s_mul_i32 s{S_T2}, s{S_CP}, 288")
            a(f"s_add_u32 s{S_SOW[u]}, s{S_SOW[u]}, s{S_T2}")
            a(f"s_mov_b32 s{S_SPU[u]}, s{S_T3}")
            kv_soffset(a, S_SOV[u], S_T3)
    PL = RB; PE = RB+32
    def setup_p():
        lcg(a, TAGP)
        a(f"v_lshlrev_b32 v{VL}, 4, v1")
        a(f"v_and_b32 v{T}, 3, v1")
        a(f"v_lshlrev_b32 v{T}, 1, v{T}")
        a(f"v_sub_u32 v{T}, 32, v{T}")
        a(f"s_lshl_b32 s{S_T0}, s{S_BR}, 4")
        a(f"s_add_u32 s{S_T0}, s{S_T0}, s{S_B}")
        a(f"s_lshl_b32 s{S_SOP}, s{S_T0}, 16")
        for u in range(4):
            a(f"s_and_b32 s{S_T0}, s{S_SPU[u]}, 3")
            a(f"v_readlane_b32 s{S_T1}, v{TAGP}, s{S_T0}")
            a(f"s_lshl_b32 s{S_SPU[u]}, s{S_SPU[u]}, 11")
            a(f"s_add_u32 s{S_SPU[u]}, s{S_SPU[u]}, s{S_SOP}")
            a(f"v_alignbit_b32 v{PE+2*u}, s{S_T1}, s{S_T1}, v{T}")
            a(f"v_lshlrev_b32 v{PE+2*u+1}, 1, v{PE+2*u}")
        a(f"s_mov_b32 s{S_C}, 0x07050301")
        a(f"s_mov_b32 s{S_TJ}, 0x7fff7fff")
        a(f"v_add_u32 v{T+6}, s{S_LW8}, v{VL}")
        a(f"v_add_u32 v{T+6}, {base(14)}, v{T+6}")
    def p_loads(track):
        for uu in range(4):
            for it in range(2):
                ins = f"buffer_load_dwordx4 v[{PL+8*uu+4*it}:{PL+8*uu+4*it+3}], v{VL}, s[{S_WS}:{S_WS+3}], s{S_SPU[uu]} offen offset:{1024*it} sc1"
                if track: a.vmop(ins, "Pld")
                else: a(ins)
    def p_check():
        a.wait_vm("Pld")
        a(f"s_mov_b32 s{S_CNT}, 0")
        a("s_branch L_pc_chk")
        a.label("L_pc_retry")
        a("s_sleep 4")
        p_loads(False)
        a("s_waitcnt vmcnt(0)")
        a.label("L_pc_chk")
        a(f"v_mov_b32 v{T}, 0")
        for q in range(8):
            d = PL+4*q; e = PE+2*(q>>1)
            a(f"v_perm_b32 v{T+1}, v{d+1}, v{d}, s{S_C}")
            a(f"v_perm_b32 v{T+2}, v{d+3}, v{d+2}, s{S_C}")
            a(f"v_xor_b32 v{T+1}, v{T+1}, v{e}")
            a(f"v_xor_b32 v{T+2}, v{T+2}, v{e+1}")
            a(f"v_or3_b32 v{T}, v{T}, v{T+1}, v{T+2}")
        a(f"v_and_b32 v{T}, 0x80808080, v{T}")
        a(f"v_cmp_ne_u32 vcc, 0, v{T}")
        a(f"s_add_u32 s{S_CNT}, s{S_CNT}, 1")
        a(f"s_cmp_ge_u32 s{S_CNT}, {SPIN_MAX}")
        a("s_cbranch_scc1 L_pc_done")
        a("s_nop 1")
        a("s_cbranch_vccnz L_pc_retry")
        a.label("L_pc_done")
        for q in range(8):
            d = PL+4*q
            for k in range(4): a(f"v_and_b32 v{d+k}, s{S_TJ}, v{d+k}")
    def p_write():
        for q in range(8):
            d = PL+4*q
            a(f"ds_write_b128 v{T+6}, v[{d}:{d+3}] offset:{1024*q}")
        a("s_waitcnt lgkmcnt(0)")
    def setup_e():
        a(f"v_and_b32 v{T}, 3, v1")
        a(f"v_lshlrev_b32 v{T}, 2, v{T}")
        a(f"v_mov_b32 v{T+1}, 0")
        a(f"ds_write_b32 v{T}, v{T+1} offset:{0}") if False else None
        a(f"v_add_u32 v{T}, {MBOX}, v{T}")
        a(f"ds_write_b32 v{T}, v{T+1}")
        e_addr_r(a, T, T+1)
        a(f"s_mov_b32 s{S_T1}, {E_BASE}")
        a.vmop(f"buffer_load_dword v{TAGR}, v{T}, s[{S_WS}:{S_WS+3}], s{S_T1} offen sc1", "E")
        a(f"v_and_b32 v{T}, 3, v1")
        a(f"s_and_b32 s{S_T0}, s2, 0x9f")
        a(f"v_lshlrev_b32 v{T}, 5, v{T}")
        a(f"v_add_u32 v{T}, s{S_T0}, v{T}")
        a(f"v_lshlrev_b32 v{T}, 2, v{T}")
        a.vmop(f"buffer_load_dword v{TAGP}, v{T}, s[{S_WS}:{S_WS+3}], s{S_T1} offen sc1", "E")
        a("s_waitcnt lgkmcnt(0)")
    def setup_red():
        rgroup(a)
        red_scalars(a)
        lcg(a, TAGR)
        a(f"v_and_b32 v{T}, 7, v1")
        a(f"s_lshl_b32 s{S_T0}, s{S_RG}, 3")
        a(f"s_add_u32 s{S_T1}, s{S_T0}, s{S_SPLIT}")
        a(f"s_lshl_b32 s{S_T1}, s{S_T1}, 10")
        a(f"s_add_u32 s{S_T1}, s{S_T1}, {FR_BASE}")
        a(f"v_lshl_add_u32 v{FRA}, v{T}, 7, s{S_T1}")
        a(f"v_and_b32 v{T+8}, 15, v1")
        a(f"v_mul_u32_u24 v{T+8}, 2304, v{T+8}")
        a(f"v_bfe_u32 v{T+3}, v1, 4, 1")
        a(f"v_lshl_add_u32 v{T+8}, v{T+3}, 5, v{T+8}")
        a(f"v_bfe_u32 v{T+3}, v1, 5, 1")
        a(f"v_lshl_add_u32 v{T+8}, v{T+3}, 4, v{T+8}")
        a(f"s_lshl_b32 s{S_T0}, s{S_W}, 6")
        a(f"v_add_u32 v{T+8}, s{S_T0}, v{T+8}")
    dma_item(0); dma_item(1)
    setup_kv()
    srd(a, S_WS, 60, 61, WS_USED)
    srd(a, S_OUT, 56, 57, 1179648)
    a.stamp()
    extra = {1: lambda: (setup_e(), setup_heads([0])), 2: lambda: setup_vo([0,1,2]), 3: lambda: setup_vo([3,4,5]), 4: lambda: setup_vo([6,7,8]),
             5: lambda: (a(f"s_mul_i32 s{S_LWO}, s{S_W}, 9216"), setup_heads([1])), 6: lambda: setup_heads([2,3]), 10: setup_p, 12: setup_red}
    if OPT['pearly']: extra[14] = p_check; extra[15] = p_write
    else: extra[15] = lambda: (p_check(), p_write())
    for i,(need,iss) in enumerate(schedule()):
        if need: a.wait_vm(*[f"p{s}" for s in need])
        a("s_barrier")
        if i == (13 if OPT['pearly'] == 1 else 14 if OPT['pearly'] == 0 else -1): p_loads(True)
        if i == 14 and OPT['lprio2']: a('s_setprio 1')
        for s in iss: dma_item(s)
        if i == 13 and OPT['pearly'] == 2: p_loads(True)
        if i in extra: extra[i]()
        a.stamp()
    LD=RB; RA=RB+32
    for r in range(8): a(f"v_mov_b32 v{RA+r}, 0")
    a(f"v_mov_b32 v{T}, {MBOX}")
    if OPT["own"]:
        member_offs(a)
        a(f"s_lshl_b32 s{S_T0}, s{S_W}, 10")
        a(f"s_add_u32 s{S_T0}, s{S_T0}, {base(15)}")
        a(f"v_add_u32 v{T+9}, s{S_T0}, v{VL}")
    if OPT["two"]:
        a(f"s_cmp_eq_u32 s{S_W}, 3")
        a(f"s_cselect_b32 s{S_T2}, 8, 0")
        a(f"s_cselect_b32 s{S_T3}, {256<<10}, 0")
        a(f"v_add_u32 v{T}, s{S_T2}, v{T}")
        a(f"v_add_u32 v{FRA}, s{S_T3}, v{FRA}")
        a(f"s_and_b32 s{S_T2}, s{S_W}, 3")
        a(f"s_cmp_eq_u32 s{S_W}, 1")
        a("s_cbranch_scc1 L_lgo")
        a(f"s_cmp_eq_u32 s{S_W}, 2")
        a("s_cbranch_scc1 L_lgo")
        mb_wait(a, "L_mb", T, 0, 4)
        spin(a, "L_rw", FRA, TAGR, False, OPT["gsl"], OPT["apoll"])
        a(f"v_mov_b32 v{T+1}, 1")
        a(f"ds_write_b32 v{T}, v{T+1} offset:4")
        a("s_branch L_lred")
        a.label("L_lgo")
        mb_wait(a, "L_go", T, 4, 1)
        a.label("L_lred")
    elif OPT["onep"]:
        a(f"s_cmp_lg_u32 s{S_W}, 0")
        a("s_cbranch_scc1 L_lgo")
        mb_wait(a, "L_mb", T, 0, 4)
        if OPT["pp"]:
            a(f"s_mov_b32 s{S_CNT}, 0")
            a("s_mov_b64 exec, 0xff")
            a(f"v_mov_b32 v{T+7}, 0")
            a(f"buffer_atomic_or v{T+7}, v{FRA}, s[{S_WS}:{S_WS+3}], 0 offen sc0 sc1")
            a.label("L_rw_poll")
            for (x, y) in ((T+5, T+7), (T+7, T+5)):
                a(f"s_sleep {OPT['ppsl']}")
                a(f"v_mov_b32 v{x}, 0")
                a(f"buffer_atomic_or v{x}, v{FRA}, s[{S_WS}:{S_WS+3}], 0 offen sc0 sc1")
                a("s_waitcnt vmcnt(1)")
                a(f"v_cmp_ne_u32 vcc, v{y}, v{TAGR}")
                a(f"s_add_u32 s{S_CNT}, s{S_CNT}, 1")
                a("s_nop 3")
                a("s_cbranch_vccz L_rw_done")
            a(f"s_cmp_lt_u32 s{S_CNT}, {SPIN_MAX}")
            a("s_cbranch_scc1 L_rw_poll")
            a.label("L_rw_done")
            a("s_mov_b64 exec, -1")
        else:
            spin(a, "L_rw", FRA, TAGR, False, OPT["gsl"], OPT["apoll"])
        a(f"v_mov_b32 v{T+1}, 1")
        a(f"ds_write_b32 v{T}, v{T+1} offset:4")
        a("s_branch L_lred")
        a.label("L_lgo")
        mb_wait(a, "L_go", T, 4, 1)
        a.label("L_lred")
    else:
        mb_wait(a, "L_mb", T, 0, 4)
        spin(a, "L_rw", FRA, TAGR, False, OPT["gsl"], OPT["apoll"])
    a.stamp(2)
    def member_off(k):
        a(f"s_add_u32 s{S_T0}, s{S_SPLIT}, {k}")
        a(f"s_and_b32 s{S_T0}, s{S_T0}, 7")
        a(f"s_mul_i32 s{S_T0}, s{S_T0}, {SLICE}")
        a(f"s_add_u32 s{S_T0}, s{S_T0}, s{S_RD}")
    if OPT["own"]:
        for k in range(1, 8):
            a(f"buffer_load_dwordx4 v[{LD+4*k}:{LD+4*k+3}], v{VL}, s[{S_WS}:{S_WS+3}], s{S_MO+k} offen sc1")
        a(f"ds_read_b128 v[{LD}:{LD+3}], v{T+9}")
        for j in range(8):
            a("s_waitcnt lgkmcnt(0)" if j == 0 else f"s_waitcnt vmcnt({7-j})")
            for d in range(4):
                a(f"v_dot2c_f32_bf16 v{RA+2*d}, s{S_ONE}, v{LD+4*j+d}")
                a(f"v_dot2c_f32_bf16 v{RA+2*d+1}, s{S_ONEH}, v{LD+4*j+d}")
    else:
        for j in range(8):
            a(f"buffer_load_dwordx4 v[{LD+4*j}:{LD+4*j+3}], v{VL}, s[{S_WS}:{S_WS+3}], s{S_RD} offen sc1")
            if j < 7: a(f"s_add_u32 s{S_RD}, s{S_RD}, {SLICE}")
        for j in range(8):
            a(f"s_waitcnt vmcnt({7-j})")
            for d in range(4):
                a(f"v_dot2c_f32_bf16 v{RA+2*d}, s{S_ONE}, v{LD+4*j+d}")
                a(f"v_dot2c_f32_bf16 v{RA+2*d+1}, s{S_ONEH}, v{LD+4*j+d}")
    a("s_nop 2")
    for d in range(4): a(f"v_cvt_pk_bf16_f32 v{LD+d}, v{RA+2*d}, v{RA+2*d+1}")
    a("s_nop 1")
    a(f"v_permlane16_swap_b32 v{LD}, v{LD+2}")
    a(f"v_permlane16_swap_b32 v{LD+1}, v{LD+3}")
    a("s_nop 1")
    a(f"buffer_store_dwordx4 v[{LD}:{LD+3}], v{T+8}, s[{S_OUT}:{S_OUT+3}], s{S_OA} offen{OSC}")
    a.label("L_ldone")
    stamp_out(a, 1)
    a("s_endpgm")

def gen_compute_pro(a):
    a.vm = []; a.nst = 1
    if OPT["cprio"]: a(f"s_setprio {OPT['cprio']}")
    if OPT["cpf"]:
        a("s_getpc_b64 s[98:99]")
        a.label("L_pc")
        a(f"s_lshr_b32 s{S_T0}, s2, 3")
        a(f"s_mul_i32 s{S_T0}, s{S_T0}, 768")
        a(f"v_min_u32 v{T}, 5, v1")
        a(f"v_lshlrev_b32 v{T}, 7, v{T}")
        a(f"v_add_u32 v{T}, s{S_T0}, v{T}")
        a(f"v_min_u32 v{T}, L_fin-L_pc-4, v{T}")
        a(f"s_cmp_lg_u32 s{S_W}, 0")
        a("s_cbranch_scc1 L_nopf")
        a(f"global_load_dword v{T+7}, v{T}, s[98:99]")
        a.label("L_nopf")
    a(f"v_and_b32 v{T}, 31, v1")
    a(f"v_lshrrev_b32 v{T+1}, 5, v1")
    a(f"v_bfe_u32 v{T+2}, v1, 1, 3")
    a(f"v_xor_b32 v{T+2}, v{T+2}, v{T+1}")
    a(f"v_lshlrev_b32 v{T+2}, 4, v{T+2}")
    a(f"v_lshl_add_u32 v{T+2}, v{T}, 7, v{T+2}")
    a(f"v_add_u32 v{AX}, s{S_LW4}, v{T+2}")
    for ks in range(1,4): a(f"v_xor_b32 v{AX+ks}, {32*ks}, v{AX}")
    a(f"v_bfe_u32 v{T}, v1, 2, 2")
    a(f"v_lshl_add_u32 v{T+2}, v{T+1}, 3, v{T}")
    a(f"v_lshlrev_b32 v{T+2}, 8, v{T+2}")
    a(f"v_lshl_add_u32 v{T+2}, v{T}, 6, v{T+2}")
    a(f"v_bfe_u32 v{T+3}, v1, 4, 1")
    a(f"v_lshl_add_u32 v{T+2}, v{T+3}, 5, v{T+2}")
    a(f"v_and_b32 v{T+3}, 1, v1")
    a(f"v_lshl_add_u32 v{T+2}, v{T+3}, 4, v{T+2}")
    a(f"v_bfe_u32 v{T+3}, v1, 1, 1")
    a(f"v_lshl_add_u32 v{T+2}, v{T+3}, 3, v{T+2}")
    a(f"v_add_u32 v{AQ}, 16384, v{T+2}")
    for t in range(1,4): a(f"v_xor_b32 v{AQ+t}, {64*t}, v{AQ}")
    a.stamp()


def gen_compute(a):
    a.vm = []; a.nst = 2 if OPT['stamp'] == 1 else 1
    fill = []
    F = fill.append
    for ks in range(4): F(f"v_add_u32 v{AX+4+ks}, {2*SLOT}, v{AX+ks}")
    for t in range(4): F(f"v_add_u32 v{AQ+4+t}, {2*SLOT}, v{AQ+t}")
    class FA_:
        def __call__(self, s): F(s)
    fa = FA_()
    F("s_waitcnt lgkmcnt(0)")
    fill.pop()
    srd(fa, S_WS, 60, 61, WS_USED)
    srd(fa, S_OUT, 56, 57, 1179648)
    F(f"v_and_b32 v{T}, 31, v1")
    F(f"v_and_b32 v{T+2}, 15, v1")
    F(f"v_xor_b32 v{T+2}, v{T+2}, v{T+1}")
    F(f"v_lshlrev_b32 v{T+2}, 4, v{T+2}")
    F(f"v_lshl_add_u32 v{T+2}, v{T}, 8, v{T+2}")
    F(f"v_add_u32 v{T+9}, s{S_LW8}, v{T+2}")
    if base(KPOS) >= 65536-0: F(f"v_add_u32 v{T+9}, {base(KPOS)}, v{T+9}")
    e_addr_r(fa, T+3, T+4)
    F(f"s_mov_b32 s{S_T1}, {E_BASE}")
    F(("vm", f"buffer_load_dword v{TAGR}, v{T+3}, s[{S_WS}:{S_WS+3}], s{S_T1} offen sc1", "E"))
    rgroup(fa)
    F(f"v_lshrrev_b32 v{T}, 4, v1")
    F(f"v_and_b32 v{T+3}, 15, v1")
    F(f"v_xor_b32 v{T+2}, v{T}, v{T+3}")
    F(f"v_lshlrev_b32 v{T+2}, 4, v{T+2}")
    F(f"v_lshl_add_u32 v{T+2}, v{T+3}, 8, v{T+2}")
    F(f"v_add_u32 v{T+2}, {base(10)}, v{T+2}")
    F(f"v_add_u32 v{AV}, s{S_LW8}, v{T+2}")
    for ks in range(1,4): F(f"v_xor_b32 v{AV+ks}, {64*ks}, v{AV}")
    F(f"v_lshlrev_b32 v{VL}, 4, v1")
    F(f"v_lshlrev_b32 v{T}, 4, v{T+1}")
    F(f"v_bfe_u32 v{T+2}, v1, 4, 1")
    F(f"v_lshl_add_u32 v{T}, v{T+2}, 2, v{T}")
    F(f"v_bfe_u32 v{T+4}, v1, 2, 2")
    F(f"v_add_u32 v{T}, v{T}, v{T+4}")
    F(f"v_mul_u32_u24 v{T}, 288, v{T}")
    F(f"v_and_b32 v{T+4}, 3, v1")
    F(f"v_lshl_add_u32 v{T}, v{T+4}, 3, v{T}")
    F(f"v_add_u32 v{AO}, {base(11)}, v{T}")
    F(f"v_add_u32 v{AO+1}, {base(13)}, v{T}")
    F(f"v_lshlrev_b32 v{T+2}, 10, v{T+2}")
    F(f"v_lshl_add_u32 v{T+2}, v{T+1}, 8, v{T+2}")
    F(f"v_lshl_add_u32 v{T+8}, v{T+3}, 4, v{T+2}")
    F(f"v_mul_u32_u24 v{T+6}, 2304, v{T+3}")
    F(f"v_lshrrev_b32 v{T+2}, 4, v1")
    F(f"v_lshlrev_b32 v{T+2}, 3, v{T+2}")
    F(f"v_add_u32 v{T+2}, 256, v{T+2}")
    F(f"v_add_u32 v{T+6}, v{T+6}, v{T+2}")
    F(f"s_lshl_b32 s{S_T0}, s{S_BR}, 4")
    F(f"s_add_u32 s{S_T0}, s{S_T0}, s{S_B}")
    F(f"s_lshl_b32 s{S_SOP}, s{S_T0}, 16")
    F(f"s_lshl_b32 s{S_T0}, s{S_H}, 11")
    F(f"s_add_u32 s{S_SOP}, s{S_SOP}, s{S_T0}")
    F(f"s_mov_b32 s{S_C}, 0x3e0293ee")
    F(f"s_mov_b32 s{S_CC}, 0x3e0293ee")
    F(f"s_mov_b32 s{S_CC+1}, 0x3e0293ee")
    F(f"s_lshl_b32 s{S_T0}, s{S_RG}, 2")
    F(f"s_add_u32 s{S_T0}, s{S_T0}, s{S_W}")
    F(f"s_lshl_b32 s{S_T0}, s{S_T0}, 4")
    F(f"s_add_u32 s{S_T0}, s{S_T0}, s{S_SPLIT}")
    F(f"s_mul_i32 s{S_PW}, s{S_T0}, {SLICE}")
    F(f"s_add_u32 s{S_PW}, s{S_PW}, {PART_BASE}")
    F(f"s_add_u32 s{S_PW1}, s{S_PW}, {8*SLICE}")
    red_scalars(fa)
    F(f"s_lshl_b32 s{S_T0}, s{S_W}, 10")
    F(f"s_sub_u32 s{S_RD}, s{S_RD}, s{S_T0}")
    fill2 = []
    PM = TAGP
    PMASK = [43, 45, PK+6, PK+7]
    def tags_setup():
        a.wait_vm("E")
        lcg(a, TAGR)
        a(f"v_and_b32 v{T}, 3, v1")
        a(f"v_readlane_b32 s{S_TAG}, v{TAGR}, s{S_SPLIT}")
        a(f"v_lshlrev_b32 v{T}, 1, v{T}")
        a(f"v_sub_u32 v{T}, 32, v{T}")
        a(f"v_mov_b32 v{VTG}, s{S_TAG}")
        a(f"v_alignbit_b32 v{T}, v{VTG}, v{VTG}, v{T}")
        a(f"v_lshlrev_b32 v{T+2}, 1, v{T}")
        a(f"v_and_b32 v{T}, 0x80808080, v{T}")
        a(f"v_and_b32 v{T+2}, 0x80808080, v{T+2}")
        a(f"s_mov_b32 s{S_T0}, 0x010c000c")
        a(f"s_mov_b32 s{S_T1}, 0x030c020c")
        a(f"v_perm_b32 v{PMASK[0]}, v{T}, v{T}, s{S_T0}")
        a(f"v_perm_b32 v{PMASK[1]}, v{T}, v{T}, s{S_T1}")
        a(f"v_perm_b32 v{PMASK[2]}, v{T+2}, v{T+2}, s{S_T0}")
        a(f"v_perm_b32 v{PMASK[3]}, v{T+2}, v{T+2}, s{S_T1}")
    def filler(n):
        for _ in range(n):
            if not fill: return
            x = fill.pop(0)
            if isinstance(x, tuple): a.vmop(x[1], x[2])
            else: a(x)

    def rdB(st, ks, buf):
        slot = pos_s1(st)%4; s2 = (slot>>1)*4; off = (slot&1)*SLOT
        a.ds(f"ds_read_b128 a[{FB+4*buf}:{FB+4*buf+3}], v{AX+s2+ks} offset:{off}", f"B{st}_{ks}")
    def rdA(st, ks, t, buf):
        slot = pos_s1(st)%4; s2 = (slot>>1)*4; off = (slot&1)*SLOT + ks*4096
        a.ds(f"ds_read_b64_tr_b16 a[{FA+4*buf}:{FA+4*buf+1}], v{AQ+s2+t} offset:{off}", f"A{st}_{ks}_{t}")
        a.ds(f"ds_read_b64_tr_b16 a[{FA+4*buf+2}:{FA+4*buf+3}], v{AQ+s2+t} offset:{off+1024}", f"A{st}_{ks}_{t}")
    def mm32(st, ks, t, abuf, bbuf):
        a.wait_lg(f"B{st}_{ks}", f"A{st}_{ks}_{t}")
        c = "0" if (st == 0 and ks == 0) else f"v[{ACC+16*t}:{ACC+16*t+15}]"
        a(f"v_mfma_f32_32x32x16_bf16 v[{ACC+16*t}:{ACC+16*t+15}], a[{FA+4*abuf}:{FA+4*abuf+3}], a[{FB+4*bbuf}:{FB+4*bbuf+3}], {c}")
    def rdK(kk):
        koff = base(KPOS) if base(KPOS) < 65536 else 0
        a(f"v_xor_b32 v{T+5}, {32*kk}, v{T+9}")
        a.ds(f"ds_read_b128 a[{KF+4*kk}:{KF+4*kk+3}], v{T+5} offset:{koff}", f"K{kk}")
    a("s_waitcnt lgkmcnt(0)")
    if OPT["tlb"]:
        a(f"s_cmp_lg_u32 s{S_W}, 1")
        a("s_cbranch_scc1 L_notlb")
        kv_soffset(a, S_T2, S_H)
        a(f"s_cmp_eq_u32 s{S_BR}, 0")
        a(f"s_cselect_b32 s98, s38, s48")
        a(f"s_cselect_b32 s99, s39, s49")
        a(f"v_mov_b32 v{T}, s{S_T2}")
        a(f"global_load_dword v{T+7}, v{T}, s[98:99]")
        a(f"s_cmp_eq_u32 s{S_BR}, 0")
        a(f"s_cselect_b32 s98, s40, s50")
        a(f"s_cselect_b32 s99, s41, s51")
        a(f"global_load_dword v{T+7}, v{T}, s[98:99]")
        a(f"s_cselect_b32 s98, s44, s54")
        a(f"s_cselect_b32 s99, s45, s55")
        a(f"s_mul_i32 s{S_T0}, s{S_SPLIT}, 589824")
        a(f"v_and_b32 v{T}, 1, v1")
        a(f"v_mul_u32_u24 v{T}, 589820, v{T}")
        a(f"v_add_u32 v{T}, s{S_T0}, v{T}")
        a(f"global_load_dword v{T+7}, v{T}, s[98:99]")
        a(f"s_mul_i32 s{S_T0}, s{S_RB}, {128*2304}")
        a(f"v_mov_b32 v{T}, s{S_T0}")
        a(f"global_load_dword v{T+7}, v{T}, s[56:57]")
        a(f"v_and_b32 v{T}, 7, v1")
        a(f"v_lshlrev_b32 v{T}, 21, v{T}")
        a(f"v_add_u32 v{T}, {(2<<20)-4}, v{T}")
        a(f"global_load_dword v{T+7}, v{T}, s[60:61] sc1")
        a.label("L_notlb")
    a("s_barrier")
    a.stamp(2)
    rdB(0,0,0)
    for t in range(4): rdA(0,0,t,t)
    for st in range(8):
        for ks in range(3):
            for t in range(4):
                mm32(st, ks, t, t, ks&1)
                if t == 0: rdB(st, ks+1, (ks+1)&1)
                rdA(st, ks+1, t, t)
                if st == KPOS and ks < 2: rdK(4*ks+t)
                else: filler(OPT["nfill"] if st else 3)
            if st == 7 and ks == 1: tags_setup()
        mm32(st, 3, 0, 0, 1)
        mm32(st, 3, 1, 1, 1)
        a.wait_lg0()
        a("s_barrier")
        a.stamp()
        if st < 7:
            rdB(st+1, 0, 0); rdA(st+1, 0, 0, 0); rdA(st+1, 0, 1, 1)
            mm32(st, 3, 2, 2, 1); rdA(st+1, 0, 2, 2)
            mm32(st, 3, 3, 3, 1); rdA(st+1, 0, 3, 3)
        else:
            rdB(8, 0, 0); rdA(8, 0, 0, 0); rdA(8, 1, 0, 1); rdB(8, 2, 2)
            mm32(st, 3, 2, 2, 1); rdA(8, 2, 0, 2); rdB(8, 3, 3)
            mm32(st, 3, 3, 3, 1); rdB(8, 1, 1); rdA(8, 3, 0, 3)
    assert not fill, len(fill)
    def qcvt(t):
        for r in range(8): a(f"v_cvt_pk_bf16_f32 v{QB+8*t+r}, v{ACC+16*t+2*r}, v{ACC+16*t+2*r+1}")
    for t in range(4):
        for ks in range(4):
            mm32(8, ks, t, ks, ks)
            if t < 3: rdA(8, ks, t+1, ks)
            if t == 3 and ks == 1:
                a.wait_lg0()
                a("s_barrier")
                a.stamp(2)
                a("s_nop 3")
            if ks == 2 and t > 0: qcvt(t-1)
    for kk in range(8):
        if kk == 6: a("s_nop 0")
        c = "0" if kk == 0 else f"v[{SA}:{SA+15}]"
        a(f"v_mfma_f32_32x32x16_bf16 v[{SA}:{SA+15}], a[{KF+4*kk}:{KF+4*kk+3}], v[{QB+4*kk}:{QB+4*kk+3}], {c}")
        if kk == 5:
            a("s_nop 5")
            qcvt(3)
    a("s_nop 11")
    M=T+4; M2=T+5
    a(f"v_max3_f32 v{M}, v{SA}, v{SA+1}, v{SA+2}")
    a(f"v_max3_f32 v{M2}, v{SA+3}, v{SA+4}, v{SA+5}")
    a(f"v_max3_f32 v{M}, v{M}, v{SA+6}, v{SA+7}")
    a(f"v_max3_f32 v{M2}, v{M2}, v{SA+8}, v{SA+9}")
    a(f"v_max3_f32 v{M}, v{M}, v{SA+10}, v{SA+11}")
    a(f"v_max3_f32 v{M2}, v{M2}, v{SA+12}, v{SA+13}")
    a(f"v_max3_f32 v{M}, v{M}, v{SA+14}, v{SA+15}")
    a(f"v_max_f32 v{M}, v{M}, v{M2}")
    a(f"v_mov_b32 v{M2}, v{M}")
    a("s_nop 1")
    a(f"v_permlane32_swap_b32 v{M}, v{M2}")
    a("s_nop 1")
    a(f"v_max_f32 v{M}, v{M}, v{M2}")
    a(f"v_mul_f32 v{M}, s{S_C}, v{M}")
    if OPT["pksm"]:
        a(f"v_mov_b32 v{M2}, v{M}")
        a(f"s_mov_b32 s{S_C+1}, s{S_C}") if False else None
        for r in range(0,16,2): a(f"v_pk_fma_f32 v[{SA+r}:{SA+r+1}], v[{SA+r}:{SA+r+1}], s[{S_CC}:{S_CC+1}], v[{M}:{M2}] neg_lo:[0,0,1] neg_hi:[0,0,1]")
    else:
        for r in range(16): a(f"v_fma_f32 v{SA+r}, v{SA+r}, s{S_C}, -v{M}")
    for r in range(16): a(f"v_exp_f32 v{SA+r}, v{SA+r}")
    a("s_nop 0")
    if OPT["pksm"]:
        a(f"v_pk_add_f32 v[{M}:{M2}], v[{SA}:{SA+1}], v[{SA+2}:{SA+3}]")
        a(f"v_pk_add_f32 v[{QB}:{QB+1}], v[{SA+4}:{SA+5}], v[{SA+6}:{SA+7}]")
        a(f"v_pk_add_f32 v[{M}:{M2}], v[{M}:{M2}], v[{SA+8}:{SA+9}]")
        a(f"v_pk_add_f32 v[{QB}:{QB+1}], v[{QB}:{QB+1}], v[{SA+10}:{SA+11}]")
        a(f"v_pk_add_f32 v[{M}:{M2}], v[{M}:{M2}], v[{SA+12}:{SA+13}]")
        a(f"v_pk_add_f32 v[{QB}:{QB+1}], v[{QB}:{QB+1}], v[{SA+14}:{SA+15}]")
        a(f"v_pk_add_f32 v[{M}:{M2}], v[{M}:{M2}], v[{QB}:{QB+1}]")
    else:
        a(f"v_add_f32 v{M}, v{SA}, v{SA+1}")
        a(f"v_add_f32 v{M2}, v{SA+2}, v{SA+3}")
        for r in range(4,16,2):
            a(f"v_add_f32 v{M}, v{M}, v{SA+r}")
            a(f"v_add_f32 v{M2}, v{M2}, v{SA+r+1}")
    a(f"v_add_f32 v{M}, v{M}, v{M2}")
    a(f"v_mov_b32 v{M2}, v{M}")
    a("s_nop 1")
    a(f"v_permlane32_swap_b32 v{M}, v{M2}")
    a("s_nop 1")
    a(f"v_add_f32 v{M}, v{M}, v{M2}")
    a(f"v_rcp_f32 v{M}, v{M}")
    a("s_nop 0")
    if OPT["pksm"]:
        a(f"v_mov_b32 v{M2}, v{M}")
        for r in range(0,16,2): a(f"v_pk_mul_f32 v[{SA+r}:{SA+r+1}], v[{SA+r}:{SA+r+1}], v[{M}:{M2}]")
    else:
        for r in range(16): a(f"v_mul_f32 v{SA+r}, v{SA+r}, v{M}")
    PX=QB; PY=QB+4
    for k,r in enumerate([0,2,8,10]): a(f"v_cvt_pk_bf16_f32 v{PX+k}, v{SA+r}, v{SA+r+1}")
    for k,r in enumerate([4,6,12,14]): a(f"v_cvt_pk_bf16_f32 v{PY+k}, v{SA+r}, v{SA+r+1}")
    for k in range(8): a(f"v_or_b32 v{PX+k}, v{PX+k}, v{PMASK[k&3]}")
    a.vmop(f"buffer_store_dwordx4 v[{PX}:{PX+3}], v{T+8}, s[{S_WS}:{S_WS+3}], s{S_SOP} offen sc1", "Pst")
    a.vmop(f"buffer_store_dwordx4 v[{PY}:{PY+3}], v{T+8}, s[{S_WS}:{S_WS+3}], s{S_SOP} offen offset:512 sc1", "Pst")
    a(f"v_mov_b32 v{T+9}, 0")

    def flag_store(tagname, soff, off=0):
        a("s_mov_b64 exec, 1")
        a.vmop(f"buffer_store_dword v{VTG}, v{T+9}, s[{S_WS}:{S_WS+3}], s{soff} offen offset:{off} sc1", tagname)
        a("s_mov_b64 exec, -1")
    def mb_add(tp):
        a("s_mov_b64 exec, 1")
        a.ds(f"ds_add_u32 v{T+4}, v{T+2} offset:{4*tp}", "mb")
        a("s_mov_b64 exec, -1")
    def pkreg(u, t): return (STASH+12*t+4*u) if u < 3 else (PK+4*(t&1))
    def outreg(it, t): return RB + 12*t + 4*it
    dsq = []
    for f in range(144):
        g, ks = divmod(f, 4); u, t = divmod(g, 9); sl = BF + 4*(f % NBF)
        if t == 0:
            for st in range(2):
                pre = None; ad = AV+ks
                if u&1:
                    ad = T+5
                    if st == 0: pre = f"v_add_u32 v{T+5}, {(base(12)-base(10)) & 0xffffffff}, v{AV+ks}"
                dsq.append([f-4 if u else -1, u, f"ds_read_b128 a[{VF+16*st+4*ks}:{VF+16*st+4*ks+3}], v{ad} offset:{st*4096}", f"V{u}_{ks}", pre, f])
        for h in range(2):
            dsq.append([f-NBF, u, f"ds_read_b64_tr_b16 a[{sl+2*h}:{sl+2*h+1}], v{AO+(u&1)} offset:{ks*9216+h*2304+t*32}", f"W{f}", None, f])
    state = dict(pairs=-1, head=0)
    def ds_pop(n=1):
        k = 0
        while k < n:
            cand = [e for e in dsq if e[0] <= state["pairs"] and e[1] <= state["head"]]
            if not cand: break
            e = min(cand, key=lambda e: e[5]); dsq.remove(e)
            if e[4]: a(e[4])
            a.ds(e[2], e[3]); k += 1
        return k
    vq = []
    nlab = [0]
    def v_pop(n):
        for _ in range(n):
            if not vq: return
            x = vq.pop(0)
            if isinstance(x, tuple):
                if OPT["own"]:
                    k = nlab[0]; nlab[0] += 1
                    a(f"s_cbranch_{'vccnz' if x[2] == 0 else 'scc1'} L_ow{k}")
                    a.vmop(x[0], x[1])
                    a.label(f"L_ox{k}")
                    a.ool += [f"L_ow{k}:", "    " + x[3], f"    s_branch L_ox{k}"]
                else: a.vmop(x[0], x[1])
            else: a(x)
    def q_cvt(g):
        u, t = divmod(g, 9)
        w = VW+8*(g&1); p = pkreg(u, t)
        for k in range(4): vq.append(f"v_cvt_pk_bf16_f32 v{p+k}, v{w+2*k}, v{w+2*k+1}")
    def q_pair(tp):
        for it in range(2):
            so = S_PW if it == 0 else S_PW1
            d = RB + 12*(2*tp+it) + 8
            for h in range(2):
                o = outreg(it, 2*tp+h)
                vq.append(f"v_cvt_pk_bf16_f32 v{d+2*h}, v{o}, v{o+1}")
                vq.append(f"v_cvt_pk_bf16_f32 v{d+2*h+1}, v{o+2}, v{o+3}")
            vq.append((f"buffer_store_dwordx4 v[{d}:{d+3}], v{VL}, s[{S_WS}:{S_WS+3}], s{so} offen offset:{1024*tp} sc1", f"part{tp}", it, f"ds_write_b128 v{FPA}, v[{d}:{d+3}] offset:{1024*tp}"))
    def q_t8():
        for it in range(2):
            so = S_PW if it == 0 else S_PW1
            d = RB + 12*8 + 8 + 2*it
            o = outreg(it, 8)
            vq.append(f"v_cvt_pk_bf16_f32 v{d}, v{o}, v{o+1}")
            vq.append(f"v_cvt_pk_bf16_f32 v{d+1}, v{o+2}, v{o+3}")
            vq.append((f"buffer_store_dwordx2 v[{d}:{d+1}], v{T+8}, s[{S_WS}:{S_WS+3}], s{so} offen sc1", "part3", it, f"ds_write_b64 v{TAGP}, v[{d}:{d+1}]"))
    def vw(g, ks, st):
        f = 4*g+ks; sl = BF + 4*(f % NBF)
        w = VW+8*(g&1)+4*st
        c = "0" if ks == 0 else f"v[{w}:{w+3}]"
        a(f"v_mfma_f32_16x16x32_bf16 v[{w}:{w+3}], a[{VF+16*st+4*ks}:{VF+16*st+4*ks+3}], a[{sl}:{sl+3}], {c}")
    def pv1(u, t, it):
        p = pkreg(u, t); o = outreg(it, t)
        c = "0" if u == 0 else f"v[{o}:{o+3}]"
        a(f"v_mfma_f32_16x16x32_bf16 v[{o}:{o+3}], v[{p}:{p+3}], a[{PF+8*u+4*it}:{PF+8*u+4*it+3}], {c}")
    a("s_barrier")
    a.stamp(2)
    a.lq = []
    ds_pop(8+2*NBF)
    a(f"v_lshlrev_b32 v{T+8}, 3, v1")
    a(f"v_add_u32 v{T+8}, 4096, v{T+8}")
    a(f"v_mov_b32 v{T+4}, {MBOX}")
    a(f"v_mov_b32 v{T+2}, 1")
    a(f"s_lshl_b32 s{S_T0}, s{S_RG}, 2")
    a(f"s_add_u32 s{S_T0}, s{S_T0}, s{S_W}")
    a(f"s_lshl_b32 s{S_T0}, s{S_T0}, 4")
    a(f"s_add_u32 s{S_T0}, s{S_T0}, s{S_SPLIT}")
    a(f"s_lshl_b32 s{S_T0}, s{S_T0}, 7")
    a(f"s_add_u32 s{S_T0}, s{S_T0}, {FR_BASE}")
    a(f"v_lshl_add_u32 v{T+3}, v1, 10, s{S_T0}")
    a(f"v_add_u32 v{FPA}, {base(15)}, v{VL}")
    a(f"v_add_u32 v{TAGP}, {base(15)}, v{T+8}")
    a(f"s_cmp_eq_u32 s{S_W}, s{S_HQ}")
    a(f"s_cselect_b32 s{S_OWN}, s{S_KQ}, 7")
    a(f"v_add_u32 v{T+7}, s{S_LW8}, v{VL}")
    a(f"v_add_u32 v{T+7}, {base(14)}, v{T+7}")
    MKS = OPT["mks"]
    for g in range(36):
        u, t = divmod(g, 9)
        haspv = (u == 3 and t > 0)
        for ks in range(4):
            f = 4*g+ks
            assert not any(e[5] <= f for e in dsq), (f, dsq[0])
            a.wait_lg(f"W{f}", f"V{u}_{ks}")
            extra_ds = 2 if (t == 0 or (t == 8 and ks > MKS)) else 1
            vw(g, ks, 0)
            ds_pop(extra_ds)
            if not haspv and ks >= 2: v_pop(1)
            vw(g, ks, 1)
            state["pairs"] = f
            if u < 3 and t == 8 and ks == MKS:
                assert not any(e[1] <= u for e in dsq)
                a.wait_lg0()
                a("s_barrier")
                a.stamp(2)
                state["head"] = u+1
                ds_pop(6)
            else:
                ds_pop(extra_ds)
            if not haspv and ks >= 2: v_pop(1)
            if g > 0 and ks == 1 and not haspv: q_cvt(g-1)
            if g == 28 and ks == 0 and OPT["own"]:
                a(f"s_cmp_eq_u32 s{S_OWN}, 0")
                a("s_cselect_b64 vcc, -1, 0")
                a(f"s_cmp_eq_u32 s{S_OWN}, 1")
            if u == 3 and t == 0:
                for q in (2*ks, 2*ks+1):
                    a.ds(f"ds_read_b128 a[{PF+4*q}:{PF+4*q+3}], v{T+7} offset:{1024*q}", f"P{q>>1}")
            if haspv:
                if t == 1: a.wait_lg(f"P{ks}")
                if ks == 1 and t in (3, 5, 7): q_pair((t-3)>>1)
                pv1(ks, t-1, 0); v_pop(2)
                if ks == 0: q_cvt(g-1)
                pv1(ks, t-1, 1)
                if ks < 3 or True: v_pop(2)
        assert not vq, (g, vq)
        if u < 3 and t == [OPT['r0pos'], OPT['r1pos'], OPT['rpos']][u]:
            a.wait_lg(f"V{u}_3")
            a("s_barrier")
    pv1(0, 8, 0); pv1(0, 8, 1); pv1(1, 8, 0); pv1(1, 8, 1); pv1(2, 8, 0)
    q_cvt(35); v_pop(2)
    pv1(2, 8, 1); v_pop(2)
    q_pair(3)
    v_pop(2)
    pv1(3, 8, 0); v_pop(2); pv1(3, 8, 1); v_pop(100)
    a("s_nop 0")
    q_t8(); v_pop(100)
    a.stamp(2)
    if OPT["two"]:
        a.wait_vm("part2")
        a("s_mov_b64 exec, 3")
        a(f"buffer_store_dword v{VTG}, v{T+3}, s[{S_WS}:{S_WS+3}], 0 offen sc1")
        a("s_mov_b64 exec, 1")
        a(f"ds_add_u32 v{T+4}, v{T+2}")
        a(f"s_mov_b32 s{S_T0}, {256<<10}")
        a("s_waitcnt vmcnt(1)")
        a("s_mov_b64 exec, 3")
        a(f"buffer_store_dword v{VTG}, v{T+3}, s[{S_WS}:{S_WS+3}], s{S_T0} offen sc1")
        a("s_mov_b64 exec, 1")
        a(f"ds_add_u32 v{T+4}, v{T+2} offset:8")
        a("s_mov_b64 exec, -1")
    else:
        a("s_waitcnt vmcnt(0)")
        a("s_mov_b64 exec, 3")
        a(f"buffer_store_dword v{VTG}, v{T+3}, s[{S_WS}:{S_WS+3}], 0 offen sc1")
        a("s_mov_b64 exec, 1")
        a(f"ds_add_u32 v{T+4}, v{T+2}")
        a("s_mov_b64 exec, -1")
    a.stamp(2)
    a(f"s_cmp_lg_u32 s{S_W}, 0")
    a("s_cbranch_scc1 L_cdone")
    LD=RB; RA=RB+32
    for r in range(4): a(f"v_mov_b32 v{RA+r}, 0")
    if OPT["own"]: member_offs(a)
    if OPT["two"]: mb_wait(a, "L_cgo", T+4, 12, 1)
    elif OPT["onep"]: mb_wait(a, "L_cgo", T+4, 4, 1)
    else: spin(a, "L_gw", FPA, TAGR, False, OPT["gsl"], OPT["apoll"])
    a.stamp()
    if OPT["own"]:
        for k in range(1, 8):
            a(f"buffer_load_dwordx2 v[{LD+2*k}:{LD+2*k+1}], v{T+8}, s[{S_WS}:{S_WS+3}], s{S_MO+k} offen sc1")
        a(f"ds_read_b64 v[{LD}:{LD+1}], v{TAGP}")
    else:
        for j in range(8):
            a(f"buffer_load_dwordx2 v[{LD+2*j}:{LD+2*j+1}], v{T+8}, s[{S_WS}:{S_WS+3}], s{S_RD} offen sc1")
            if j < 7: a(f"s_add_u32 s{S_RD}, s{S_RD}, {SLICE}")
    for j in range(8):
        a("s_waitcnt lgkmcnt(0)" if (j == 0 and OPT["own"]) else f"s_waitcnt vmcnt({7-j})")
        for d in range(2):
            a(f"v_dot2c_f32_bf16 v{RA+2*d}, s{S_ONE}, v{LD+2*j+d}")
            a(f"v_dot2c_f32_bf16 v{RA+2*d+1}, s{S_ONEH}, v{LD+2*j+d}")
    a("s_nop 2")
    a(f"v_cvt_pk_bf16_f32 v{LD}, v{RA}, v{RA+1}")
    a(f"v_cvt_pk_bf16_f32 v{LD+1}, v{RA+2}, v{RA+3}")
    a(f"buffer_store_dwordx2 v[{LD}:{LD+1}], v{T+6}, s[{S_OUT}:{S_OUT+3}], s{S_OA} offen{OSC}")
    a(f"s_lshl_b32 s{S_T2}, s2, 2")
    a(f"s_add_u32 s{S_T2}, s{S_T2}, {E_BASE}")
    flag_store("Eup", S_T2)
    a.label("L_cdone")
    stamp_out(a, 0)

def gen(a):
    kname = NAME + "_kernel"
    a.raw(f".globl {kname}"); a.raw(".p2align 8"); a.raw(f".type {kname},@function"); a.label(kname)
    a("s_load_dwordx16 s[36:51], s[0:1], 0")
    a("s_load_dwordx8 s[52:59], s[0:1], 64")
    a("s_load_dwordx2 s[60:61], s[0:1], 96")
    a("v_lshrrev_b32 v1, 6, v0")
    a("s_cmp_ge_u32 s2, 256")
    a("s_cbranch_scc1 L_end")
    a(f"v_readfirstlane_b32 s{S_T1}, v1")
    if OPT["stamp"]:
        a(f"v_mov_b32 v{V_STAMP}, 0")
        a.stamp(2)
    a(f"s_and_b32 s{S_T0}, s2, 7")
    a("v_and_b32 v1, 63, v0")
    a(f"s_lshr_b32 s{S_BR}, s{S_T0}, 2")
    a(f"s_and_b32 s{S_HQ}, s{S_T0}, 3")
    a(f"s_bfe_u32 s{S_RB}, s2, 0x20003")
    a(f"s_lshr_b32 s{S_HL}, s2, 5")
    a(f"s_and_b32 s{S_W}, s{S_T1}, 3")
    a(f"s_lshl_b32 s{S_H}, s{S_HQ}, 3")
    a(f"s_add_u32 s{S_H}, s{S_H}, s{S_HL}")
    a(f"s_lshl_b32 s{S_B}, s{S_RB}, 2")
    a(f"s_add_u32 s{S_B}, s{S_B}, s{S_W}")
    a(f"s_and_b32 s{S_CP}, s{S_HL}, 3")
    a(f"s_lshr_b32 s{S_KQ}, s{S_HL}, 2")
    a(f"s_lshl_b32 s{S_SPLIT}, s{S_HQ}, 1")
    a(f"s_add_u32 s{S_SPLIT}, s{S_SPLIT}, s{S_KQ}")
    a(f"s_lshl_b32 s{S_LW4}, s{S_W}, 12")
    a(f"s_lshl_b32 s{S_LW8}, s{S_W}, 13")
    a(f"s_cmp_ge_u32 s{S_T1}, 4")
    a("s_cbranch_scc1 L_loader")
    gen_compute_pro(a)
    a("s_branch L_compute")
    a.label("L_loader")
    gen_loader(a)
    a.raw(".p2align 6")
    a.label("L_compute")
    gen_compute(a)
    a.label("L_end")
    a("s_endpgm")
    for l in a.ool: a.raw(l)
    a.label('L_fin')

def main():
    a = Asm()
    hdr = open("cdna_kernels/%s.s.ref" % NAME).read().split("; Override")[0]
    a.raw(hdr.rstrip())
    a.raw(f"; @launch grid=(256,1,1) block=(512,1,1) lds={LDS_BYTES}")
    a.raw('.amdgcn_target "amdgcn-amd-amdhsa--gfx950"')
    a.raw(".text")
    gen(a)
    a.raw('.section .rodata,"a"')
    a.raw(".p2align 6")
    a.raw(f".amdhsa_kernel {NAME}_kernel")
    a.raw(f"  .amdhsa_next_free_vgpr {NARCH+NACC}")
    a.raw(f"  .amdhsa_next_free_sgpr 102")
    a.raw(f"  .amdhsa_accum_offset {NARCH}")
    a.raw("  .amdhsa_group_segment_fixed_size 0")
    a.raw("  .amdhsa_kernarg_size 104")
    a.raw("  .amdhsa_user_sgpr_count 2")
    a.raw("  .amdhsa_user_sgpr_kernarg_segment_ptr 1")
    a.raw("  .amdhsa_system_sgpr_workgroup_id_x 1")
    a.raw(".end_amdhsa_kernel")
    open(sys.argv[1], "w").write(a.text())
    if os.environ.get("SHOW"): print(schedule())
main()
```

```python
import sys, os
NAME = "concat_heads__gqa_block_cached__mha_block_cached__near_ridge"
OPT = dict(stamp=0, rot1=2, rot2=2, ntx=0, ntq=0, ntk=0, ntv=0, nto=0, prio=0, rpos=4, kpos=3, nbf=6,
           nodma=0, nomfma=0, nolds=0, cyc=0, epos=1, cpf=1, first=0, mbox=1, gsl=4, tlb=0, midw=0, cprio=0, w2=0, apoll=1, nfill=2, mks=0, pksm=1, onep=1, pearly=0, lprio2=1, r0pos=0, r1pos=4, two=0, osc=0, pp=0, ppsl=8, own=1, nost=0, nospin=0, dbgl=0, ownp=1)
for arg in sys.argv[2:]:
    k, v = arg.split("="); assert k in OPT, k; OPT[k] = int(v)

class Asm:
    def __init__(self):
        self.L=[]; self.vm=[]; self.nst=0; self.lq=[]; self.ool=[]
    def __call__(self, s):
        if OPT["nomfma"] and s.startswith("v_mfma"): return
        if OPT["nolds"] and s.startswith("ds_read"): return
        if OPT["nodma"] and s.endswith(" lds"): return
        if OPT["nost"] and s.startswith("buffer_store_dwordx") and ("s49 " in s or "s50 " in s): return
        self.L.append("    "+s)
    def label(self, n): self.L.append(n+":")
    def raw(self, s): self.L.append(s)
    def text(self): return "\n".join(self.L)+"\n"
    def vmop(self, s, tag): self(s); self.vm.append(tag)
    def wait_vm(self, *tags):
        idx = max((i for i,t in enumerate(self.vm) if t in tags), default=-1)
        assert idx >= 0, tags
        n = len(self.vm)-1-idx
        assert n <= 63
        self(f"s_waitcnt vmcnt({n})")
    def ds(self, s, tag): self(s); self.lq.append(tag)
    def wait_lg(self, *tags):
        idx = max((i for i,t in enumerate(self.lq) if t in tags), default=-1)
        if idx < 0: return
        n = min(15, len(self.lq)-1-idx)
        self(f"s_waitcnt lgkmcnt({n})")
        self.lq = self.lq[len(self.lq)-n:] if n else []
    def wait_lg0(self):
        self("s_waitcnt lgkmcnt(0)"); self.lq = []
    def stamp(self, lvl=1):
        if not OPT["stamp"]: return
        if OPT["stamp"] == 2 and lvl < 2: return
        self.lq = []
        self("s_memtime s[96:97]" if OPT["cyc"] else "s_memrealtime s[96:97]")
        self("s_waitcnt lgkmcnt(0)")
        self(f"v_writelane_b32 v{V_STAMP}, s96, {self.nst}")
        self.nst += 1

SLOT = 36864
MBOX = 4*SLOT
OPB = 4*SLOT + 256
LDS_BYTES = 4*SLOT + 256 + 8192
KPOS = OPT["kpos"]
def pos_s1(t): return t if t < KPOS else t+1
def base(pos): return (pos % 4)*SLOT
P_BASE = 0
SLICE = 4608
PART_BASE = 2<<20
E_BASE = 15<<20
FP_BASE = E_BASE + 4096
FR_BASE = 14<<20
STAMP_BASE = 13<<20
STAMP_BASE = 16<<20
WS_USED = 17<<20
LCG_A = 1664525; LCG_C = 1013904223
SPIN_MAX = 1<<15

S_X=8; S_WQ=12; S_K=16; S_WS=20; S_V=24; S_WO=28; S_OUT=32
S_W=62; S_BR=63; S_HQ=64; S_RB=65; S_HL=66; S_H=67; S_B=68; S_SPLIT=69
S_T0=70; S_T1=71; S_T2=72; S_T3=73
S_SOX=74; S_SOQ=75; S_SOK=76; S_C=77; S_SOP=78; S_LWO=79; S_CP=80; S_KQ=81; S_LW4=82; S_LW8=83
S_SOV=[84,85,86,87]; S_SOW=[88,89,90,91]; S_SPU=[92,93,94,95]
S_TAG=3; S_CNT=4; S_CH=5; S_RG=6; S_PG=7
S_CC=52
S_OWN=54
S_TJ=36
S_FR=44; S_RD=45; S_OA=46; S_ONE=47; S_ONEH=48; S_PW=49; S_PW1=50
AX=2; AQ=10; VW=2; PK=18; T=26; AV=36; AO=40; VL=42; TAGP=43; TAGR=44; FPA=45; VTG=46; V_STAMP=47
RB=48
ACC=RB; QB=RB+64; SA=RB+96
STASH=RB+12
NARCH=168
VX=2; VQ=6; VK=10; VO=14; FRA=45
NBF=OPT["nbf"]
FA=0; FB=16; KF=32; PF=0; BF=32; VF=32+4*NBF; NACC=VF+32

OSC = ["", " sc1", " nt", " sc0 sc1"][OPT["osc"]]
def nt(k): return " nt" if OPT[k] else ""

def srd(a, b, lo, hi, nrec):
    a(f"s_mov_b32 s{b}, s{lo}")
    a(f"s_and_b32 s{b+1}, s{hi}, 0xffff")
    a(f"s_mov_b32 s{b+2}, {nrec}")
    a(f"s_mov_b32 s{b+3}, 0x20000")

def kv_soffset(a, dst, head_s):
    a(f"s_lshl_b32 s{S_T0}, s{S_B}, 4")
    a(f"s_lshr_b32 s{S_T1}, s{head_s}, 1")
    a(f"s_add_u32 s{S_T0}, s{S_T0}, s{S_T1}")
    a(f"s_lshl_b32 s{S_T1}, s{S_B}, 5")
    a(f"s_add_u32 s{S_T1}, s{S_T1}, s{head_s}")
    a(f"s_cmp_eq_u32 s{S_BR}, 0")
    a(f"s_cselect_b32 s{dst}, s{S_T0}, s{S_T1}")
    a(f"s_lshl_b32 s{dst}, s{dst}, 13")

ORD2 = {0: [[0,1,2,3]]*4, 1: [[0,1,2,3],[1,2,3,0],[2,3,0,1],[3,0,1,2]],
        2: [[0,1,2,3],[1,0,2,3],[0,2,1,3],[0,1,3,2]],
        3: [[0,1,2,3],[1,0,3,2],[0,1,2,3],[1,0,3,2]],
        4: [[0,2,1,3],[1,0,2,3],[0,1,3,2],[1,3,0,2]]}[OPT["rot2"]]
S_OU = 101
def own_pos(a):
    tab = sum(ORD2[j].index(c) << (2*(4*j+c)) for j in range(4) for c in range(4))
    a(f"s_add_u32 s{S_T2}, s{S_RB}, s{S_CP}")
    a(f"s_and_b32 s{S_T2}, s{S_T2}, 3")
    a(f"s_lshl_b32 s{S_T2}, s{S_T2}, 2")
    a(f"s_add_u32 s{S_T2}, s{S_T2}, s{S_CP}")
    a(f"s_lshl_b32 s{S_T2}, s{S_T2}, 1")
    a(f"s_lshr_b32 s{S_OU}, {tab}, s{S_T2}")
    a(f"s_and_b32 s{S_OU}, s{S_OU}, 3")

def head_u(a, u):
    tab = sum(ORD2[j][u] << (2*j) for j in range(4))
    a(f"s_lshl_b32 s{S_T3}, s{S_SPLIT}, 2")
    if OPT["rot2"]:
        a(f"s_add_u32 s{S_T2}, s{S_RB}, s{S_CP}")
        a(f"s_and_b32 s{S_T2}, s{S_T2}, 3")
        a(f"s_lshl_b32 s{S_T2}, s{S_T2}, 1")
        a(f"s_lshr_b32 s{S_T2}, {tab}, s{S_T2}")
        a(f"s_and_b32 s{S_T2}, s{S_T2}, 3")
        a(f"s_add_u32 s{S_T3}, s{S_T3}, s{S_T2}")
    elif u: a(f"s_add_u32 s{S_T3}, s{S_T3}, {u}")

def rgroup(a):
    a(f"s_lshl_b32 s{S_RG}, s{S_BR}, 2")
    a(f"s_add_u32 s{S_RG}, s{S_RG}, s{S_RB}")
    a(f"s_lshl_b32 s{S_RG}, s{S_RG}, 2")
    a(f"s_add_u32 s{S_RG}, s{S_RG}, s{S_CP}")

def e_addr_r(a, dst, t):
    a(f"s_and_b32 s{S_T0}, s2, 0x7c")
    a(f"v_bfe_u32 v{dst}, v1, 1, 2")
    a(f"v_and_b32 v{t}, 1, v1")
    a(f"v_lshl_add_u32 v{dst}, v{t}, 7, v{dst}")
    a(f"v_add_u32 v{dst}, s{S_T0}, v{dst}")
    a(f"v_lshlrev_b32 v{dst}, 2, v{dst}")

def lcg(a, v):
    a(f"s_mov_b32 s{S_T0}, {LCG_A}")
    a(f"v_mul_lo_u32 v{v}, v{v}, s{S_T0}")
    a(f"v_add_u32 v{v}, {LCG_C}, v{v}")

def red_scalars(a):
    a(f"s_lshl_b32 s{S_T0}, s{S_RG}, 3")
    a(f"s_add_u32 s{S_T0}, s{S_T0}, s{S_SPLIT}")
    a(f"s_mul_i32 s{S_RD}, s{S_T0}, {8*SLICE}")
    a(f"s_add_u32 s{S_RD}, s{S_RD}, {PART_BASE}")
    a(f"s_lshl_b32 s{S_T0}, s{S_W}, 10")
    a(f"s_add_u32 s{S_RD}, s{S_RD}, s{S_T0}")
    a(f"s_lshl_b32 s{S_OA}, s{S_RB}, 3")
    a(f"s_add_u32 s{S_OA}, s{S_OA}, s{S_SPLIT}")
    a(f"s_mul_i32 s{S_OA}, s{S_OA}, {16*2304}")
    a(f"s_mul_i32 s{S_T0}, s{S_BR}, 1152")
    a(f"s_add_u32 s{S_OA}, s{S_OA}, s{S_T0}")
    a(f"s_mul_i32 s{S_T0}, s{S_CP}, 288")
    a(f"s_add_u32 s{S_OA}, s{S_OA}, s{S_T0}")
    a(f"s_mov_b32 s{S_ONE}, 0x3f80")
    a(f"s_mov_b32 s{S_ONEH}, 0x3f800000")

def stamp_out(a, widx):
    if not OPT["stamp"]: return
    a("s_waitcnt vmcnt(0)")
    a.stamp(2)
    a(f"s_lshl_b32 s{S_T2}, s2, 3")
    a(f"s_add_u32 s{S_T2}, s{S_T2}, s{S_W}")
    if widx: a(f"s_add_u32 s{S_T2}, s{S_T2}, 4")
    a(f"s_lshl_b32 s{S_T2}, s{S_T2}, 8")
    a(f"s_add_u32 s{S_T2}, s{S_T2}, {STAMP_BASE}")
    a(f"v_lshlrev_b32 v{T}, 2, v1")
    a(f"buffer_store_dword v{V_STAMP}, v{T}, s[{S_WS}:{S_WS+3}], s{S_T2} offen")

def spin(a, lbl, addr, tag, first_loaded, sleep=False, atomic=False):
    a(f"s_mov_b32 s{S_CNT}, 0")
    if first_loaded: a(f"s_branch {lbl}_chk")
    a.label(f"{lbl}_poll")
    if sleep: a(f"s_sleep {sleep}")
    if atomic:
        a(f"v_mov_b32 v{T+7}, 0")
        a("s_mov_b64 exec, 0xff")
        a(f"buffer_atomic_or v{T+7}, v{addr}, s[{S_WS}:{S_WS+3}], 0 offen sc0 sc1")
    else:
        a(f"buffer_load_dword v{T+7}, v{addr}, s[{S_WS}:{S_WS+3}], 0 offen sc1")
    a("s_waitcnt vmcnt(0)")
    a.label(f"{lbl}_chk")
    a(f"v_cmp_ne_u32 vcc, v{T+7}, v{tag}")
    a(f"s_add_u32 s{S_CNT}, s{S_CNT}, 1")
    a(f"s_cmp_ge_u32 s{S_CNT}, {SPIN_MAX}")
    a(f"s_cbranch_scc1 {lbl}_done")
    a("s_nop 1")
    a(f"s_cbranch_vccnz {lbl}_poll")
    a.label(f"{lbl}_done")
    if atomic: a("s_mov_b64 exec, -1")

def mb_wait(a, lbl, addr_v, off, val):
    a(f"s_mov_b32 s{S_CNT}, 0")
    a.label(lbl)
    a(f"s_sleep {8 if OPT['nospin'] else 1}")
    a(f"ds_read_b32 v{T+1}, v{addr_v} offset:{off}")
    a(f"s_add_u32 s{S_CNT}, s{S_CNT}, 1")
    a("s_waitcnt lgkmcnt(0)")
    a(f"v_readfirstlane_b32 s{S_T0}, v{T+1}")
    a(f"s_cmp_ge_u32 s{S_CNT}, {SPIN_MAX*64}")
    a(f"s_cbranch_scc1 {lbl}_done")
    a(f"s_cmp_lt_u32 s{S_T0}, {val}")
    a(f"s_cbranch_scc1 {lbl}")
    a.label(f"{lbl}_done")

S_MO = 84
def member_offs(a):
    for k in range(1, 8):
        a(f"s_add_u32 s{S_T0}, s{S_SPLIT}, {k}")
        a(f"s_and_b32 s{S_T0}, s{S_T0}, 7")
        a(f"s_mul_i32 s{S_T0}, s{S_T0}, {SLICE}")
        a(f"s_add_u32 s{S_MO+k}, s{S_T0}, s{S_RD}")

def schedule():
    seq = []
    nxt = 2
    def free_upto(p):
        nonlocal nxt
        r = list(range(nxt, min(p+4, 17)+1)); nxt = max(nxt, min(p+4, 17)+1); return r
    for t in range(9):
        need = [pos_s1(t)] + ([KPOS] if t == KPOS else [])
        cons = pos_s1(t-1) if t > 0 else -1
        if t == KPOS: cons = KPOS-1
        seq.append((need, free_upto(cons)))
    seq.append(([], free_upto(9)))
    seq.append(([10, 11], []))
    seq.append(([], free_upto(10)))
    seq.append(([12, 13], free_upto(11)))
    seq.append(([], free_upto(12)))
    seq.append(([14, 15], free_upto(13)))
    seq.append(([], []))
    seq.append(([16, 17], []))
    return seq

def gen_loader(a):
    a.vm = []; a.nst = 1
    if OPT["prio"]: a(f"s_setprio {OPT['prio']}")
    a(f"v_lshrrev_b32 v{T+1}, 4, v1")
    a(f"s_lshl_b32 s{S_T0}, s{S_W}, 4")
    a(f"v_add_u32 v{T+3}, s{S_T0}, v{T+1}")
    a(f"v_lshlrev_b32 v{T+3}, 13, v{T+3}")
    a(f"v_and_b32 v{T+4}, 15, v1")
    a(f"v_lshlrev_b32 v{T+5}, 2, v{T+1}")
    a(f"v_xor_b32 v{T+4}, v{T+4}, v{T+5}")
    a(f"v_lshl_add_u32 v{VQ}, v{T+4}, 4, v{T+3}")
    for j in range(1,4):
        a(f"v_add_u32 v{VQ+j}, {31744*j}, v{VQ}")
    a(f"v_lshrrev_b32 v{T}, 3, v1")
    a(f"v_and_b32 v{T+2}, 7, v1")
    a(f"s_lshl_b32 s{S_T0}, s{S_W}, 5")
    a(f"v_add_u32 v{T+3}, s{S_T0}, v{T}")
    a(f"v_mul_u32_u24 v{T+3}, 1152, v{T+3}")
    a(f"v_xor_b32 v{T+2}, v{T+2}, v{T+1}")
    a(f"v_lshl_add_u32 v{VX}, v{T+2}, 4, v{T+3}")
    a(f"v_xor_b32 v{T+2}, 4, v{T+2}")
    a(f"v_lshl_add_u32 v{VX+1}, v{T+2}, 4, v{T+3}")
    a(f"v_add_u32 v{VX+1}, 8192, v{VX+1}")
    a(f"v_add_u32 v{VX+2}, 16384, v{VX}")
    a(f"v_add_u32 v{VX+3}, 16384, v{VX+1}")
    a(f"s_mul_i32 s{S_SOX}, s{S_RB}, 147456")
    a(f"s_lshl_b32 s{S_SOQ}, s{S_H}, 8")
    ORD1 = {0: [[0,1,2,3,4,5,6,7,8]]*4,
            1: [[0,1,4,2,3,5,8,6,7],[1,0,2,5,3,4,6,7,8],[2,0,1,3,6,4,5,7,8],[0,3,1,2,4,7,5,6,8]],
            2: [[0,1,2,4,3,5,6,8,7],[1,0,2,3,5,4,6,7,8],[0,2,1,3,4,6,5,7,8],[0,1,3,2,4,5,7,6,8]],
            3: [[0,4,1,2,3,8,5,6,7],[1,0,5,2,3,4,6,7,8],[2,0,1,6,3,4,5,7,8],[3,0,1,2,7,4,5,6,8]],
            5: [[0,2,1,3,5,4,6,8,7],[1,0,2,4,3,5,7,6,8],[0,1,3,2,4,5,6,7,8],[0,1,2,3,4,6,5,7,8]],
            6: [[0,2,1,4,3,6,5,8,7],[1,0,3,2,5,4,7,6,8],[0,1,2,3,4,5,6,7,8],[0,1,2,3,4,5,6,7,8]],
            7: [[0,1,2,4,3,5,6,8,7],[1,0,2,3,5,4,6,7,8],[0,2,1,3,4,6,5,7,8],[0,1,3,2,4,5,7,6,8]]}[OPT["rot1"]]
    pack = lambda o: sum(c << (4*i) for i, c in enumerate(o))
    a(f"s_{'add' if OPT['rot1'] >= 5 else 'sub'}_u32 s{S_T0}, s{S_RB}, s{S_HL}")
    a(f"s_and_b32 s{S_T0}, s{S_T0}, 3")
    a(f"s_mov_b32 s98, {pack(ORD1[0]) & 0xffffffff}")
    a(f"s_mov_b32 s99, {pack(ORD1[0]) >> 32}")
    for j in range(1, 4):
        if ORD1[j] != ORD1[0]:
            a(f"s_cmp_eq_u32 s{S_T0}, {j}")
            a(f"s_cselect_b32 s98, {pack(ORD1[j]) & 0xffffffff}, s98")
            a(f"s_cselect_b32 s99, {pack(ORD1[j]) >> 32}, s99")
    for b_, n_ in ((S_X, 589824), (S_WQ, 4718592)):
        a(f"s_mov_b32 s{b_+2}, {n_}")
        a(f"s_mov_b32 s{b_+3}, 0x20000")
    a(f"s_cmp_eq_u32 s{S_BR}, 0")
    a("s_waitcnt lgkmcnt(0)")
    a(f"s_cselect_b32 s{S_WQ}, s42, s52")
    a(f"s_cselect_b32 s{S_WQ+1}, s43, s53")
    a(f"s_cselect_b32 s{S_X}, s36, s46")
    a(f"s_cselect_b32 s{S_X+1}, s37, s47")
    a(f"s_and_b32 s{S_WQ+1}, s{S_WQ+1}, 0xffff")
    a(f"s_and_b32 s{S_X+1}, s{S_X+1}, 0xffff")
    a.stamp()
    def dma_s1(t):
        p = pos_s1(t)
        a(f"s_bfe_u32 s{S_CH}, s{98 + (t>>3)}, {(4 << 16) | (4*(t&7))}")
        a(f"s_add_u32 m0, s{S_LW4}, {base(p)+16384}")
        a(f"s_lshl_b32 s{S_T2}, s{S_CH}, 19")
        a(f"s_add_u32 s{S_T2}, s{S_T2}, s{S_SOQ}")
        for j in range(4):
            a.vmop(f"buffer_load_dwordx4 v{VQ+j}, s[{S_WQ}:{S_WQ+3}], s{S_T2} offen offset:{1024*j}{nt('ntq')} lds", f"p{p}")
        a(f"s_add_u32 m0, s{S_LW4}, {base(p)}")
        a(f"s_lshl_b32 s{S_T2}, s{S_CH}, 7")
        a(f"s_add_u32 s{S_T2}, s{S_T2}, s{S_SOX}")
        for j in range(4):
            a.vmop(f"buffer_load_dwordx4 v{VX+j}, s[{S_X}:{S_X+3}], s{S_T2} offen offset:{1024*j}{nt('ntx')} lds", f"p{p}")
    def dma_kv(srdb, soff, p, ntk):
        for half in range(2):
            a(f"s_add_u32 m0, s{S_LW8}, {base(p) + half*4096}")
            if half == 0: a(f"s_mov_b32 s{S_T2}, s{soff}")
            else: a(f"s_add_u32 s{S_T2}, s{soff}, 4096")
            for j in range(4):
                a.vmop(f"buffer_load_dwordx4 v{VK+j}, s[{srdb}:{srdb+3}], s{S_T2} offen offset:{1024*j}{nt(ntk)} lds", f"p{p}")
    def dma_wo(u, p):
        for j in range(9):
            if j%4 == 0:
                a(f"s_add_u32 m0, s{S_LWO}, {base(p) + 4096*(j>>2)}")
                a("s_nop 0")
            a.vmop(f"buffer_load_dwordx4 v{VO+j}, s[{S_WO}:{S_WO+3}], s{S_SOW[u]} offen offset:{1024*(j&3)}{nt('nto')} lds", f"p{p}")
    def dma_item(p):
        if p == KPOS: dma_kv(S_K, S_SOK, p, "ntk")
        elif p < 10: dma_s1(p if p < KPOS else p-1)
        else:
            u = (p-10)>>1
            if p & 1: dma_wo(u, p)
            else: dma_kv(S_V, S_SOV[u], p, "ntv")
    def setup_kv():
        a(f"s_mov_b32 s{S_T3}, 4194304")
        a(f"s_cmp_eq_u32 s{S_BR}, 0")
        for b_, idx, na in ((S_K,1,2097152),(S_V,2,2097152),(S_WO,4,None)):
            la = 36+2*idx; lb = 46+2*idx
            a(f"s_cselect_b32 s{b_}, s{la}, s{lb}")
            a(f"s_cselect_b32 s{b_+1}, s{la+1}, s{lb+1}")
            if na: a(f"s_cselect_b32 s{b_+2}, {na}, s{S_T3}")
            else: a(f"s_mov_b32 s{b_+2}, 4718592")
            a(f"s_mov_b32 s{b_+3}, 0x20000")
        for b_ in (S_K, S_V, S_WO): a(f"s_and_b32 s{b_+1}, s{b_+1}, 0xffff")
        a(f"v_lshrrev_b32 v{T}, 4, v1")
        a(f"v_and_b32 v{T+1}, 15, v1")
        for j in range(4):
            a(f"v_add_u32 v{VK+j}, {4*j}, v{T}")
            a(f"v_xor_b32 v{VK+j}, v{VK+j}, v{T+1}")
            a(f"v_lshlrev_b32 v{VK+j}, 4, v{VK+j}")
            a(f"v_lshl_add_u32 v{VK+j}, v{T}, 8, v{VK+j}")
        kv_soffset(a, S_SOK, S_H)
    def setup_vo(js):
        a(f"s_movk_i32 s{S_T0}, 3641")
        for j in js:
            a(f"v_add_u32 v{T}, {64*j}, v1")
            a(f"v_mul_u32_u24 v{T+1}, s{S_T0}, v{T}")
            a(f"v_lshrrev_b32 v{T+1}, 16, v{T+1}")
            a(f"v_mul_u32_u24 v{T+2}, 18, v{T+1}")
            a(f"v_sub_u32 v{T+2}, v{T}, v{T+2}")
            a(f"v_and_b32 v{T+3}, 0x13, v{T+1}")
            a(f"v_bfe_u32 v{T+4}, v{T+1}, 2, 1")
            a(f"v_lshl_add_u32 v{T+3}, v{T+4}, 3, v{T+3}")
            a(f"v_bfe_u32 v{T+4}, v{T+1}, 3, 1")
            a(f"v_lshl_add_u32 v{T+3}, v{T+4}, 2, v{T+3}")
            a(f"v_mul_u32_u24 v{T+3}, 1152, v{T+3}")
            a(f"v_lshl_add_u32 v{VO+j}, v{T+2}, 4, v{T+3}")
            if j&3: a(f"v_subrev_u32 v{VO+j}, {1024*(j&3)}, v{VO+j}")
    def setup_heads(us):
        for u in us:
            head_u(a, u)
            a(f"s_lshl_b32 s{S_T2}, s{S_T3}, 2")
            a(f"s_add_u32 s{S_T2}, s{S_T2}, s{S_W}")
            a(f"s_mul_i32 s{S_SOW[u]}, s{S_T2}, {32*1152}")
            a(f"s_mul_i32 s{S_T2}, s{S_CP}, 288")
            a(f"s_add_u32 s{S_SOW[u]}, s{S_SOW[u]}, s{S_T2}")
            a(f"s_mov_b32 s{S_SPU[u]}, s{S_T3}")
            kv_soffset(a, S_SOV[u], S_T3)
    PL = RB; PE = RB+32
    def setup_p():
        if OPT["ownp"]: own_pos(a)
        else: a(f"s_mov_b32 s{S_OU}, 7")
        lcg(a, TAGP)
        a(f"v_lshlrev_b32 v{VL}, 4, v1")
        a(f"v_and_b32 v{T}, 3, v1")
        a(f"v_lshlrev_b32 v{T}, 1, v{T}")
        a(f"v_sub_u32 v{T}, 32, v{T}")
        a(f"s_lshl_b32 s{S_T0}, s{S_BR}, 4")
        a(f"s_add_u32 s{S_T0}, s{S_T0}, s{S_B}")
        a(f"s_lshl_b32 s{S_SOP}, s{S_T0}, 16")
        for u in range(4):
            a(f"s_and_b32 s{S_T0}, s{S_SPU[u]}, 3")
            a(f"v_readlane_b32 s{S_T1}, v{TAGP}, s{S_T0}")
            a(f"s_lshl_b32 s{S_SPU[u]}, s{S_SPU[u]}, 11")
            a(f"s_add_u32 s{S_SPU[u]}, s{S_SPU[u]}, s{S_SOP}")
            a(f"v_alignbit_b32 v{PE+2*u}, s{S_T1}, s{S_T1}, v{T}")
            a(f"v_lshlrev_b32 v{PE+2*u+1}, 1, v{PE+2*u}")
        a(f"s_mov_b32 s{S_C}, 0x07050301")
        a(f"s_mov_b32 s{S_TJ}, 0x7fff7fff")
        a(f"v_add_u32 v{T+6}, s{S_LW8}, v{VL}")
        a(f"v_add_u32 v{T+6}, {base(14)}, v{T+6}")
    lab = [0]
    def skip_own(uu, body):
        k = lab[0]; lab[0] += 1
        a(f"s_cmp_eq_u32 s{S_OU}, {uu}")
        a(f"s_cbranch_scc1 L_so{k}")
        body()
        a.label(f"L_so{k}")
    def p_loads(track):
        for uu in range(4):
            def body(uu=uu):
                for it in range(2):
                    ins = f"buffer_load_dwordx4 v[{PL+8*uu+4*it}:{PL+8*uu+4*it+3}], v{VL}, s[{S_WS}:{S_WS+3}], s{S_SPU[uu]} offen offset:{1024*it} sc1"
                    if track: a.vmop(ins, "Pld")
                    else: a(ins)
            skip_own(uu, body)
    def p_check():
        a.wait_vm("Pld")
        a(f"s_mov_b32 s{S_CNT}, 0")
        a("s_branch L_pc_chk")
        a.label("L_pc_retry")
        a("s_sleep 4")
        p_loads(False)
        a("s_waitcnt vmcnt(0)")
        a.label("L_pc_chk")
        a(f"v_mov_b32 v{T}, 0")
        for uu in range(4):
            def body(uu=uu):
                for q in (2*uu, 2*uu+1):
                    d = PL+4*q; e = PE+2*(q>>1)
                    a(f"v_perm_b32 v{T+1}, v{d+1}, v{d}, s{S_C}")
                    a(f"v_perm_b32 v{T+2}, v{d+3}, v{d+2}, s{S_C}")
                    a(f"v_xor_b32 v{T+1}, v{T+1}, v{e}")
                    a(f"v_xor_b32 v{T+2}, v{T+2}, v{e+1}")
                    a(f"v_or3_b32 v{T}, v{T}, v{T+1}, v{T+2}")
            skip_own(uu, body)
        a(f"v_and_b32 v{T}, 0x80808080, v{T}")
        a(f"v_cmp_ne_u32 vcc, 0, v{T}")
        a(f"s_add_u32 s{S_CNT}, s{S_CNT}, 1")
        a(f"s_cmp_ge_u32 s{S_CNT}, {SPIN_MAX}")
        a("s_cbranch_scc1 L_pc_done")
        a("s_nop 1")
        a("s_cbranch_vccnz L_pc_retry")
        a.label("L_pc_done")
    def p_write():
        for uu in range(4):
            def body(uu=uu):
                for q in (2*uu, 2*uu+1):
                    d = PL+4*q
                    for k in range(4): a(f"v_and_b32 v{d+k}, s{S_TJ}, v{d+k}")
                    a(f"ds_write_b128 v{T+6}, v[{d}:{d+3}] offset:{1024*q}")
            skip_own(uu, body)
        a("s_waitcnt lgkmcnt(0)")
    def setup_e():
        a(f"v_and_b32 v{T}, 3, v1")
        a(f"v_lshlrev_b32 v{T}, 2, v{T}")
        a(f"v_mov_b32 v{T+1}, 0")
        a(f"ds_write_b32 v{T}, v{T+1} offset:{0}") if False else None
        a(f"v_add_u32 v{T}, {MBOX}, v{T}")
        a(f"ds_write_b32 v{T}, v{T+1}")
        e_addr_r(a, T, T+1)
        a(f"s_mov_b32 s{S_T1}, {E_BASE}")
        a.vmop(f"buffer_load_dword v{TAGR}, v{T}, s[{S_WS}:{S_WS+3}], s{S_T1} offen sc1", "E")
        a(f"v_and_b32 v{T}, 3, v1")
        a(f"s_and_b32 s{S_T0}, s2, 0x9f")
        a(f"v_lshlrev_b32 v{T}, 5, v{T}")
        a(f"v_add_u32 v{T}, s{S_T0}, v{T}")
        a(f"v_lshlrev_b32 v{T}, 2, v{T}")
        a.vmop(f"buffer_load_dword v{TAGP}, v{T}, s[{S_WS}:{S_WS+3}], s{S_T1} offen sc1", "E")
        a("s_waitcnt lgkmcnt(0)")
    def setup_red():
        rgroup(a)
        red_scalars(a)
        lcg(a, TAGR)
        a(f"v_and_b32 v{T}, 7, v1")
        a(f"s_lshl_b32 s{S_T0}, s{S_RG}, 3")
        a(f"s_add_u32 s{S_T1}, s{S_T0}, s{S_SPLIT}")
        a(f"s_lshl_b32 s{S_T1}, s{S_T1}, 10")
        a(f"s_add_u32 s{S_T1}, s{S_T1}, {FR_BASE}")
        a(f"v_lshl_add_u32 v{FRA}, v{T}, 7, s{S_T1}")
        a(f"v_and_b32 v{T+8}, 15, v1")
        a(f"v_mul_u32_u24 v{T+8}, 2304, v{T+8}")
        a(f"v_bfe_u32 v{T+3}, v1, 4, 1")
        a(f"v_lshl_add_u32 v{T+8}, v{T+3}, 5, v{T+8}")
        a(f"v_bfe_u32 v{T+3}, v1, 5, 1")
        a(f"v_lshl_add_u32 v{T+8}, v{T+3}, 4, v{T+8}")
        a(f"s_lshl_b32 s{S_T0}, s{S_W}, 6")
        a(f"v_add_u32 v{T+8}, s{S_T0}, v{T+8}")
    dma_item(0); dma_item(1)
    setup_kv()
    srd(a, S_WS, 60, 61, WS_USED)
    srd(a, S_OUT, 56, 57, 1179648)
    a.stamp()
    extra = {1: lambda: (setup_e(), setup_heads([0])), 2: lambda: setup_vo([0,1,2]), 3: lambda: setup_vo([3,4,5]), 4: lambda: setup_vo([6,7,8]),
             5: lambda: (a(f"s_mul_i32 s{S_LWO}, s{S_W}, 9216"), setup_heads([1])), 6: lambda: setup_heads([2,3]), 10: setup_p, 12: setup_red}
    if OPT['pearly']: extra[14] = p_check; extra[15] = p_write
    else: extra[15] = lambda: (p_check(), p_write())
    for i,(need,iss) in enumerate(schedule()):
        if need: a.wait_vm(*[f"p{s}" for s in need])
        a("s_barrier")
        if i == (13 if OPT['pearly'] == 1 else 14 if OPT['pearly'] == 0 else -1): p_loads(True)
        if i == 14 and OPT['lprio2']: a('s_setprio 1')
        for s in iss: dma_item(s)
        if i == 13 and OPT['pearly'] == 2: p_loads(True)
        if i in extra: extra[i]()
        a.stamp()
        if OPT["dbgl"] and i in (9, 11, 13):
            a("s_waitcnt vmcnt(0)")
            a.stamp()
    LD=RB; RA=RB+32
    for r in range(8): a(f"v_mov_b32 v{RA+r}, 0")
    a(f"v_mov_b32 v{T}, {MBOX}")
    if OPT["own"]:
        member_offs(a)
        a(f"s_lshl_b32 s{S_T0}, s{S_W}, 10")
        a(f"s_add_u32 s{S_T0}, s{S_T0}, {base(15)}")
        a(f"v_add_u32 v{T+9}, s{S_T0}, v{VL}")
    if OPT["two"]:
        a(f"s_cmp_eq_u32 s{S_W}, 3")
        a(f"s_cselect_b32 s{S_T2}, 8, 0")
        a(f"s_cselect_b32 s{S_T3}, {256<<10}, 0")
        a(f"v_add_u32 v{T}, s{S_T2}, v{T}")
        a(f"v_add_u32 v{FRA}, s{S_T3}, v{FRA}")
        a(f"s_and_b32 s{S_T2}, s{S_W}, 3")
        a(f"s_cmp_eq_u32 s{S_W}, 1")
        a("s_cbranch_scc1 L_lgo")
        a(f"s_cmp_eq_u32 s{S_W}, 2")
        a("s_cbranch_scc1 L_lgo")
        mb_wait(a, "L_mb", T, 0, 4)
        spin(a, "L_rw", FRA, TAGR, False, OPT["gsl"], OPT["apoll"])
        a(f"v_mov_b32 v{T+1}, 1")
        a(f"ds_write_b32 v{T}, v{T+1} offset:4")
        a("s_branch L_lred")
        a.label("L_lgo")
        mb_wait(a, "L_go", T, 4, 1)
        a.label("L_lred")
    elif OPT["onep"]:
        a(f"s_cmp_lg_u32 s{S_W}, 0")
        a("s_cbranch_scc1 L_lgo")
        mb_wait(a, "L_mb", T, 0, 4)
        if OPT["pp"]:
            a(f"s_mov_b32 s{S_CNT}, 0")
            a("s_mov_b64 exec, 0xff")
            a(f"v_mov_b32 v{T+7}, 0")
            a(f"buffer_atomic_or v{T+7}, v{FRA}, s[{S_WS}:{S_WS+3}], 0 offen sc0 sc1")
            a.label("L_rw_poll")
            for (x, y) in ((T+5, T+7), (T+7, T+5)):
                a(f"s_sleep {OPT['ppsl']}")
                a(f"v_mov_b32 v{x}, 0")
                a(f"buffer_atomic_or v{x}, v{FRA}, s[{S_WS}:{S_WS+3}], 0 offen sc0 sc1")
                a("s_waitcnt vmcnt(1)")
                a(f"v_cmp_ne_u32 vcc, v{y}, v{TAGR}")
                a(f"s_add_u32 s{S_CNT}, s{S_CNT}, 1")
                a("s_nop 3")
                a("s_cbranch_vccz L_rw_done")
            a(f"s_cmp_lt_u32 s{S_CNT}, {SPIN_MAX}")
            a("s_cbranch_scc1 L_rw_poll")
            a.label("L_rw_done")
            a("s_mov_b64 exec, -1")
        else:
            spin(a, "L_rw", FRA, TAGR, False, OPT["gsl"], OPT["apoll"])
        a(f"v_mov_b32 v{T+1}, 1")
        a(f"ds_write_b32 v{T}, v{T+1} offset:4")
        a("s_branch L_lred")
        a.label("L_lgo")
        mb_wait(a, "L_go", T, 4, 1)
        a.label("L_lred")
    else:
        mb_wait(a, "L_mb", T, 0, 4)
        spin(a, "L_rw", FRA, TAGR, False, OPT["gsl"], OPT["apoll"])
    a.stamp(2)
    def member_off(k):
        a(f"s_add_u32 s{S_T0}, s{S_SPLIT}, {k}")
        a(f"s_and_b32 s{S_T0}, s{S_T0}, 7")
        a(f"s_mul_i32 s{S_T0}, s{S_T0}, {SLICE}")
        a(f"s_add_u32 s{S_T0}, s{S_T0}, s{S_RD}")
    if OPT["own"]:
        for k in range(1, 8):
            a(f"buffer_load_dwordx4 v[{LD+4*k}:{LD+4*k+3}], v{VL}, s[{S_WS}:{S_WS+3}], s{S_MO+k} offen sc1")
        a(f"ds_read_b128 v[{LD}:{LD+3}], v{T+9}")
        for j in range(8):
            a("s_waitcnt lgkmcnt(0)" if j == 0 else f"s_waitcnt vmcnt({7-j})")
            for d in range(4):
                a(f"v_dot2c_f32_bf16 v{RA+2*d}, s{S_ONE}, v{LD+4*j+d}")
                a(f"v_dot2c_f32_bf16 v{RA+2*d+1}, s{S_ONEH}, v{LD+4*j+d}")
    else:
        for j in range(8):
            a(f"buffer_load_dwordx4 v[{LD+4*j}:{LD+4*j+3}], v{VL}, s[{S_WS}:{S_WS+3}], s{S_RD} offen sc1")
            if j < 7: a(f"s_add_u32 s{S_RD}, s{S_RD}, {SLICE}")
        for j in range(8):
            a(f"s_waitcnt vmcnt({7-j})")
            for d in range(4):
                a(f"v_dot2c_f32_bf16 v{RA+2*d}, s{S_ONE}, v{LD+4*j+d}")
                a(f"v_dot2c_f32_bf16 v{RA+2*d+1}, s{S_ONEH}, v{LD+4*j+d}")
    a("s_nop 2")
    for d in range(4): a(f"v_cvt_pk_bf16_f32 v{LD+d}, v{RA+2*d}, v{RA+2*d+1}")
    a("s_nop 1")
    a(f"v_permlane16_swap_b32 v{LD}, v{LD+2}")
    a(f"v_permlane16_swap_b32 v{LD+1}, v{LD+3}")
    a("s_nop 1")
    a(f"buffer_store_dwordx4 v[{LD}:{LD+3}], v{T+8}, s[{S_OUT}:{S_OUT+3}], s{S_OA} offen{OSC}")
    a.label("L_ldone")
    stamp_out(a, 1)
    a("s_endpgm")

def gen_compute_pro(a):
    a.vm = []; a.nst = 1
    if OPT["cprio"]: a(f"s_setprio {OPT['cprio']}")
    if OPT["cpf"]:
        a("s_getpc_b64 s[98:99]")
        a.label("L_pc")
        a(f"s_lshr_b32 s{S_T0}, s2, 3")
        a(f"s_mul_i32 s{S_T0}, s{S_T0}, 768")
        a(f"v_min_u32 v{T}, 5, v1")
        a(f"v_lshlrev_b32 v{T}, 7, v{T}")
        a(f"v_add_u32 v{T}, s{S_T0}, v{T}")
        a(f"v_min_u32 v{T}, L_fin-L_pc-4, v{T}")
        a(f"s_cmp_lg_u32 s{S_W}, 0")
        a("s_cbranch_scc1 L_nopf")
        a(f"global_load_dword v{T+7}, v{T}, s[98:99]")
        a.label("L_nopf")
    a(f"v_and_b32 v{T}, 31, v1")
    a(f"v_lshrrev_b32 v{T+1}, 5, v1")
    a(f"v_bfe_u32 v{T+2}, v1, 1, 3")
    a(f"v_xor_b32 v{T+2}, v{T+2}, v{T+1}")
    a(f"v_lshlrev_b32 v{T+2}, 4, v{T+2}")
    a(f"v_lshl_add_u32 v{T+2}, v{T}, 7, v{T+2}")
    a(f"v_add_u32 v{AX}, s{S_LW4}, v{T+2}")
    for ks in range(1,4): a(f"v_xor_b32 v{AX+ks}, {32*ks}, v{AX}")
    a(f"v_bfe_u32 v{T}, v1, 2, 2")
    a(f"v_lshl_add_u32 v{T+2}, v{T+1}, 3, v{T}")
    a(f"v_lshlrev_b32 v{T+2}, 8, v{T+2}")
    a(f"v_lshl_add_u32 v{T+2}, v{T}, 6, v{T+2}")
    a(f"v_bfe_u32 v{T+3}, v1, 4, 1")
    a(f"v_lshl_add_u32 v{T+2}, v{T+3}, 5, v{T+2}")
    a(f"v_and_b32 v{T+3}, 1, v1")
    a(f"v_lshl_add_u32 v{T+2}, v{T+3}, 4, v{T+2}")
    a(f"v_bfe_u32 v{T+3}, v1, 1, 1")
    a(f"v_lshl_add_u32 v{T+2}, v{T+3}, 3, v{T+2}")
    a(f"v_add_u32 v{AQ}, 16384, v{T+2}")
    for t in range(1,4): a(f"v_xor_b32 v{AQ+t}, {64*t}, v{AQ}")
    a.stamp()


def gen_compute(a):
    a.vm = []; a.nst = 2 if OPT['stamp'] == 1 else 1
    fill = []
    F = fill.append
    for ks in range(4): F(f"v_add_u32 v{AX+4+ks}, {2*SLOT}, v{AX+ks}")
    for t in range(4): F(f"v_add_u32 v{AQ+4+t}, {2*SLOT}, v{AQ+t}")
    class FA_:
        def __call__(self, s): F(s)
    fa = FA_()
    F("s_waitcnt lgkmcnt(0)")
    fill.pop()
    srd(fa, S_WS, 60, 61, WS_USED)
    srd(fa, S_OUT, 56, 57, 1179648)
    F(f"v_and_b32 v{T}, 31, v1")
    F(f"v_and_b32 v{T+2}, 15, v1")
    F(f"v_xor_b32 v{T+2}, v{T+2}, v{T+1}")
    F(f"v_lshlrev_b32 v{T+2}, 4, v{T+2}")
    F(f"v_lshl_add_u32 v{T+2}, v{T}, 8, v{T+2}")
    F(f"v_add_u32 v{T+9}, s{S_LW8}, v{T+2}")
    if base(KPOS) >= 65536-0: F(f"v_add_u32 v{T+9}, {base(KPOS)}, v{T+9}")
    e_addr_r(fa, T+3, T+4)
    F(f"s_mov_b32 s{S_T1}, {E_BASE}")
    F(("vm", f"buffer_load_dword v{TAGR}, v{T+3}, s[{S_WS}:{S_WS+3}], s{S_T1} offen sc1", "E"))
    rgroup(fa)
    F(f"v_lshrrev_b32 v{T}, 4, v1")
    F(f"v_and_b32 v{T+3}, 15, v1")
    F(f"v_xor_b32 v{T+2}, v{T}, v{T+3}")
    F(f"v_lshlrev_b32 v{T+2}, 4, v{T+2}")
    F(f"v_lshl_add_u32 v{T+2}, v{T+3}, 8, v{T+2}")
    F(f"v_add_u32 v{T+2}, {base(10)}, v{T+2}")
    F(f"v_add_u32 v{AV}, s{S_LW8}, v{T+2}")
    for ks in range(1,4): F(f"v_xor_b32 v{AV+ks}, {64*ks}, v{AV}")
    F(f"v_lshlrev_b32 v{VL}, 4, v1")
    F(f"v_lshlrev_b32 v{T}, 4, v{T+1}")
    F(f"v_bfe_u32 v{T+2}, v1, 4, 1")
    F(f"v_lshl_add_u32 v{T}, v{T+2}, 2, v{T}")
    F(f"v_bfe_u32 v{T+4}, v1, 2, 2")
    F(f"v_add_u32 v{T}, v{T}, v{T+4}")
    F(f"v_mul_u32_u24 v{T}, 288, v{T}")
    F(f"v_and_b32 v{T+4}, 3, v1")
    F(f"v_lshl_add_u32 v{T}, v{T+4}, 3, v{T}")
    F(f"v_add_u32 v{AO}, {base(11)}, v{T}")
    F(f"v_add_u32 v{AO+1}, {base(13)}, v{T}")
    F(f"v_lshlrev_b32 v{T+2}, 10, v{T+2}")
    F(f"v_lshl_add_u32 v{T+2}, v{T+1}, 8, v{T+2}")
    F(f"v_lshl_add_u32 v{T+8}, v{T+3}, 4, v{T+2}")
    F(f"v_mul_u32_u24 v{T+6}, 2304, v{T+3}")
    F(f"v_lshrrev_b32 v{T+2}, 4, v1")
    F(f"v_lshlrev_b32 v{T+2}, 3, v{T+2}")
    F(f"v_add_u32 v{T+2}, 256, v{T+2}")
    F(f"v_add_u32 v{T+6}, v{T+6}, v{T+2}")
    F(f"s_lshl_b32 s{S_T0}, s{S_BR}, 4")
    F(f"s_add_u32 s{S_T0}, s{S_T0}, s{S_B}")
    F(f"s_lshl_b32 s{S_SOP}, s{S_T0}, 16")
    F(f"s_lshl_b32 s{S_T0}, s{S_H}, 11")
    F(f"s_add_u32 s{S_SOP}, s{S_SOP}, s{S_T0}")
    F(f"s_mov_b32 s{S_C}, 0x3e0293ee")
    F(f"s_mov_b32 s{S_CC}, 0x3e0293ee")
    F(f"s_mov_b32 s{S_CC+1}, 0x3e0293ee")
    F(f"s_lshl_b32 s{S_T0}, s{S_RG}, 2")
    F(f"s_add_u32 s{S_T0}, s{S_T0}, s{S_W}")
    F(f"s_lshl_b32 s{S_T0}, s{S_T0}, 4")
    F(f"s_add_u32 s{S_T0}, s{S_T0}, s{S_SPLIT}")
    F(f"s_mul_i32 s{S_PW}, s{S_T0}, {SLICE}")
    F(f"s_add_u32 s{S_PW}, s{S_PW}, {PART_BASE}")
    F(f"s_add_u32 s{S_PW1}, s{S_PW}, {8*SLICE}")
    red_scalars(fa)
    F(f"s_lshl_b32 s{S_T0}, s{S_W}, 10")
    F(f"s_sub_u32 s{S_RD}, s{S_RD}, s{S_T0}")
    fill2 = []
    PM = TAGP
    PMASK = [43, 45, PK+6, PK+7]
    def tags_setup():
        a.wait_vm("E")
        lcg(a, TAGR)
        a(f"v_and_b32 v{T}, 3, v1")
        a(f"v_readlane_b32 s{S_TAG}, v{TAGR}, s{S_SPLIT}")
        a(f"v_lshlrev_b32 v{T}, 1, v{T}")
        a(f"v_sub_u32 v{T}, 32, v{T}")
        a(f"v_mov_b32 v{VTG}, s{S_TAG}")
        a(f"v_alignbit_b32 v{T}, v{VTG}, v{VTG}, v{T}")
        a(f"v_lshlrev_b32 v{T+2}, 1, v{T}")
        a(f"v_and_b32 v{T}, 0x80808080, v{T}")
        a(f"v_and_b32 v{T+2}, 0x80808080, v{T+2}")
        a(f"s_mov_b32 s{S_T0}, 0x010c000c")
        a(f"s_mov_b32 s{S_T1}, 0x030c020c")
        a(f"v_perm_b32 v{PMASK[0]}, v{T}, v{T}, s{S_T0}")
        a(f"v_perm_b32 v{PMASK[1]}, v{T}, v{T}, s{S_T1}")
        a(f"v_perm_b32 v{PMASK[2]}, v{T+2}, v{T+2}, s{S_T0}")
        a(f"v_perm_b32 v{PMASK[3]}, v{T+2}, v{T+2}, s{S_T1}")
        if OPT["ownp"]:
            own_pos(a)
            a(f"s_lshl_b32 s{S_T0}, s{S_W}, 11")
            a(f"s_add_u32 s{S_T0}, s{S_T0}, {OPB}")
            a(f"v_add_u32 v{T+9}, s{S_T0}, v{T+8}")
    def filler(n):
        for _ in range(n):
            if not fill: return
            x = fill.pop(0)
            if isinstance(x, tuple): a.vmop(x[1], x[2])
            else: a(x)

    def rdB(st, ks, buf):
        slot = pos_s1(st)%4; s2 = (slot>>1)*4; off = (slot&1)*SLOT
        a.ds(f"ds_read_b128 a[{FB+4*buf}:{FB+4*buf+3}], v{AX+s2+ks} offset:{off}", f"B{st}_{ks}")
    def rdA(st, ks, t, buf):
        slot = pos_s1(st)%4; s2 = (slot>>1)*4; off = (slot&1)*SLOT + ks*4096
        a.ds(f"ds_read_b64_tr_b16 a[{FA+4*buf}:{FA+4*buf+1}], v{AQ+s2+t} offset:{off}", f"A{st}_{ks}_{t}")
        a.ds(f"ds_read_b64_tr_b16 a[{FA+4*buf+2}:{FA+4*buf+3}], v{AQ+s2+t} offset:{off+1024}", f"A{st}_{ks}_{t}")
    def mm32(st, ks, t, abuf, bbuf):
        a.wait_lg(f"B{st}_{ks}", f"A{st}_{ks}_{t}")
        c = "0" if (st == 0 and ks == 0) else f"v[{ACC+16*t}:{ACC+16*t+15}]"
        a(f"v_mfma_f32_32x32x16_bf16 v[{ACC+16*t}:{ACC+16*t+15}], a[{FA+4*abuf}:{FA+4*abuf+3}], a[{FB+4*bbuf}:{FB+4*bbuf+3}], {c}")
    def rdK(kk):
        koff = base(KPOS) if base(KPOS) < 65536 else 0
        a(f"v_xor_b32 v{T+5}, {32*kk}, v{T+9}")
        a.ds(f"ds_read_b128 a[{KF+4*kk}:{KF+4*kk+3}], v{T+5} offset:{koff}", f"K{kk}")
    a("s_waitcnt lgkmcnt(0)")
    if OPT["tlb"]:
        a(f"s_cmp_lg_u32 s{S_W}, 1")
        a("s_cbranch_scc1 L_notlb")
        kv_soffset(a, S_T2, S_H)
        a(f"s_cmp_eq_u32 s{S_BR}, 0")
        a(f"s_cselect_b32 s98, s38, s48")
        a(f"s_cselect_b32 s99, s39, s49")
        a(f"v_mov_b32 v{T}, s{S_T2}")
        a(f"global_load_dword v{T+7}, v{T}, s[98:99]")
        a(f"s_cmp_eq_u32 s{S_BR}, 0")
        a(f"s_cselect_b32 s98, s40, s50")
        a(f"s_cselect_b32 s99, s41, s51")
        a(f"global_load_dword v{T+7}, v{T}, s[98:99]")
        a(f"s_cselect_b32 s98, s44, s54")
        a(f"s_cselect_b32 s99, s45, s55")
        a(f"s_mul_i32 s{S_T0}, s{S_SPLIT}, 589824")
        a(f"v_and_b32 v{T}, 1, v1")
        a(f"v_mul_u32_u24 v{T}, 589820, v{T}")
        a(f"v_add_u32 v{T}, s{S_T0}, v{T}")
        a(f"global_load_dword v{T+7}, v{T}, s[98:99]")
        a(f"s_mul_i32 s{S_T0}, s{S_RB}, {128*2304}")
        a(f"v_mov_b32 v{T}, s{S_T0}")
        a(f"global_load_dword v{T+7}, v{T}, s[56:57]")
        a(f"v_and_b32 v{T}, 7, v1")
        a(f"v_lshlrev_b32 v{T}, 21, v{T}")
        a(f"v_add_u32 v{T}, {(2<<20)-4}, v{T}")
        a(f"global_load_dword v{T+7}, v{T}, s[60:61] sc1")
        a.label("L_notlb")
    a("s_barrier")
    a.stamp(2)
    rdB(0,0,0)
    for t in range(4): rdA(0,0,t,t)
    for st in range(8):
        for ks in range(3):
            for t in range(4):
                mm32(st, ks, t, t, ks&1)
                if t == 0: rdB(st, ks+1, (ks+1)&1)
                rdA(st, ks+1, t, t)
                if st == KPOS and ks < 2: rdK(4*ks+t)
                else: filler(OPT["nfill"] if st else 3)
            if st == 7 and ks == 1: tags_setup()
        mm32(st, 3, 0, 0, 1)
        mm32(st, 3, 1, 1, 1)
        a.wait_lg0()
        a("s_barrier")
        a.stamp()
        if st < 7:
            rdB(st+1, 0, 0); rdA(st+1, 0, 0, 0); rdA(st+1, 0, 1, 1)
            mm32(st, 3, 2, 2, 1); rdA(st+1, 0, 2, 2)
            mm32(st, 3, 3, 3, 1); rdA(st+1, 0, 3, 3)
        else:
            rdB(8, 0, 0); rdA(8, 0, 0, 0); rdA(8, 1, 0, 1); rdB(8, 2, 2)
            mm32(st, 3, 2, 2, 1); rdA(8, 2, 0, 2); rdB(8, 3, 3)
            mm32(st, 3, 3, 3, 1); rdB(8, 1, 1); rdA(8, 3, 0, 3)
    assert not fill, len(fill)
    def qcvt(t):
        for r in range(8): a(f"v_cvt_pk_bf16_f32 v{QB+8*t+r}, v{ACC+16*t+2*r}, v{ACC+16*t+2*r+1}")
    for t in range(4):
        for ks in range(4):
            mm32(8, ks, t, ks, ks)
            if t < 3: rdA(8, ks, t+1, ks)
            if t == 3 and ks == 1:
                a.wait_lg0()
                a("s_barrier")
                a.stamp(2)
                a("s_nop 3")
            if ks == 2 and t > 0: qcvt(t-1)
    for kk in range(8):
        if kk == 6: a("s_nop 0")
        c = "0" if kk == 0 else f"v[{SA}:{SA+15}]"
        a(f"v_mfma_f32_32x32x16_bf16 v[{SA}:{SA+15}], a[{KF+4*kk}:{KF+4*kk+3}], v[{QB+4*kk}:{QB+4*kk+3}], {c}")
        if kk == 5:
            a("s_nop 5")
            qcvt(3)
    a("s_nop 11")
    M=T+4; M2=T+5
    a(f"v_max3_f32 v{M}, v{SA}, v{SA+1}, v{SA+2}")
    a(f"v_max3_f32 v{M2}, v{SA+3}, v{SA+4}, v{SA+5}")
    a(f"v_max3_f32 v{M}, v{M}, v{SA+6}, v{SA+7}")
    a(f"v_max3_f32 v{M2}, v{M2}, v{SA+8}, v{SA+9}")
    a(f"v_max3_f32 v{M}, v{M}, v{SA+10}, v{SA+11}")
    a(f"v_max3_f32 v{M2}, v{M2}, v{SA+12}, v{SA+13}")
    a(f"v_max3_f32 v{M}, v{M}, v{SA+14}, v{SA+15}")
    a(f"v_max_f32 v{M}, v{M}, v{M2}")
    a(f"v_mov_b32 v{M2}, v{M}")
    a("s_nop 1")
    a(f"v_permlane32_swap_b32 v{M}, v{M2}")
    a("s_nop 1")
    a(f"v_max_f32 v{M}, v{M}, v{M2}")
    a(f"v_mul_f32 v{M}, s{S_C}, v{M}")
    if OPT["pksm"]:
        a(f"v_mov_b32 v{M2}, v{M}")
        a(f"s_mov_b32 s{S_C+1}, s{S_C}") if False else None
        for r in range(0,16,2): a(f"v_pk_fma_f32 v[{SA+r}:{SA+r+1}], v[{SA+r}:{SA+r+1}], s[{S_CC}:{S_CC+1}], v[{M}:{M2}] neg_lo:[0,0,1] neg_hi:[0,0,1]")
    else:
        for r in range(16): a(f"v_fma_f32 v{SA+r}, v{SA+r}, s{S_C}, -v{M}")
    for r in range(16): a(f"v_exp_f32 v{SA+r}, v{SA+r}")
    a("s_nop 0")
    if OPT["pksm"]:
        a(f"v_pk_add_f32 v[{M}:{M2}], v[{SA}:{SA+1}], v[{SA+2}:{SA+3}]")
        a(f"v_pk_add_f32 v[{QB}:{QB+1}], v[{SA+4}:{SA+5}], v[{SA+6}:{SA+7}]")
        a(f"v_pk_add_f32 v[{M}:{M2}], v[{M}:{M2}], v[{SA+8}:{SA+9}]")
        a(f"v_pk_add_f32 v[{QB}:{QB+1}], v[{QB}:{QB+1}], v[{SA+10}:{SA+11}]")
        a(f"v_pk_add_f32 v[{M}:{M2}], v[{M}:{M2}], v[{SA+12}:{SA+13}]")
        a(f"v_pk_add_f32 v[{QB}:{QB+1}], v[{QB}:{QB+1}], v[{SA+14}:{SA+15}]")
        a(f"v_pk_add_f32 v[{M}:{M2}], v[{M}:{M2}], v[{QB}:{QB+1}]")
    else:
        a(f"v_add_f32 v{M}, v{SA}, v{SA+1}")
        a(f"v_add_f32 v{M2}, v{SA+2}, v{SA+3}")
        for r in range(4,16,2):
            a(f"v_add_f32 v{M}, v{M}, v{SA+r}")
            a(f"v_add_f32 v{M2}, v{M2}, v{SA+r+1}")
    a(f"v_add_f32 v{M}, v{M}, v{M2}")
    a(f"v_mov_b32 v{M2}, v{M}")
    a("s_nop 1")
    a(f"v_permlane32_swap_b32 v{M}, v{M2}")
    a("s_nop 1")
    a(f"v_add_f32 v{M}, v{M}, v{M2}")
    a(f"v_rcp_f32 v{M}, v{M}")
    a("s_nop 0")
    if OPT["pksm"]:
        a(f"v_mov_b32 v{M2}, v{M}")
        for r in range(0,16,2): a(f"v_pk_mul_f32 v[{SA+r}:{SA+r+1}], v[{SA+r}:{SA+r+1}], v[{M}:{M2}]")
    else:
        for r in range(16): a(f"v_mul_f32 v{SA+r}, v{SA+r}, v{M}")
    PX=QB; PY=QB+4
    for k,r in enumerate([0,2,8,10]): a(f"v_cvt_pk_bf16_f32 v{PX+k}, v{SA+r}, v{SA+r+1}")
    for k,r in enumerate([4,6,12,14]): a(f"v_cvt_pk_bf16_f32 v{PY+k}, v{SA+r}, v{SA+r+1}")
    if OPT["ownp"]:
        a(f"ds_write_b128 v{T+9}, v[{PX}:{PX+3}]")
        a(f"ds_write_b128 v{T+9}, v[{PY}:{PY+3}] offset:512")
        for k in range(8): a(f"v_or_b32 v{SA+k}, v{PX+k}, v{PMASK[k&3]}")
        PX = SA; PY = SA+4
    else:
        for k in range(8): a(f"v_or_b32 v{PX+k}, v{PX+k}, v{PMASK[k&3]}")
    a.vmop(f"buffer_store_dwordx4 v[{PX}:{PX+3}], v{T+8}, s[{S_WS}:{S_WS+3}], s{S_SOP} offen sc1", "Pst")
    a.vmop(f"buffer_store_dwordx4 v[{PY}:{PY+3}], v{T+8}, s[{S_WS}:{S_WS+3}], s{S_SOP} offen offset:512 sc1", "Pst")
    a(f"v_mov_b32 v{T+9}, 0")

    def flag_store(tagname, soff, off=0):
        a("s_mov_b64 exec, 1")
        a.vmop(f"buffer_store_dword v{VTG}, v{T+9}, s[{S_WS}:{S_WS+3}], s{soff} offen offset:{off} sc1", tagname)
        a("s_mov_b64 exec, -1")
    def mb_add(tp):
        a("s_mov_b64 exec, 1")
        a.ds(f"ds_add_u32 v{T+4}, v{T+2} offset:{4*tp}", "mb")
        a("s_mov_b64 exec, -1")
    def pkreg(u, t): return (STASH+12*t+4*u) if u < 3 else (PK+4*(t&1))
    def outreg(it, t): return RB + 12*t + 4*it
    dsq = []
    for f in range(144):
        g, ks = divmod(f, 4); u, t = divmod(g, 9); sl = BF + 4*(f % NBF)
        if t == 0:
            for st in range(2):
                pre = None; ad = AV+ks
                if u&1:
                    ad = T+5
                    if st == 0: pre = f"v_add_u32 v{T+5}, {(base(12)-base(10)) & 0xffffffff}, v{AV+ks}"
                dsq.append([f-4 if u else -1, u, f"ds_read_b128 a[{VF+16*st+4*ks}:{VF+16*st+4*ks+3}], v{ad} offset:{st*4096}", f"V{u}_{ks}", pre, f])
        for h in range(2):
            dsq.append([f-NBF, u, f"ds_read_b64_tr_b16 a[{sl+2*h}:{sl+2*h+1}], v{AO+(u&1)} offset:{ks*9216+h*2304+t*32}", f"W{f}", None, f])
    state = dict(pairs=-1, head=0)
    def ds_pop(n=1):
        k = 0
        while k < n:
            cand = [e for e in dsq if e[0] <= state["pairs"] and e[1] <= state["head"]]
            if not cand: break
            e = min(cand, key=lambda e: e[5]); dsq.remove(e)
            if e[4]: a(e[4])
            a.ds(e[2], e[3]); k += 1
        return k
    vq = []
    nlab = [0]
    def v_pop(n):
        for _ in range(n):
            if not vq: return
            x = vq.pop(0)
            if isinstance(x, tuple):
                if OPT["own"]:
                    k = nlab[0]; nlab[0] += 1
                    a(f"s_cbranch_{'vccnz' if x[2] == 0 else 'scc1'} L_ow{k}")
                    a.vmop(x[0], x[1])
                    a.label(f"L_ox{k}")
                    a.ool += [f"L_ow{k}:", "    " + x[3], f"    s_branch L_ox{k}"]
                else: a.vmop(x[0], x[1])
            else: a(x)
    def q_cvt(g):
        u, t = divmod(g, 9)
        w = VW+8*(g&1); p = pkreg(u, t)
        for k in range(4): vq.append(f"v_cvt_pk_bf16_f32 v{p+k}, v{w+2*k}, v{w+2*k+1}")
    def q_pair(tp):
        for it in range(2):
            so = S_PW if it == 0 else S_PW1
            d = RB + 12*(2*tp+it) + 8
            for h in range(2):
                o = outreg(it, 2*tp+h)
                vq.append(f"v_cvt_pk_bf16_f32 v{d+2*h}, v{o}, v{o+1}")
                vq.append(f"v_cvt_pk_bf16_f32 v{d+2*h+1}, v{o+2}, v{o+3}")
            vq.append((f"buffer_store_dwordx4 v[{d}:{d+3}], v{VL}, s[{S_WS}:{S_WS+3}], s{so} offen offset:{1024*tp} sc1", f"part{tp}", it, f"ds_write_b128 v{FPA}, v[{d}:{d+3}] offset:{1024*tp}"))
    def q_t8():
        for it in range(2):
            so = S_PW if it == 0 else S_PW1
            d = RB + 12*8 + 8 + 2*it
            o = outreg(it, 8)
            vq.append(f"v_cvt_pk_bf16_f32 v{d}, v{o}, v{o+1}")
            vq.append(f"v_cvt_pk_bf16_f32 v{d+1}, v{o+2}, v{o+3}")
            vq.append((f"buffer_store_dwordx2 v[{d}:{d+1}], v{T+8}, s[{S_WS}:{S_WS+3}], s{so} offen sc1", "part3", it, f"ds_write_b64 v{TAGP}, v[{d}:{d+1}]"))
    def vw(g, ks, st):
        f = 4*g+ks; sl = BF + 4*(f % NBF)
        w = VW+8*(g&1)+4*st
        c = "0" if ks == 0 else f"v[{w}:{w+3}]"
        a(f"v_mfma_f32_16x16x32_bf16 v[{w}:{w+3}], a[{VF+16*st+4*ks}:{VF+16*st+4*ks+3}], a[{sl}:{sl+3}], {c}")
    def pv1(u, t, it):
        p = pkreg(u, t); o = outreg(it, t)
        c = "0" if u == 0 else f"v[{o}:{o+3}]"
        a(f"v_mfma_f32_16x16x32_bf16 v[{o}:{o+3}], v[{p}:{p+3}], a[{PF+8*u+4*it}:{PF+8*u+4*it+3}], {c}")
    a("s_barrier")
    a.stamp(2)
    a.lq = []
    ds_pop(8+2*NBF)
    a(f"v_lshlrev_b32 v{T+8}, 3, v1")
    a(f"v_add_u32 v{T+8}, 4096, v{T+8}")
    a(f"v_mov_b32 v{T+4}, {MBOX}")
    a(f"v_mov_b32 v{T+2}, 1")
    a(f"s_lshl_b32 s{S_T0}, s{S_RG}, 2")
    a(f"s_add_u32 s{S_T0}, s{S_T0}, s{S_W}")
    a(f"s_lshl_b32 s{S_T0}, s{S_T0}, 4")
    a(f"s_add_u32 s{S_T0}, s{S_T0}, s{S_SPLIT}")
    a(f"s_lshl_b32 s{S_T0}, s{S_T0}, 7")
    a(f"s_add_u32 s{S_T0}, s{S_T0}, {FR_BASE}")
    a(f"v_lshl_add_u32 v{T+3}, v1, 10, s{S_T0}")
    a(f"v_add_u32 v{FPA}, {base(15)}, v{VL}")
    a(f"v_add_u32 v{TAGP}, {base(15)}, v{T+8}")
    a(f"s_cmp_eq_u32 s{S_W}, s{S_HQ}")
    a(f"s_cselect_b32 s{S_OWN}, s{S_KQ}, 7")
    a(f"s_lshl_b32 s{S_SOK}, s{S_W}, 11")
    a(f"s_add_u32 s{S_SOK}, s{S_SOK}, {OPB}")
    a(f"v_add_u32 v{T+7}, s{S_LW8}, v{VL}")
    a(f"v_add_u32 v{T+7}, {base(14)}, v{T+7}")
    MKS = OPT["mks"]
    for g in range(36):
        u, t = divmod(g, 9)
        haspv = (u == 3 and t > 0)
        for ks in range(4):
            f = 4*g+ks
            assert not any(e[5] <= f for e in dsq), (f, dsq[0])
            a.wait_lg(f"W{f}", f"V{u}_{ks}")
            extra_ds = 2 if (t == 0 or (t == 8 and ks > MKS)) else 1
            vw(g, ks, 0)
            ds_pop(extra_ds)
            if not haspv and ks >= 2: v_pop(1)
            vw(g, ks, 1)
            state["pairs"] = f
            if u < 3 and t == 8 and ks == MKS:
                assert not any(e[1] <= u for e in dsq)
                a.wait_lg0()
                a("s_barrier")
                a.stamp(2)
                state["head"] = u+1
                ds_pop(6)
            else:
                ds_pop(extra_ds)
            if not haspv and ks >= 2: v_pop(1)
            if g > 0 and ks == 1 and not haspv: q_cvt(g-1)
            if g == 28 and ks == 0 and OPT["own"]:
                a(f"s_cmp_eq_u32 s{S_OWN}, 0")
                a("s_cselect_b64 vcc, -1, 0")
                a(f"s_cmp_eq_u32 s{S_OWN}, 1")
            if u == 3 and t == 0:
                if OPT["ownp"]:
                    a(f"s_add_u32 s{S_T1}, s{S_LW8}, {base(14) + 2048*ks}")
                    a(f"s_cmp_eq_u32 s{S_OU}, {ks}")
                    a(f"s_cselect_b32 s{S_T1}, s{S_SOK}, s{S_T1}")
                    a(f"v_add_u32 v{T+7}, s{S_T1}, v{VL}")
                for q in (2*ks, 2*ks+1):
                    off = 1024*(q&1) if OPT["ownp"] else 1024*q
                    a.ds(f"ds_read_b128 a[{PF+4*q}:{PF+4*q+3}], v{T+7} offset:{off}", f"P{q>>1}")
            if haspv:
                if t == 1: a.wait_lg(f"P{ks}")
                if ks == 1 and t in (3, 5, 7): q_pair((t-3)>>1)
                pv1(ks, t-1, 0); v_pop(2)
                if ks == 0: q_cvt(g-1)
                pv1(ks, t-1, 1)
                if ks < 3 or True: v_pop(2)
        assert not vq, (g, vq)
        if u < 3 and t == [OPT['r0pos'], OPT['r1pos'], OPT['rpos']][u]:
            a.wait_lg(f"V{u}_3")
            a("s_barrier")
    pv1(0, 8, 0); pv1(0, 8, 1); pv1(1, 8, 0); pv1(1, 8, 1); pv1(2, 8, 0)
    q_cvt(35); v_pop(2)
    pv1(2, 8, 1); v_pop(2)
    q_pair(3)
    v_pop(2)
    pv1(3, 8, 0); v_pop(2); pv1(3, 8, 1); v_pop(100)
    a("s_nop 0")
    q_t8(); v_pop(100)
    a.stamp(2)
    if OPT["two"]:
        a.wait_vm("part2")
        a("s_mov_b64 exec, 3")
        a(f"buffer_store_dword v{VTG}, v{T+3}, s[{S_WS}:{S_WS+3}], 0 offen sc1")
        a("s_mov_b64 exec, 1")
        a(f"ds_add_u32 v{T+4}, v{T+2}")
        a(f"s_mov_b32 s{S_T0}, {256<<10}")
        a("s_waitcnt vmcnt(1)")
        a("s_mov_b64 exec, 3")
        a(f"buffer_store_dword v{VTG}, v{T+3}, s[{S_WS}:{S_WS+3}], s{S_T0} offen sc1")
        a("s_mov_b64 exec, 1")
        a(f"ds_add_u32 v{T+4}, v{T+2} offset:8")
        a("s_mov_b64 exec, -1")
    else:
        a("s_waitcnt vmcnt(0)")
        a("s_mov_b64 exec, 3")
        a(f"buffer_store_dword v{VTG}, v{T+3}, s[{S_WS}:{S_WS+3}], 0 offen sc1")
        a("s_mov_b64 exec, 1")
        a(f"ds_add_u32 v{T+4}, v{T+2}")
        a("s_mov_b64 exec, -1")
    a.stamp(2)
    a(f"s_cmp_lg_u32 s{S_W}, 0")
    a("s_cbranch_scc1 L_cdone")
    LD=RB; RA=RB+32
    for r in range(4): a(f"v_mov_b32 v{RA+r}, 0")
    if OPT["own"]: member_offs(a)
    if OPT["two"]: mb_wait(a, "L_cgo", T+4, 12, 1)
    elif OPT["onep"]: mb_wait(a, "L_cgo", T+4, 4, 1)
    else: spin(a, "L_gw", FPA, TAGR, False, OPT["gsl"], OPT["apoll"])
    a.stamp()
    if OPT["own"]:
        for k in range(1, 8):
            a(f"buffer_load_dwordx2 v[{LD+2*k}:{LD+2*k+1}], v{T+8}, s[{S_WS}:{S_WS+3}], s{S_MO+k} offen sc1")
        a(f"ds_read_b64 v[{LD}:{LD+1}], v{TAGP}")
    else:
        for j in range(8):
            a(f"buffer_load_dwordx2 v[{LD+2*j}:{LD+2*j+1}], v{T+8}, s[{S_WS}:{S_WS+3}], s{S_RD} offen sc1")
            if j < 7: a(f"s_add_u32 s{S_RD}, s{S_RD}, {SLICE}")
    for j in range(8):
        a("s_waitcnt lgkmcnt(0)" if (j == 0 and OPT["own"]) else f"s_waitcnt vmcnt({7-j})")
        for d in range(2):
            a(f"v_dot2c_f32_bf16 v{RA+2*d}, s{S_ONE}, v{LD+2*j+d}")
            a(f"v_dot2c_f32_bf16 v{RA+2*d+1}, s{S_ONEH}, v{LD+2*j+d}")
    a("s_nop 2")
    a(f"v_cvt_pk_bf16_f32 v{LD}, v{RA}, v{RA+1}")
    a(f"v_cvt_pk_bf16_f32 v{LD+1}, v{RA+2}, v{RA+3}")
    a(f"buffer_store_dwordx2 v[{LD}:{LD+1}], v{T+6}, s[{S_OUT}:{S_OUT+3}], s{S_OA} offen{OSC}")
    a(f"s_lshl_b32 s{S_T2}, s2, 2")
    a(f"s_add_u32 s{S_T2}, s{S_T2}, {E_BASE}")
    flag_store("Eup", S_T2)
    a.label("L_cdone")
    stamp_out(a, 0)

def gen(a):
    kname = NAME + "_kernel"
    a.raw(f".globl {kname}"); a.raw(".p2align 8"); a.raw(f".type {kname},@function"); a.label(kname)
    a("s_load_dwordx16 s[36:51], s[0:1], 0")
    a("s_load_dwordx8 s[52:59], s[0:1], 64")
    a("s_load_dwordx2 s[60:61], s[0:1], 96")
    a("v_lshrrev_b32 v1, 6, v0")
    a("s_cmp_ge_u32 s2, 256")
    a("s_cbranch_scc1 L_end")
    a(f"v_readfirstlane_b32 s{S_T1}, v1")
    if OPT["stamp"]:
        a(f"v_mov_b32 v{V_STAMP}, 0")
        a.stamp(2)
    a(f"s_and_b32 s{S_T0}, s2, 7")
    a("v_and_b32 v1, 63, v0")
    a(f"s_lshr_b32 s{S_BR}, s{S_T0}, 2")
    a(f"s_and_b32 s{S_HQ}, s{S_T0}, 3")
    a(f"s_bfe_u32 s{S_RB}, s2, 0x20003")
    a(f"s_lshr_b32 s{S_HL}, s2, 5")
    a(f"s_and_b32 s{S_W}, s{S_T1}, 3")
    a(f"s_lshl_b32 s{S_H}, s{S_HQ}, 3")
    a(f"s_add_u32 s{S_H}, s{S_H}, s{S_HL}")
    a(f"s_lshl_b32 s{S_B}, s{S_RB}, 2")
    a(f"s_add_u32 s{S_B}, s{S_B}, s{S_W}")
    a(f"s_and_b32 s{S_CP}, s{S_HL}, 3")
    a(f"s_lshr_b32 s{S_KQ}, s{S_HL}, 2")
    a(f"s_lshl_b32 s{S_SPLIT}, s{S_HQ}, 1")
    a(f"s_add_u32 s{S_SPLIT}, s{S_SPLIT}, s{S_KQ}")
    a(f"s_lshl_b32 s{S_LW4}, s{S_W}, 12")
    a(f"s_lshl_b32 s{S_LW8}, s{S_W}, 13")
    a(f"s_cmp_ge_u32 s{S_T1}, 4")
    a("s_cbranch_scc1 L_loader")
    gen_compute_pro(a)
    a("s_branch L_compute")
    a.label("L_loader")
    gen_loader(a)
    a.raw(".p2align 6")
    a.label("L_compute")
    gen_compute(a)
    a.label("L_end")
    a("s_endpgm")
    for l in a.ool: a.raw(l)
    a.label('L_fin')

def main():
    a = Asm()
    hdr = open("cdna_kernels/%s.s.ref" % NAME).read().split("; Override")[0]
    a.raw(hdr.rstrip())
    a.raw(f"; @launch grid=(256,1,1) block=(512,1,1) lds={LDS_BYTES}")
    a.raw('.amdgcn_target "amdgcn-amd-amdhsa--gfx950"')
    a.raw(".text")
    gen(a)
    a.raw('.section .rodata,"a"')
    a.raw(".p2align 6")
    a.raw(f".amdhsa_kernel {NAME}_kernel")
    a.raw(f"  .amdhsa_next_free_vgpr {NARCH+NACC}")
    a.raw(f"  .amdhsa_next_free_sgpr 102")
    a.raw(f"  .amdhsa_accum_offset {NARCH}")
    a.raw("  .amdhsa_group_segment_fixed_size 0")
    a.raw("  .amdhsa_kernarg_size 104")
    a.raw("  .amdhsa_user_sgpr_count 2")
    a.raw("  .amdhsa_user_sgpr_kernarg_segment_ptr 1")
    a.raw("  .amdhsa_system_sgpr_workgroup_id_x 1")
    a.raw(".end_amdhsa_kernel")
    open(sys.argv[1], "w").write(a.text())
    if os.environ.get("SHOW"): print(schedule())
main()
```

```python
import sys, os
NAME = "concat_heads__gqa_block_cached__mha_block_cached__near_ridge"
OPT = dict(stamp=0, rot1=2, rot2=2, ntx=0, ntq=0, ntk=0, ntv=0, nto=0, prio=0, rpos=4, kpos=3, nbf=6,
           nodma=0, nomfma=0, nolds=0, cyc=0, epos=1, cpf=1, first=0, mbox=1, gsl=4, tlb=0, midw=0, cprio=0, w2=0, apoll=1, nfill=2, mks=0, pksm=1, onep=1, pearly=0, lprio2=1, r0pos=3, r1pos=4, two=0, osc=0, pp=0, ppsl=8, own=1, nost=0, nospin=0, dbgl=0, ownp=1, b9pos=3)
for arg in sys.argv[2:]:
    k, v = arg.split("="); assert k in OPT, k; OPT[k] = int(v)

class Asm:
    def __init__(self):
        self.L=[]; self.vm=[]; self.nst=0; self.lq=[]; self.ool=[]
    def __call__(self, s):
        if OPT["nomfma"] and s.startswith("v_mfma"): return
        if OPT["nolds"] and s.startswith("ds_read"): return
        if OPT["nodma"] and s.endswith(" lds"): return
        if OPT["nost"] and s.startswith("buffer_store_dwordx") and ("s49 " in s or "s50 " in s): return
        self.L.append("    "+s)
    def label(self, n): self.L.append(n+":")
    def raw(self, s): self.L.append(s)
    def text(self): return "\n".join(self.L)+"\n"
    def vmop(self, s, tag): self(s); self.vm.append(tag)
    def wait_vm(self, *tags):
        idx = max((i for i,t in enumerate(self.vm) if t in tags), default=-1)
        assert idx >= 0, tags
        n = len(self.vm)-1-idx
        assert n <= 63
        self(f"s_waitcnt vmcnt({n})")
    def ds(self, s, tag): self(s); self.lq.append(tag)
    def wait_lg(self, *tags):
        idx = max((i for i,t in enumerate(self.lq) if t in tags), default=-1)
        if idx < 0: return
        n = min(15, len(self.lq)-1-idx)
        self(f"s_waitcnt lgkmcnt({n})")
        self.lq = self.lq[len(self.lq)-n:] if n else []
    def wait_lg0(self):
        self("s_waitcnt lgkmcnt(0)"); self.lq = []
    def stamp(self, lvl=1):
        if not OPT["stamp"]: return
        if OPT["stamp"] == 2 and lvl < 2: return
        self.lq = []
        self("s_memtime s[96:97]" if OPT["cyc"] else "s_memrealtime s[96:97]")
        self("s_waitcnt lgkmcnt(0)")
        self(f"v_writelane_b32 v{V_STAMP}, s96, {self.nst}")
        self.nst += 1

SLOT = 36864
MBOX = 4*SLOT
OPB = 4*SLOT + 256
LDS_BYTES = 4*SLOT + 256 + 8192
KPOS = OPT["kpos"]
def pos_s1(t): return t if t < KPOS else t+1
def base(pos): return (pos % 4)*SLOT
P_BASE = 0
SLICE = 4608
PART_BASE = 2<<20
E_BASE = 15<<20
FP_BASE = E_BASE + 4096
FR_BASE = 14<<20
STAMP_BASE = 13<<20
STAMP_BASE = 16<<20
WS_USED = 17<<20
LCG_A = 1664525; LCG_C = 1013904223
SPIN_MAX = 1<<15

S_X=8; S_WQ=12; S_K=16; S_WS=20; S_V=24; S_WO=28; S_OUT=32
S_W=62; S_BR=63; S_HQ=64; S_RB=65; S_HL=66; S_H=67; S_B=68; S_SPLIT=69
S_T0=70; S_T1=71; S_T2=72; S_T3=73
S_SOX=74; S_SOQ=75; S_SOK=76; S_C=77; S_SOP=78; S_LWO=79; S_CP=80; S_KQ=81; S_LW4=82; S_LW8=83
S_SOV=[84,85,86,87]; S_SOW=[88,89,90,91]; S_SPU=[92,93,94,95]
S_TAG=3; S_CNT=4; S_CH=5; S_RG=6; S_PG=7
S_CC=52
S_OWN=54
S_TJ=36
S_FR=44; S_RD=45; S_OA=46; S_ONE=47; S_ONEH=48; S_PW=49; S_PW1=50
AX=2; AQ=10; VW=2; PK=18; T=26; AV=36; AO=40; VL=42; TAGP=43; TAGR=44; FPA=45; VTG=46; V_STAMP=47
RB=48
ACC=RB; QB=RB+64; SA=RB+96
STASH=RB+12
NARCH=168
VX=2; VQ=6; VK=10; VO=14; FRA=45
NBF=OPT["nbf"]
FA=0; FB=16; KF=32; PF=0; BF=32; VF=32+4*NBF; NACC=VF+32

OSC = ["", " sc1", " nt", " sc0 sc1"][OPT["osc"]]
def nt(k): return " nt" if OPT[k] else ""

def srd(a, b, lo, hi, nrec):
    a(f"s_mov_b32 s{b}, s{lo}")
    a(f"s_and_b32 s{b+1}, s{hi}, 0xffff")
    a(f"s_mov_b32 s{b+2}, {nrec}")
    a(f"s_mov_b32 s{b+3}, 0x20000")

def kv_soffset(a, dst, head_s):
    a(f"s_lshl_b32 s{S_T0}, s{S_B}, 4")
    a(f"s_lshr_b32 s{S_T1}, s{head_s}, 1")
    a(f"s_add_u32 s{S_T0}, s{S_T0}, s{S_T1}")
    a(f"s_lshl_b32 s{S_T1}, s{S_B}, 5")
    a(f"s_add_u32 s{S_T1}, s{S_T1}, s{head_s}")
    a(f"s_cmp_eq_u32 s{S_BR}, 0")
    a(f"s_cselect_b32 s{dst}, s{S_T0}, s{S_T1}")
    a(f"s_lshl_b32 s{dst}, s{dst}, 13")

ORD2 = {0: [[0,1,2,3]]*4, 1: [[0,1,2,3],[1,2,3,0],[2,3,0,1],[3,0,1,2]],
        2: [[0,1,2,3],[1,0,2,3],[0,2,1,3],[0,1,3,2]],
        3: [[0,1,2,3],[1,0,3,2],[0,1,2,3],[1,0,3,2]],
        4: [[0,2,1,3],[1,0,2,3],[0,1,3,2],[1,3,0,2]]}[OPT["rot2"]]
S_OU = 101
def own_pos(a):
    tab = sum(ORD2[j].index(c) << (2*(4*j+c)) for j in range(4) for c in range(4))
    a(f"s_add_u32 s{S_T2}, s{S_RB}, s{S_CP}")
    a(f"s_and_b32 s{S_T2}, s{S_T2}, 3")
    a(f"s_lshl_b32 s{S_T2}, s{S_T2}, 2")
    a(f"s_add_u32 s{S_T2}, s{S_T2}, s{S_CP}")
    a(f"s_lshl_b32 s{S_T2}, s{S_T2}, 1")
    a(f"s_lshr_b32 s{S_OU}, {tab}, s{S_T2}")
    a(f"s_and_b32 s{S_OU}, s{S_OU}, 3")

def head_u(a, u):
    tab = sum(ORD2[j][u] << (2*j) for j in range(4))
    a(f"s_lshl_b32 s{S_T3}, s{S_SPLIT}, 2")
    if OPT["rot2"]:
        a(f"s_add_u32 s{S_T2}, s{S_RB}, s{S_CP}")
        a(f"s_and_b32 s{S_T2}, s{S_T2}, 3")
        a(f"s_lshl_b32 s{S_T2}, s{S_T2}, 1")
        a(f"s_lshr_b32 s{S_T2}, {tab}, s{S_T2}")
        a(f"s_and_b32 s{S_T2}, s{S_T2}, 3")
        a(f"s_add_u32 s{S_T3}, s{S_T3}, s{S_T2}")
    elif u: a(f"s_add_u32 s{S_T3}, s{S_T3}, {u}")

def rgroup(a):
    a(f"s_lshl_b32 s{S_RG}, s{S_BR}, 2")
    a(f"s_add_u32 s{S_RG}, s{S_RG}, s{S_RB}")
    a(f"s_lshl_b32 s{S_RG}, s{S_RG}, 2")
    a(f"s_add_u32 s{S_RG}, s{S_RG}, s{S_CP}")

def e_addr_r(a, dst, t):
    a(f"s_and_b32 s{S_T0}, s2, 0x7c")
    a(f"v_bfe_u32 v{dst}, v1, 1, 2")
    a(f"v_and_b32 v{t}, 1, v1")
    a(f"v_lshl_add_u32 v{dst}, v{t}, 7, v{dst}")
    a(f"v_add_u32 v{dst}, s{S_T0}, v{dst}")
    a(f"v_lshlrev_b32 v{dst}, 2, v{dst}")

def lcg(a, v):
    a(f"s_mov_b32 s{S_T0}, {LCG_A}")
    a(f"v_mul_lo_u32 v{v}, v{v}, s{S_T0}")
    a(f"v_add_u32 v{v}, {LCG_C}, v{v}")

def red_scalars(a):
    a(f"s_lshl_b32 s{S_T0}, s{S_RG}, 3")
    a(f"s_add_u32 s{S_T0}, s{S_T0}, s{S_SPLIT}")
    a(f"s_mul_i32 s{S_RD}, s{S_T0}, {8*SLICE}")
    a(f"s_add_u32 s{S_RD}, s{S_RD}, {PART_BASE}")
    a(f"s_lshl_b32 s{S_T0}, s{S_W}, 10")
    a(f"s_add_u32 s{S_RD}, s{S_RD}, s{S_T0}")
    a(f"s_lshl_b32 s{S_OA}, s{S_RB}, 3")
    a(f"s_add_u32 s{S_OA}, s{S_OA}, s{S_SPLIT}")
    a(f"s_mul_i32 s{S_OA}, s{S_OA}, {16*2304}")
    a(f"s_mul_i32 s{S_T0}, s{S_BR}, 1152")
    a(f"s_add_u32 s{S_OA}, s{S_OA}, s{S_T0}")
    a(f"s_mul_i32 s{S_T0}, s{S_CP}, 288")
    a(f"s_add_u32 s{S_OA}, s{S_OA}, s{S_T0}")
    a(f"s_mov_b32 s{S_ONE}, 0x3f80")
    a(f"s_mov_b32 s{S_ONEH}, 0x3f800000")

def stamp_out(a, widx):
    if not OPT["stamp"]: return
    a("s_waitcnt vmcnt(0)")
    a.stamp(2)
    a(f"s_lshl_b32 s{S_T2}, s2, 3")
    a(f"s_add_u32 s{S_T2}, s{S_T2}, s{S_W}")
    if widx: a(f"s_add_u32 s{S_T2}, s{S_T2}, 4")
    a(f"s_lshl_b32 s{S_T2}, s{S_T2}, 8")
    a(f"s_add_u32 s{S_T2}, s{S_T2}, {STAMP_BASE}")
    a(f"v_lshlrev_b32 v{T}, 2, v1")
    a(f"buffer_store_dword v{V_STAMP}, v{T}, s[{S_WS}:{S_WS+3}], s{S_T2} offen")

def spin(a, lbl, addr, tag, first_loaded, sleep=False, atomic=False):
    a(f"s_mov_b32 s{S_CNT}, 0")
    if first_loaded: a(f"s_branch {lbl}_chk")
    a.label(f"{lbl}_poll")
    if sleep: a(f"s_sleep {sleep}")
    if atomic:
        a(f"v_mov_b32 v{T+7}, 0")
        a("s_mov_b64 exec, 0xff")
        a(f"buffer_atomic_or v{T+7}, v{addr}, s[{S_WS}:{S_WS+3}], 0 offen sc0 sc1")
    else:
        a(f"buffer_load_dword v{T+7}, v{addr}, s[{S_WS}:{S_WS+3}], 0 offen sc1")
    a("s_waitcnt vmcnt(0)")
    a.label(f"{lbl}_chk")
    a(f"v_cmp_ne_u32 vcc, v{T+7}, v{tag}")
    a(f"s_add_u32 s{S_CNT}, s{S_CNT}, 1")
    a(f"s_cmp_ge_u32 s{S_CNT}, {SPIN_MAX}")
    a(f"s_cbranch_scc1 {lbl}_done")
    a("s_nop 1")
    a(f"s_cbranch_vccnz {lbl}_poll")
    a.label(f"{lbl}_done")
    if atomic: a("s_mov_b64 exec, -1")

def mb_wait(a, lbl, addr_v, off, val):
    a(f"s_mov_b32 s{S_CNT}, 0")
    a.label(lbl)
    a(f"s_sleep {8 if OPT['nospin'] else 1}")
    a(f"ds_read_b32 v{T+1}, v{addr_v} offset:{off}")
    a(f"s_add_u32 s{S_CNT}, s{S_CNT}, 1")
    a("s_waitcnt lgkmcnt(0)")
    a(f"v_readfirstlane_b32 s{S_T0}, v{T+1}")
    a(f"s_cmp_ge_u32 s{S_CNT}, {SPIN_MAX*64}")
    a(f"s_cbranch_scc1 {lbl}_done")
    a(f"s_cmp_lt_u32 s{S_T0}, {val}")
    a(f"s_cbranch_scc1 {lbl}")
    a.label(f"{lbl}_done")

S_MO = 84
def member_offs(a):
    for k in range(1, 8):
        a(f"s_add_u32 s{S_T0}, s{S_SPLIT}, {k}")
        a(f"s_and_b32 s{S_T0}, s{S_T0}, 7")
        a(f"s_mul_i32 s{S_T0}, s{S_T0}, {SLICE}")
        a(f"s_add_u32 s{S_MO+k}, s{S_T0}, s{S_RD}")

def schedule():
    seq = []
    nxt = 2
    def free_upto(p):
        nonlocal nxt
        r = list(range(nxt, min(p+4, 17)+1)); nxt = max(nxt, min(p+4, 17)+1); return r
    for t in range(9):
        need = [pos_s1(t)] + ([KPOS] if t == KPOS else [])
        cons = pos_s1(t-1) if t > 0 else -1
        if t == KPOS: cons = KPOS-1
        seq.append((need, free_upto(cons)))
    if OPT["b9pos"] == 3:
        seq.append(None)
        seq.append(([10, 11], free_upto(9)))
    else:
        seq.append(([], free_upto(9)))
        seq.append(([10, 11], []))
    seq.append(([], free_upto(10)))
    seq.append(([12, 13], free_upto(11)))
    seq.append(([], free_upto(12)))
    seq.append(([14, 15], free_upto(13)))
    seq.append(([], []))
    seq.append(([16, 17], []))
    return seq

def gen_loader(a):
    a.vm = []; a.nst = 1
    if OPT["prio"]: a(f"s_setprio {OPT['prio']}")
    a(f"v_lshrrev_b32 v{T+1}, 4, v1")
    a(f"s_lshl_b32 s{S_T0}, s{S_W}, 4")
    a(f"v_add_u32 v{T+3}, s{S_T0}, v{T+1}")
    a(f"v_lshlrev_b32 v{T+3}, 13, v{T+3}")
    a(f"v_and_b32 v{T+4}, 15, v1")
    a(f"v_lshlrev_b32 v{T+5}, 2, v{T+1}")
    a(f"v_xor_b32 v{T+4}, v{T+4}, v{T+5}")
    a(f"v_lshl_add_u32 v{VQ}, v{T+4}, 4, v{T+3}")
    for j in range(1,4):
        a(f"v_add_u32 v{VQ+j}, {31744*j}, v{VQ}")
    a(f"v_lshrrev_b32 v{T}, 3, v1")
    a(f"v_and_b32 v{T+2}, 7, v1")
    a(f"s_lshl_b32 s{S_T0}, s{S_W}, 5")
    a(f"v_add_u32 v{T+3}, s{S_T0}, v{T}")
    a(f"v_mul_u32_u24 v{T+3}, 1152, v{T+3}")
    a(f"v_xor_b32 v{T+2}, v{T+2}, v{T+1}")
    a(f"v_lshl_add_u32 v{VX}, v{T+2}, 4, v{T+3}")
    a(f"v_xor_b32 v{T+2}, 4, v{T+2}")
    a(f"v_lshl_add_u32 v{VX+1}, v{T+2}, 4, v{T+3}")
    a(f"v_add_u32 v{VX+1}, 8192, v{VX+1}")
    a(f"v_add_u32 v{VX+2}, 16384, v{VX}")
    a(f"v_add_u32 v{VX+3}, 16384, v{VX+1}")
    a(f"s_mul_i32 s{S_SOX}, s{S_RB}, 147456")
    a(f"s_lshl_b32 s{S_SOQ}, s{S_H}, 8")
    ORD1 = {0: [[0,1,2,3,4,5,6,7,8]]*4,
            1: [[0,1,4,2,3,5,8,6,7],[1,0,2,5,3,4,6,7,8],[2,0,1,3,6,4,5,7,8],[0,3,1,2,4,7,5,6,8]],
            2: [[0,1,2,4,3,5,6,8,7],[1,0,2,3,5,4,6,7,8],[0,2,1,3,4,6,5,7,8],[0,1,3,2,4,5,7,6,8]],
            3: [[0,4,1,2,3,8,5,6,7],[1,0,5,2,3,4,6,7,8],[2,0,1,6,3,4,5,7,8],[3,0,1,2,7,4,5,6,8]],
            5: [[0,2,1,3,5,4,6,8,7],[1,0,2,4,3,5,7,6,8],[0,1,3,2,4,5,6,7,8],[0,1,2,3,4,6,5,7,8]],
            6: [[0,2,1,4,3,6,5,8,7],[1,0,3,2,5,4,7,6,8],[0,1,2,3,4,5,6,7,8],[0,1,2,3,4,5,6,7,8]],
            7: [[0,1,2,4,3,5,6,8,7],[1,0,2,3,5,4,6,7,8],[0,2,1,3,4,6,5,7,8],[0,1,3,2,4,5,7,6,8]]}[OPT["rot1"]]
    pack = lambda o: sum(c << (4*i) for i, c in enumerate(o))
    a(f"s_{'add' if OPT['rot1'] >= 5 else 'sub'}_u32 s{S_T0}, s{S_RB}, s{S_HL}")
    a(f"s_and_b32 s{S_T0}, s{S_T0}, 3")
    a(f"s_mov_b32 s98, {pack(ORD1[0]) & 0xffffffff}")
    a(f"s_mov_b32 s99, {pack(ORD1[0]) >> 32}")
    for j in range(1, 4):
        if ORD1[j] != ORD1[0]:
            a(f"s_cmp_eq_u32 s{S_T0}, {j}")
            a(f"s_cselect_b32 s98, {pack(ORD1[j]) & 0xffffffff}, s98")
            a(f"s_cselect_b32 s99, {pack(ORD1[j]) >> 32}, s99")
    for b_, n_ in ((S_X, 589824), (S_WQ, 4718592)):
        a(f"s_mov_b32 s{b_+2}, {n_}")
        a(f"s_mov_b32 s{b_+3}, 0x20000")
    a(f"s_cmp_eq_u32 s{S_BR}, 0")
    a("s_waitcnt lgkmcnt(0)")
    a(f"s_cselect_b32 s{S_WQ}, s42, s52")
    a(f"s_cselect_b32 s{S_WQ+1}, s43, s53")
    a(f"s_cselect_b32 s{S_X}, s36, s46")
    a(f"s_cselect_b32 s{S_X+1}, s37, s47")
    a(f"s_and_b32 s{S_WQ+1}, s{S_WQ+1}, 0xffff")
    a(f"s_and_b32 s{S_X+1}, s{S_X+1}, 0xffff")
    a.stamp()
    def dma_s1(t):
        p = pos_s1(t)
        a(f"s_bfe_u32 s{S_CH}, s{98 + (t>>3)}, {(4 << 16) | (4*(t&7))}")
        a(f"s_add_u32 m0, s{S_LW4}, {base(p)+16384}")
        a(f"s_lshl_b32 s{S_T2}, s{S_CH}, 19")
        a(f"s_add_u32 s{S_T2}, s{S_T2}, s{S_SOQ}")
        for j in range(4):
            a.vmop(f"buffer_load_dwordx4 v{VQ+j}, s[{S_WQ}:{S_WQ+3}], s{S_T2} offen offset:{1024*j}{nt('ntq')} lds", f"p{p}")
        a(f"s_add_u32 m0, s{S_LW4}, {base(p)}")
        a(f"s_lshl_b32 s{S_T2}, s{S_CH}, 7")
        a(f"s_add_u32 s{S_T2}, s{S_T2}, s{S_SOX}")
        for j in range(4):
            a.vmop(f"buffer_load_dwordx4 v{VX+j}, s[{S_X}:{S_X+3}], s{S_T2} offen offset:{1024*j}{nt('ntx')} lds", f"p{p}")
    def dma_kv(srdb, soff, p, ntk):
        for half in range(2):
            a(f"s_add_u32 m0, s{S_LW8}, {base(p) + half*4096}")
            if half == 0: a(f"s_mov_b32 s{S_T2}, s{soff}")
            else: a(f"s_add_u32 s{S_T2}, s{soff}, 4096")
            for j in range(4):
                a.vmop(f"buffer_load_dwordx4 v{VK+j}, s[{srdb}:{srdb+3}], s{S_T2} offen offset:{1024*j}{nt(ntk)} lds", f"p{p}")
    def dma_wo(u, p):
        for j in range(9):
            if j%4 == 0:
                a(f"s_add_u32 m0, s{S_LWO}, {base(p) + 4096*(j>>2)}")
                a("s_nop 0")
            a.vmop(f"buffer_load_dwordx4 v{VO+j}, s[{S_WO}:{S_WO+3}], s{S_SOW[u]} offen offset:{1024*(j&3)}{nt('nto')} lds", f"p{p}")
    def dma_item(p):
        if p == KPOS: dma_kv(S_K, S_SOK, p, "ntk")
        elif p < 10: dma_s1(p if p < KPOS else p-1)
        else:
            u = (p-10)>>1
            if p & 1: dma_wo(u, p)
            else: dma_kv(S_V, S_SOV[u], p, "ntv")
    def setup_kv():
        a(f"s_mov_b32 s{S_T3}, 4194304")
        a(f"s_cmp_eq_u32 s{S_BR}, 0")
        for b_, idx, na in ((S_K,1,2097152),(S_V,2,2097152),(S_WO,4,None)):
            la = 36+2*idx; lb = 46+2*idx
            a(f"s_cselect_b32 s{b_}, s{la}, s{lb}")
            a(f"s_cselect_b32 s{b_+1}, s{la+1}, s{lb+1}")
            if na: a(f"s_cselect_b32 s{b_+2}, {na}, s{S_T3}")
            else: a(f"s_mov_b32 s{b_+2}, 4718592")
            a(f"s_mov_b32 s{b_+3}, 0x20000")
        for b_ in (S_K, S_V, S_WO): a(f"s_and_b32 s{b_+1}, s{b_+1}, 0xffff")
        a(f"v_lshrrev_b32 v{T}, 4, v1")
        a(f"v_and_b32 v{T+1}, 15, v1")
        for j in range(4):
            a(f"v_add_u32 v{VK+j}, {4*j}, v{T}")
            a(f"v_xor_b32 v{VK+j}, v{VK+j}, v{T+1}")
            a(f"v_lshlrev_b32 v{VK+j}, 4, v{VK+j}")
            a(f"v_lshl_add_u32 v{VK+j}, v{T}, 8, v{VK+j}")
        kv_soffset(a, S_SOK, S_H)
    def setup_vo(js):
        a(f"s_movk_i32 s{S_T0}, 3641")
        for j in js:
            a(f"v_add_u32 v{T}, {64*j}, v1")
            a(f"v_mul_u32_u24 v{T+1}, s{S_T0}, v{T}")
            a(f"v_lshrrev_b32 v{T+1}, 16, v{T+1}")
            a(f"v_mul_u32_u24 v{T+2}, 18, v{T+1}")
            a(f"v_sub_u32 v{T+2}, v{T}, v{T+2}")
            a(f"v_and_b32 v{T+3}, 0x13, v{T+1}")
            a(f"v_bfe_u32 v{T+4}, v{T+1}, 2, 1")
            a(f"v_lshl_add_u32 v{T+3}, v{T+4}, 3, v{T+3}")
            a(f"v_bfe_u32 v{T+4}, v{T+1}, 3, 1")
            a(f"v_lshl_add_u32 v{T+3}, v{T+4}, 2, v{T+3}")
            a(f"v_mul_u32_u24 v{T+3}, 1152, v{T+3}")
            a(f"v_lshl_add_u32 v{VO+j}, v{T+2}, 4, v{T+3}")
            if j&3: a(f"v_subrev_u32 v{VO+j}, {1024*(j&3)}, v{VO+j}")
    def setup_heads(us):
        for u in us:
            head_u(a, u)
            a(f"s_lshl_b32 s{S_T2}, s{S_T3}, 2")
            a(f"s_add_u32 s{S_T2}, s{S_T2}, s{S_W}")
            a(f"s_mul_i32 s{S_SOW[u]}, s{S_T2}, {32*1152}")
            a(f"s_mul_i32 s{S_T2}, s{S_CP}, 288")
            a(f"s_add_u32 s{S_SOW[u]}, s{S_SOW[u]}, s{S_T2}")
            a(f"s_mov_b32 s{S_SPU[u]}, s{S_T3}")
            kv_soffset(a, S_SOV[u], S_T3)
    PL = RB; PE = RB+32
    def setup_p():
        if OPT["ownp"]: own_pos(a)
        else: a(f"s_mov_b32 s{S_OU}, 7")
        lcg(a, TAGP)
        a(f"v_lshlrev_b32 v{VL}, 4, v1")
        a(f"v_and_b32 v{T}, 3, v1")
        a(f"v_lshlrev_b32 v{T}, 1, v{T}")
        a(f"v_sub_u32 v{T}, 32, v{T}")
        a(f"s_lshl_b32 s{S_T0}, s{S_BR}, 4")
        a(f"s_add_u32 s{S_T0}, s{S_T0}, s{S_B}")
        a(f"s_lshl_b32 s{S_SOP}, s{S_T0}, 16")
        for u in range(4):
            a(f"s_and_b32 s{S_T0}, s{S_SPU[u]}, 3")
            a(f"v_readlane_b32 s{S_T1}, v{TAGP}, s{S_T0}")
            a(f"s_lshl_b32 s{S_SPU[u]}, s{S_SPU[u]}, 11")
            a(f"s_add_u32 s{S_SPU[u]}, s{S_SPU[u]}, s{S_SOP}")
            a(f"v_alignbit_b32 v{PE+2*u}, s{S_T1}, s{S_T1}, v{T}")
            a(f"v_lshlrev_b32 v{PE+2*u+1}, 1, v{PE+2*u}")
        a(f"s_mov_b32 s{S_C}, 0x07050301")
        a(f"s_mov_b32 s{S_TJ}, 0x7fff7fff")
        a(f"v_add_u32 v{T+6}, s{S_LW8}, v{VL}")
        a(f"v_add_u32 v{T+6}, {base(14)}, v{T+6}")
    lab = [0]
    def skip_own(uu, body):
        k = lab[0]; lab[0] += 1
        a(f"s_cmp_eq_u32 s{S_OU}, {uu}")
        a(f"s_cbranch_scc1 L_so{k}")
        body()
        a.label(f"L_so{k}")
    def p_loads(track):
        for uu in range(4):
            def body(uu=uu):
                for it in range(2):
                    ins = f"buffer_load_dwordx4 v[{PL+8*uu+4*it}:{PL+8*uu+4*it+3}], v{VL}, s[{S_WS}:{S_WS+3}], s{S_SPU[uu]} offen offset:{1024*it} sc1"
                    if track: a.vmop(ins, "Pld")
                    else: a(ins)
            skip_own(uu, body)
    def p_check():
        a.wait_vm("Pld")
        a(f"s_mov_b32 s{S_CNT}, 0")
        a("s_branch L_pc_chk")
        a.label("L_pc_retry")
        a("s_sleep 4")
        p_loads(False)
        a("s_waitcnt vmcnt(0)")
        a.label("L_pc_chk")
        a(f"v_mov_b32 v{T}, 0")
        for uu in range(4):
            def body(uu=uu):
                for q in (2*uu, 2*uu+1):
                    d = PL+4*q; e = PE+2*(q>>1)
                    a(f"v_perm_b32 v{T+1}, v{d+1}, v{d}, s{S_C}")
                    a(f"v_perm_b32 v{T+2}, v{d+3}, v{d+2}, s{S_C}")
                    a(f"v_xor_b32 v{T+1}, v{T+1}, v{e}")
                    a(f"v_xor_b32 v{T+2}, v{T+2}, v{e+1}")
                    a(f"v_or3_b32 v{T}, v{T}, v{T+1}, v{T+2}")
            skip_own(uu, body)
        a(f"v_and_b32 v{T}, 0x80808080, v{T}")
        a(f"v_cmp_ne_u32 vcc, 0, v{T}")
        a(f"s_add_u32 s{S_CNT}, s{S_CNT}, 1")
        a(f"s_cmp_ge_u32 s{S_CNT}, {SPIN_MAX}")
        a("s_cbranch_scc1 L_pc_done")
        a("s_nop 1")
        a("s_cbranch_vccnz L_pc_retry")
        a.label("L_pc_done")
    def p_write():
        for uu in range(4):
            def body(uu=uu):
                for q in (2*uu, 2*uu+1):
                    d = PL+4*q
                    for k in range(4): a(f"v_and_b32 v{d+k}, s{S_TJ}, v{d+k}")
                    a(f"ds_write_b128 v{T+6}, v[{d}:{d+3}] offset:{1024*q}")
            skip_own(uu, body)
        a("s_waitcnt lgkmcnt(0)")
    def setup_e():
        a(f"v_and_b32 v{T}, 3, v1")
        a(f"v_lshlrev_b32 v{T}, 2, v{T}")
        a(f"v_mov_b32 v{T+1}, 0")
        a(f"ds_write_b32 v{T}, v{T+1} offset:{0}") if False else None
        a(f"v_add_u32 v{T}, {MBOX}, v{T}")
        a(f"ds_write_b32 v{T}, v{T+1}")
        e_addr_r(a, T, T+1)
        a(f"s_mov_b32 s{S_T1}, {E_BASE}")
        a.vmop(f"buffer_load_dword v{TAGR}, v{T}, s[{S_WS}:{S_WS+3}], s{S_T1} offen sc1", "E")
        a(f"v_and_b32 v{T}, 3, v1")
        a(f"s_and_b32 s{S_T0}, s2, 0x9f")
        a(f"v_lshlrev_b32 v{T}, 5, v{T}")
        a(f"v_add_u32 v{T}, s{S_T0}, v{T}")
        a(f"v_lshlrev_b32 v{T}, 2, v{T}")
        a.vmop(f"buffer_load_dword v{TAGP}, v{T}, s[{S_WS}:{S_WS+3}], s{S_T1} offen sc1", "E")
        a("s_waitcnt lgkmcnt(0)")
    def setup_red():
        rgroup(a)
        red_scalars(a)
        lcg(a, TAGR)
        a(f"v_and_b32 v{T}, 7, v1")
        a(f"s_lshl_b32 s{S_T0}, s{S_RG}, 3")
        a(f"s_add_u32 s{S_T1}, s{S_T0}, s{S_SPLIT}")
        a(f"s_lshl_b32 s{S_T1}, s{S_T1}, 10")
        a(f"s_add_u32 s{S_T1}, s{S_T1}, {FR_BASE}")
        a(f"v_lshl_add_u32 v{FRA}, v{T}, 7, s{S_T1}")
        a(f"v_and_b32 v{T+8}, 15, v1")
        a(f"v_mul_u32_u24 v{T+8}, 2304, v{T+8}")
        a(f"v_bfe_u32 v{T+3}, v1, 4, 1")
        a(f"v_lshl_add_u32 v{T+8}, v{T+3}, 5, v{T+8}")
        a(f"v_bfe_u32 v{T+3}, v1, 5, 1")
        a(f"v_lshl_add_u32 v{T+8}, v{T+3}, 4, v{T+8}")
        a(f"s_lshl_b32 s{S_T0}, s{S_W}, 6")
        a(f"v_add_u32 v{T+8}, s{S_T0}, v{T+8}")
    dma_item(0); dma_item(1)
    setup_kv()
    srd(a, S_WS, 60, 61, WS_USED)
    srd(a, S_OUT, 56, 57, 1179648)
    a.stamp()
    extra = {1: lambda: (setup_e(), setup_heads([0])), 2: lambda: setup_vo([0,1,2]), 3: lambda: setup_vo([3,4,5]), 4: lambda: setup_vo([6,7,8]),
             5: lambda: (a(f"s_mul_i32 s{S_LWO}, s{S_W}, 9216"), setup_heads([1])), 6: lambda: setup_heads([2,3]), 10: setup_p, 12: setup_red}
    if OPT['pearly']: extra[14] = p_check; extra[15] = p_write
    else: extra[15] = lambda: (p_check(), p_write())
    for i,ent in enumerate(schedule()):
        if ent is None: continue
        need, iss = ent
        if need: a.wait_vm(*[f"p{s}" for s in need])
        a("s_barrier")
        if i == (13 if OPT['pearly'] == 1 else 14 if OPT['pearly'] == 0 else -1): p_loads(True)
        if i == 14 and OPT['lprio2']: a('s_setprio 1')
        for s in iss: dma_item(s)
        if i == 13 and OPT['pearly'] == 2: p_loads(True)
        if i in extra: extra[i]()
        a.stamp()
        if OPT["dbgl"] and i in (9, 11, 13):
            a("s_waitcnt vmcnt(0)")
            a.stamp()
    LD=RB; RA=RB+32
    for r in range(8): a(f"v_mov_b32 v{RA+r}, 0")
    a(f"v_mov_b32 v{T}, {MBOX}")
    if OPT["own"]:
        member_offs(a)
        a(f"s_lshl_b32 s{S_T0}, s{S_W}, 10")
        a(f"s_add_u32 s{S_T0}, s{S_T0}, {base(15)}")
        a(f"v_add_u32 v{T+9}, s{S_T0}, v{VL}")
    if OPT["two"]:
        a(f"s_cmp_eq_u32 s{S_W}, 3")
        a(f"s_cselect_b32 s{S_T2}, 8, 0")
        a(f"s_cselect_b32 s{S_T3}, {256<<10}, 0")
        a(f"v_add_u32 v{T}, s{S_T2}, v{T}")
        a(f"v_add_u32 v{FRA}, s{S_T3}, v{FRA}")
        a(f"s_and_b32 s{S_T2}, s{S_W}, 3")
        a(f"s_cmp_eq_u32 s{S_W}, 1")
        a("s_cbranch_scc1 L_lgo")
        a(f"s_cmp_eq_u32 s{S_W}, 2")
        a("s_cbranch_scc1 L_lgo")
        mb_wait(a, "L_mb", T, 0, 4)
        spin(a, "L_rw", FRA, TAGR, False, OPT["gsl"], OPT["apoll"])
        a(f"v_mov_b32 v{T+1}, 1")
        a(f"ds_write_b32 v{T}, v{T+1} offset:4")
        a("s_branch L_lred")
        a.label("L_lgo")
        mb_wait(a, "L_go", T, 4, 1)
        a.label("L_lred")
    elif OPT["onep"]:
        a(f"s_cmp_lg_u32 s{S_W}, 0")
        a("s_cbranch_scc1 L_lgo")
        mb_wait(a, "L_mb", T, 0, 4)
        if OPT["pp"]:
            a(f"s_mov_b32 s{S_CNT}, 0")
            a("s_mov_b64 exec, 0xff")
            a(f"v_mov_b32 v{T+7}, 0")
            a(f"buffer_atomic_or v{T+7}, v{FRA}, s[{S_WS}:{S_WS+3}], 0 offen sc0 sc1")
            a.label("L_rw_poll")
            for (x, y) in ((T+5, T+7), (T+7, T+5)):
                a(f"s_sleep {OPT['ppsl']}")
                a(f"v_mov_b32 v{x}, 0")
                a(f"buffer_atomic_or v{x}, v{FRA}, s[{S_WS}:{S_WS+3}], 0 offen sc0 sc1")
                a("s_waitcnt vmcnt(1)")
                a(f"v_cmp_ne_u32 vcc, v{y}, v{TAGR}")
                a(f"s_add_u32 s{S_CNT}, s{S_CNT}, 1")
                a("s_nop 3")
                a("s_cbranch_vccz L_rw_done")
            a(f"s_cmp_lt_u32 s{S_CNT}, {SPIN_MAX}")
            a("s_cbranch_scc1 L_rw_poll")
            a.label("L_rw_done")
            a("s_mov_b64 exec, -1")
        else:
            spin(a, "L_rw", FRA, TAGR, False, OPT["gsl"], OPT["apoll"])
        a(f"v_mov_b32 v{T+1}, 1")
        a(f"ds_write_b32 v{T}, v{T+1} offset:4")
        a("s_branch L_lred")
        a.label("L_lgo")
        mb_wait(a, "L_go", T, 4, 1)
        a.label("L_lred")
    else:
        mb_wait(a, "L_mb", T, 0, 4)
        spin(a, "L_rw", FRA, TAGR, False, OPT["gsl"], OPT["apoll"])
    a.stamp(2)
    def member_off(k):
        a(f"s_add_u32 s{S_T0}, s{S_SPLIT}, {k}")
        a(f"s_and_b32 s{S_T0}, s{S_T0}, 7")
        a(f"s_mul_i32 s{S_T0}, s{S_T0}, {SLICE}")
        a(f"s_add_u32 s{S_T0}, s{S_T0}, s{S_RD}")
    if OPT["own"]:
        for k in range(1, 8):
            a(f"buffer_load_dwordx4 v[{LD+4*k}:{LD+4*k+3}], v{VL}, s[{S_WS}:{S_WS+3}], s{S_MO+k} offen sc1")
        a(f"ds_read_b128 v[{LD}:{LD+3}], v{T+9}")
        for j in range(8):
            a("s_waitcnt lgkmcnt(0)" if j == 0 else f"s_waitcnt vmcnt({7-j})")
            for d in range(4):
                a(f"v_dot2c_f32_bf16 v{RA+2*d}, s{S_ONE}, v{LD+4*j+d}")
                a(f"v_dot2c_f32_bf16 v{RA+2*d+1}, s{S_ONEH}, v{LD+4*j+d}")
    else:
        for j in range(8):
            a(f"buffer_load_dwordx4 v[{LD+4*j}:{LD+4*j+3}], v{VL}, s[{S_WS}:{S_WS+3}], s{S_RD} offen sc1")
            if j < 7: a(f"s_add_u32 s{S_RD}, s{S_RD}, {SLICE}")
        for j in range(8):
            a(f"s_waitcnt vmcnt({7-j})")
            for d in range(4):
                a(f"v_dot2c_f32_bf16 v{RA+2*d}, s{S_ONE}, v{LD+4*j+d}")
                a(f"v_dot2c_f32_bf16 v{RA+2*d+1}, s{S_ONEH}, v{LD+4*j+d}")
    a("s_nop 2")
    for d in range(4): a(f"v_cvt_pk_bf16_f32 v{LD+d}, v{RA+2*d}, v{RA+2*d+1}")
    a("s_nop 1")
    a(f"v_permlane16_swap_b32 v{LD}, v{LD+2}")
    a(f"v_permlane16_swap_b32 v{LD+1}, v{LD+3}")
    a("s_nop 1")
    a(f"buffer_store_dwordx4 v[{LD}:{LD+3}], v{T+8}, s[{S_OUT}:{S_OUT+3}], s{S_OA} offen{OSC}")
    a.label("L_ldone")
    stamp_out(a, 1)
    a("s_endpgm")

def gen_compute_pro(a):
    a.vm = []; a.nst = 1
    if OPT["cprio"]: a(f"s_setprio {OPT['cprio']}")
    if OPT["cpf"]:
        a("s_getpc_b64 s[98:99]")
        a.label("L_pc")
        a(f"s_lshr_b32 s{S_T0}, s2, 3")
        a(f"s_mul_i32 s{S_T0}, s{S_T0}, 768")
        a(f"v_min_u32 v{T}, 5, v1")
        a(f"v_lshlrev_b32 v{T}, 7, v{T}")
        a(f"v_add_u32 v{T}, s{S_T0}, v{T}")
        a(f"v_min_u32 v{T}, L_fin-L_pc-4, v{T}")
        a(f"s_cmp_lg_u32 s{S_W}, 0")
        a("s_cbranch_scc1 L_nopf")
        a(f"global_load_dword v{T+7}, v{T}, s[98:99]")
        a.label("L_nopf")
    a(f"v_and_b32 v{T}, 31, v1")
    a(f"v_lshrrev_b32 v{T+1}, 5, v1")
    a(f"v_bfe_u32 v{T+2}, v1, 1, 3")
    a(f"v_xor_b32 v{T+2}, v{T+2}, v{T+1}")
    a(f"v_lshlrev_b32 v{T+2}, 4, v{T+2}")
    a(f"v_lshl_add_u32 v{T+2}, v{T}, 7, v{T+2}")
    a(f"v_add_u32 v{AX}, s{S_LW4}, v{T+2}")
    for ks in range(1,4): a(f"v_xor_b32 v{AX+ks}, {32*ks}, v{AX}")
    a(f"v_bfe_u32 v{T}, v1, 2, 2")
    a(f"v_lshl_add_u32 v{T+2}, v{T+1}, 3, v{T}")
    a(f"v_lshlrev_b32 v{T+2}, 8, v{T+2}")
    a(f"v_lshl_add_u32 v{T+2}, v{T}, 6, v{T+2}")
    a(f"v_bfe_u32 v{T+3}, v1, 4, 1")
    a(f"v_lshl_add_u32 v{T+2}, v{T+3}, 5, v{T+2}")
    a(f"v_and_b32 v{T+3}, 1, v1")
    a(f"v_lshl_add_u32 v{T+2}, v{T+3}, 4, v{T+2}")
    a(f"v_bfe_u32 v{T+3}, v1, 1, 1")
    a(f"v_lshl_add_u32 v{T+2}, v{T+3}, 3, v{T+2}")
    a(f"v_add_u32 v{AQ}, 16384, v{T+2}")
    for t in range(1,4): a(f"v_xor_b32 v{AQ+t}, {64*t}, v{AQ}")
    a.stamp()


def gen_compute(a):
    a.vm = []; a.nst = 2 if OPT['stamp'] == 1 else 1
    fill = []
    F = fill.append
    for ks in range(4): F(f"v_add_u32 v{AX+4+ks}, {2*SLOT}, v{AX+ks}")
    for t in range(4): F(f"v_add_u32 v{AQ+4+t}, {2*SLOT}, v{AQ+t}")
    class FA_:
        def __call__(self, s): F(s)
    fa = FA_()
    F("s_waitcnt lgkmcnt(0)")
    fill.pop()
    srd(fa, S_WS, 60, 61, WS_USED)
    srd(fa, S_OUT, 56, 57, 1179648)
    F(f"v_and_b32 v{T}, 31, v1")
    F(f"v_and_b32 v{T+2}, 15, v1")
    F(f"v_xor_b32 v{T+2}, v{T+2}, v{T+1}")
    F(f"v_lshlrev_b32 v{T+2}, 4, v{T+2}")
    F(f"v_lshl_add_u32 v{T+2}, v{T}, 8, v{T+2}")
    F(f"v_add_u32 v{T+9}, s{S_LW8}, v{T+2}")
    if base(KPOS) >= 65536-0: F(f"v_add_u32 v{T+9}, {base(KPOS)}, v{T+9}")
    e_addr_r(fa, T+3, T+4)
    F(f"s_mov_b32 s{S_T1}, {E_BASE}")
    F(("vm", f"buffer_load_dword v{TAGR}, v{T+3}, s[{S_WS}:{S_WS+3}], s{S_T1} offen sc1", "E"))
    rgroup(fa)
    F(f"v_lshrrev_b32 v{T}, 4, v1")
    F(f"v_and_b32 v{T+3}, 15, v1")
    F(f"v_xor_b32 v{T+2}, v{T}, v{T+3}")
    F(f"v_lshlrev_b32 v{T+2}, 4, v{T+2}")
    F(f"v_lshl_add_u32 v{T+2}, v{T+3}, 8, v{T+2}")
    F(f"v_add_u32 v{T+2}, {base(10)}, v{T+2}")
    F(f"v_add_u32 v{AV}, s{S_LW8}, v{T+2}")
    for ks in range(1,4): F(f"v_xor_b32 v{AV+ks}, {64*ks}, v{AV}")
    F(f"v_lshlrev_b32 v{VL}, 4, v1")
    F(f"v_lshlrev_b32 v{T}, 4, v{T+1}")
    F(f"v_bfe_u32 v{T+2}, v1, 4, 1")
    F(f"v_lshl_add_u32 v{T}, v{T+2}, 2, v{T}")
    F(f"v_bfe_u32 v{T+4}, v1, 2, 2")
    F(f"v_add_u32 v{T}, v{T}, v{T+4}")
    F(f"v_mul_u32_u24 v{T}, 288, v{T}")
    F(f"v_and_b32 v{T+4}, 3, v1")
    F(f"v_lshl_add_u32 v{T}, v{T+4}, 3, v{T}")
    F(f"v_add_u32 v{AO}, {base(11)}, v{T}")
    F(f"v_add_u32 v{AO+1}, {base(13)}, v{T}")
    F(f"v_lshlrev_b32 v{T+2}, 10, v{T+2}")
    F(f"v_lshl_add_u32 v{T+2}, v{T+1}, 8, v{T+2}")
    F(f"v_lshl_add_u32 v{T+8}, v{T+3}, 4, v{T+2}")
    F(f"v_mul_u32_u24 v{T+6}, 2304, v{T+3}")
    F(f"v_lshrrev_b32 v{T+2}, 4, v1")
    F(f"v_lshlrev_b32 v{T+2}, 3, v{T+2}")
    F(f"v_add_u32 v{T+2}, 256, v{T+2}")
    F(f"v_add_u32 v{T+6}, v{T+6}, v{T+2}")
    F(f"s_lshl_b32 s{S_T0}, s{S_BR}, 4")
    F(f"s_add_u32 s{S_T0}, s{S_T0}, s{S_B}")
    F(f"s_lshl_b32 s{S_SOP}, s{S_T0}, 16")
    F(f"s_lshl_b32 s{S_T0}, s{S_H}, 11")
    F(f"s_add_u32 s{S_SOP}, s{S_SOP}, s{S_T0}")
    F(f"s_mov_b32 s{S_C}, 0x3e0293ee")
    F(f"s_mov_b32 s{S_CC}, 0x3e0293ee")
    F(f"s_mov_b32 s{S_CC+1}, 0x3e0293ee")
    F(f"s_lshl_b32 s{S_T0}, s{S_RG}, 2")
    F(f"s_add_u32 s{S_T0}, s{S_T0}, s{S_W}")
    F(f"s_lshl_b32 s{S_T0}, s{S_T0}, 4")
    F(f"s_add_u32 s{S_T0}, s{S_T0}, s{S_SPLIT}")
    F(f"s_mul_i32 s{S_PW}, s{S_T0}, {SLICE}")
    F(f"s_add_u32 s{S_PW}, s{S_PW}, {PART_BASE}")
    F(f"s_add_u32 s{S_PW1}, s{S_PW}, {8*SLICE}")
    red_scalars(fa)
    F(f"s_lshl_b32 s{S_T0}, s{S_W}, 10")
    F(f"s_sub_u32 s{S_RD}, s{S_RD}, s{S_T0}")
    fill2 = []
    PM = TAGP
    PMASK = [43, 45, PK+6, PK+7]
    def tags_setup():
        a.wait_vm("E")
        lcg(a, TAGR)
        a(f"v_and_b32 v{T}, 3, v1")
        a(f"v_readlane_b32 s{S_TAG}, v{TAGR}, s{S_SPLIT}")
        a(f"v_lshlrev_b32 v{T}, 1, v{T}")
        a(f"v_sub_u32 v{T}, 32, v{T}")
        a(f"v_mov_b32 v{VTG}, s{S_TAG}")
        a(f"v_alignbit_b32 v{T}, v{VTG}, v{VTG}, v{T}")
        a(f"v_lshlrev_b32 v{T+2}, 1, v{T}")
        a(f"v_and_b32 v{T}, 0x80808080, v{T}")
        a(f"v_and_b32 v{T+2}, 0x80808080, v{T+2}")
        a(f"s_mov_b32 s{S_T0}, 0x010c000c")
        a(f"s_mov_b32 s{S_T1}, 0x030c020c")
        a(f"v_perm_b32 v{PMASK[0]}, v{T}, v{T}, s{S_T0}")
        a(f"v_perm_b32 v{PMASK[1]}, v{T}, v{T}, s{S_T1}")
        a(f"v_perm_b32 v{PMASK[2]}, v{T+2}, v{T+2}, s{S_T0}")
        a(f"v_perm_b32 v{PMASK[3]}, v{T+2}, v{T+2}, s{S_T1}")
        if OPT["ownp"]:
            own_pos(a)
            a(f"s_lshl_b32 s{S_T0}, s{S_W}, 11")
            a(f"s_add_u32 s{S_T0}, s{S_T0}, {OPB}")
            a(f"v_add_u32 v{T+9}, s{S_T0}, v{T+8}")
    def filler(n):
        for _ in range(n):
            if not fill: return
            x = fill.pop(0)
            if isinstance(x, tuple): a.vmop(x[1], x[2])
            else: a(x)

    def rdB(st, ks, buf):
        slot = pos_s1(st)%4; s2 = (slot>>1)*4; off = (slot&1)*SLOT
        a.ds(f"ds_read_b128 a[{FB+4*buf}:{FB+4*buf+3}], v{AX+s2+ks} offset:{off}", f"B{st}_{ks}")
    def rdA(st, ks, t, buf):
        slot = pos_s1(st)%4; s2 = (slot>>1)*4; off = (slot&1)*SLOT + ks*4096
        a.ds(f"ds_read_b64_tr_b16 a[{FA+4*buf}:{FA+4*buf+1}], v{AQ+s2+t} offset:{off}", f"A{st}_{ks}_{t}")
        a.ds(f"ds_read_b64_tr_b16 a[{FA+4*buf+2}:{FA+4*buf+3}], v{AQ+s2+t} offset:{off+1024}", f"A{st}_{ks}_{t}")
    def mm32(st, ks, t, abuf, bbuf):
        a.wait_lg(f"B{st}_{ks}", f"A{st}_{ks}_{t}")
        c = "0" if (st == 0 and ks == 0) else f"v[{ACC+16*t}:{ACC+16*t+15}]"
        a(f"v_mfma_f32_32x32x16_bf16 v[{ACC+16*t}:{ACC+16*t+15}], a[{FA+4*abuf}:{FA+4*abuf+3}], a[{FB+4*bbuf}:{FB+4*bbuf+3}], {c}")
    def rdK(kk):
        koff = base(KPOS) if base(KPOS) < 65536 else 0
        a(f"v_xor_b32 v{T+5}, {32*kk}, v{T+9}")
        a.ds(f"ds_read_b128 a[{KF+4*kk}:{KF+4*kk+3}], v{T+5} offset:{koff}", f"K{kk}")
    a("s_waitcnt lgkmcnt(0)")
    if OPT["tlb"]:
        a(f"s_cmp_lg_u32 s{S_W}, 1")
        a("s_cbranch_scc1 L_notlb")
        kv_soffset(a, S_T2, S_H)
        a(f"s_cmp_eq_u32 s{S_BR}, 0")
        a(f"s_cselect_b32 s98, s38, s48")
        a(f"s_cselect_b32 s99, s39, s49")
        a(f"v_mov_b32 v{T}, s{S_T2}")
        a(f"global_load_dword v{T+7}, v{T}, s[98:99]")
        a(f"s_cmp_eq_u32 s{S_BR}, 0")
        a(f"s_cselect_b32 s98, s40, s50")
        a(f"s_cselect_b32 s99, s41, s51")
        a(f"global_load_dword v{T+7}, v{T}, s[98:99]")
        a(f"s_cselect_b32 s98, s44, s54")
        a(f"s_cselect_b32 s99, s45, s55")
        a(f"s_mul_i32 s{S_T0}, s{S_SPLIT}, 589824")
        a(f"v_and_b32 v{T}, 1, v1")
        a(f"v_mul_u32_u24 v{T}, 589820, v{T}")
        a(f"v_add_u32 v{T}, s{S_T0}, v{T}")
        a(f"global_load_dword v{T+7}, v{T}, s[98:99]")
        a(f"s_mul_i32 s{S_T0}, s{S_RB}, {128*2304}")
        a(f"v_mov_b32 v{T}, s{S_T0}")
        a(f"global_load_dword v{T+7}, v{T}, s[56:57]")
        a(f"v_and_b32 v{T}, 7, v1")
        a(f"v_lshlrev_b32 v{T}, 21, v{T}")
        a(f"v_add_u32 v{T}, {(2<<20)-4}, v{T}")
        a(f"global_load_dword v{T+7}, v{T}, s[60:61] sc1")
        a.label("L_notlb")
    a("s_barrier")
    a.stamp(2)
    rdB(0,0,0)
    for t in range(4): rdA(0,0,t,t)
    for st in range(8):
        for ks in range(3):
            for t in range(4):
                mm32(st, ks, t, t, ks&1)
                if t == 0: rdB(st, ks+1, (ks+1)&1)
                rdA(st, ks+1, t, t)
                if st == KPOS and ks < 2: rdK(4*ks+t)
                else: filler(OPT["nfill"] if st else 3)
            if st == 7 and ks == 1: tags_setup()
        mm32(st, 3, 0, 0, 1)
        mm32(st, 3, 1, 1, 1)
        a.wait_lg0()
        a("s_barrier")
        a.stamp()
        if st < 7:
            rdB(st+1, 0, 0); rdA(st+1, 0, 0, 0); rdA(st+1, 0, 1, 1)
            mm32(st, 3, 2, 2, 1); rdA(st+1, 0, 2, 2)
            mm32(st, 3, 3, 3, 1); rdA(st+1, 0, 3, 3)
        else:
            rdB(8, 0, 0); rdA(8, 0, 0, 0); rdA(8, 1, 0, 1); rdB(8, 2, 2)
            mm32(st, 3, 2, 2, 1); rdA(8, 2, 0, 2); rdB(8, 3, 3)
            mm32(st, 3, 3, 3, 1); rdB(8, 1, 1); rdA(8, 3, 0, 3)
    assert not fill, len(fill)
    def qcvt(t):
        for r in range(8): a(f"v_cvt_pk_bf16_f32 v{QB+8*t+r}, v{ACC+16*t+2*r}, v{ACC+16*t+2*r+1}")
    for t in range(4):
        for ks in range(4):
            mm32(8, ks, t, ks, ks)
            if t < 3: rdA(8, ks, t+1, ks)
            if t == 3 and ks == 1:
                a.wait_lg0()
                if OPT["b9pos"] == 0:
                    a("s_barrier")
                    a.stamp(2)
                a("s_nop 3")
                if OPT["b9pos"]: a("s_nop 0")
            if ks == 2 and t > 0: qcvt(t-1)
    for kk in range(8):
        if kk == 6: a("s_nop 0")
        c = "0" if kk == 0 else f"v[{SA}:{SA+15}]"
        a(f"v_mfma_f32_32x32x16_bf16 v[{SA}:{SA+15}], a[{KF+4*kk}:{KF+4*kk+3}], v[{QB+4*kk}:{QB+4*kk+3}], {c}")
        if kk == 5:
            a("s_nop 5")
            qcvt(3)
    if OPT["b9pos"] == 1:
        a("s_barrier"); a.stamp(2)
    a("s_nop 11")
    M=T+4; M2=T+5
    a(f"v_max3_f32 v{M}, v{SA}, v{SA+1}, v{SA+2}")
    a(f"v_max3_f32 v{M2}, v{SA+3}, v{SA+4}, v{SA+5}")
    a(f"v_max3_f32 v{M}, v{M}, v{SA+6}, v{SA+7}")
    a(f"v_max3_f32 v{M2}, v{M2}, v{SA+8}, v{SA+9}")
    a(f"v_max3_f32 v{M}, v{M}, v{SA+10}, v{SA+11}")
    a(f"v_max3_f32 v{M2}, v{M2}, v{SA+12}, v{SA+13}")
    a(f"v_max3_f32 v{M}, v{M}, v{SA+14}, v{SA+15}")
    a(f"v_max_f32 v{M}, v{M}, v{M2}")
    a(f"v_mov_b32 v{M2}, v{M}")
    a("s_nop 1")
    a(f"v_permlane32_swap_b32 v{M}, v{M2}")
    a("s_nop 1")
    a(f"v_max_f32 v{M}, v{M}, v{M2}")
    a(f"v_mul_f32 v{M}, s{S_C}, v{M}")
    if OPT["pksm"]:
        a(f"v_mov_b32 v{M2}, v{M}")
        a(f"s_mov_b32 s{S_C+1}, s{S_C}") if False else None
        for r in range(0,16,2): a(f"v_pk_fma_f32 v[{SA+r}:{SA+r+1}], v[{SA+r}:{SA+r+1}], s[{S_CC}:{S_CC+1}], v[{M}:{M2}] neg_lo:[0,0,1] neg_hi:[0,0,1]")
    else:
        for r in range(16): a(f"v_fma_f32 v{SA+r}, v{SA+r}, s{S_C}, -v{M}")
    for r in range(16): a(f"v_exp_f32 v{SA+r}, v{SA+r}")
    if OPT["b9pos"] == 2:
        a("s_barrier"); a.stamp(2)
    a("s_nop 0")
    if OPT["pksm"]:
        a(f"v_pk_add_f32 v[{M}:{M2}], v[{SA}:{SA+1}], v[{SA+2}:{SA+3}]")
        a(f"v_pk_add_f32 v[{QB}:{QB+1}], v[{SA+4}:{SA+5}], v[{SA+6}:{SA+7}]")
        a(f"v_pk_add_f32 v[{M}:{M2}], v[{M}:{M2}], v[{SA+8}:{SA+9}]")
        a(f"v_pk_add_f32 v[{QB}:{QB+1}], v[{QB}:{QB+1}], v[{SA+10}:{SA+11}]")
        a(f"v_pk_add_f32 v[{M}:{M2}], v[{M}:{M2}], v[{SA+12}:{SA+13}]")
        a(f"v_pk_add_f32 v[{QB}:{QB+1}], v[{QB}:{QB+1}], v[{SA+14}:{SA+15}]")
        a(f"v_pk_add_f32 v[{M}:{M2}], v[{M}:{M2}], v[{QB}:{QB+1}]")
    else:
        a(f"v_add_f32 v{M}, v{SA}, v{SA+1}")
        a(f"v_add_f32 v{M2}, v{SA+2}, v{SA+3}")
        for r in range(4,16,2):
            a(f"v_add_f32 v{M}, v{M}, v{SA+r}")
            a(f"v_add_f32 v{M2}, v{M2}, v{SA+r+1}")
    a(f"v_add_f32 v{M}, v{M}, v{M2}")
    a(f"v_mov_b32 v{M2}, v{M}")
    a("s_nop 1")
    a(f"v_permlane32_swap_b32 v{M}, v{M2}")
    a("s_nop 1")
    a(f"v_add_f32 v{M}, v{M}, v{M2}")
    a(f"v_rcp_f32 v{M}, v{M}")
    a("s_nop 0")
    if OPT["pksm"]:
        a(f"v_mov_b32 v{M2}, v{M}")
        for r in range(0,16,2): a(f"v_pk_mul_f32 v[{SA+r}:{SA+r+1}], v[{SA+r}:{SA+r+1}], v[{M}:{M2}]")
    else:
        for r in range(16): a(f"v_mul_f32 v{SA+r}, v{SA+r}, v{M}")
    PX=QB; PY=QB+4
    for k,r in enumerate([0,2,8,10]): a(f"v_cvt_pk_bf16_f32 v{PX+k}, v{SA+r}, v{SA+r+1}")
    for k,r in enumerate([4,6,12,14]): a(f"v_cvt_pk_bf16_f32 v{PY+k}, v{SA+r}, v{SA+r+1}")
    if OPT["ownp"]:
        a(f"ds_write_b128 v{T+9}, v[{PX}:{PX+3}]")
        a(f"ds_write_b128 v{T+9}, v[{PY}:{PY+3}] offset:512")
        for k in range(8): a(f"v_or_b32 v{SA+k}, v{PX+k}, v{PMASK[k&3]}")
        PX = SA; PY = SA+4
    else:
        for k in range(8): a(f"v_or_b32 v{PX+k}, v{PX+k}, v{PMASK[k&3]}")
    a.vmop(f"buffer_store_dwordx4 v[{PX}:{PX+3}], v{T+8}, s[{S_WS}:{S_WS+3}], s{S_SOP} offen sc1", "Pst")
    a.vmop(f"buffer_store_dwordx4 v[{PY}:{PY+3}], v{T+8}, s[{S_WS}:{S_WS+3}], s{S_SOP} offen offset:512 sc1", "Pst")
    a(f"v_mov_b32 v{T+9}, 0")

    def flag_store(tagname, soff, off=0):
        a("s_mov_b64 exec, 1")
        a.vmop(f"buffer_store_dword v{VTG}, v{T+9}, s[{S_WS}:{S_WS+3}], s{soff} offen offset:{off} sc1", tagname)
        a("s_mov_b64 exec, -1")
    def mb_add(tp):
        a("s_mov_b64 exec, 1")
        a.ds(f"ds_add_u32 v{T+4}, v{T+2} offset:{4*tp}", "mb")
        a("s_mov_b64 exec, -1")
    def pkreg(u, t): return (STASH+12*t+4*u) if u < 3 else (PK+4*(t&1))
    def outreg(it, t): return RB + 12*t + 4*it
    dsq = []
    for f in range(144):
        g, ks = divmod(f, 4); u, t = divmod(g, 9); sl = BF + 4*(f % NBF)
        if t == 0:
            for st in range(2):
                pre = None; ad = AV+ks
                if u&1:
                    ad = T+5
                    if st == 0: pre = f"v_add_u32 v{T+5}, {(base(12)-base(10)) & 0xffffffff}, v{AV+ks}"
                dsq.append([f-4 if u else -1, u, f"ds_read_b128 a[{VF+16*st+4*ks}:{VF+16*st+4*ks+3}], v{ad} offset:{st*4096}", f"V{u}_{ks}", pre, f])
        for h in range(2):
            dsq.append([f-NBF, u, f"ds_read_b64_tr_b16 a[{sl+2*h}:{sl+2*h+1}], v{AO+(u&1)} offset:{ks*9216+h*2304+t*32}", f"W{f}", None, f])
    state = dict(pairs=-1, head=0)
    def ds_pop(n=1):
        k = 0
        while k < n:
            cand = [e for e in dsq if e[0] <= state["pairs"] and e[1] <= state["head"]]
            if not cand: break
            e = min(cand, key=lambda e: e[5]); dsq.remove(e)
            if e[4]: a(e[4])
            a.ds(e[2], e[3]); k += 1
        return k
    vq = []
    nlab = [0]
    def v_pop(n):
        for _ in range(n):
            if not vq: return
            x = vq.pop(0)
            if isinstance(x, tuple):
                if OPT["own"]:
                    k = nlab[0]; nlab[0] += 1
                    a(f"s_cbranch_{'vccnz' if x[2] == 0 else 'scc1'} L_ow{k}")
                    a.vmop(x[0], x[1])
                    a.label(f"L_ox{k}")
                    a.ool += [f"L_ow{k}:", "    " + x[3], f"    s_branch L_ox{k}"]
                else: a.vmop(x[0], x[1])
            else: a(x)
    def q_cvt(g):
        u, t = divmod(g, 9)
        w = VW+8*(g&1); p = pkreg(u, t)
        for k in range(4): vq.append(f"v_cvt_pk_bf16_f32 v{p+k}, v{w+2*k}, v{w+2*k+1}")
    def q_pair(tp):
        for it in range(2):
            so = S_PW if it == 0 else S_PW1
            d = RB + 12*(2*tp+it) + 8
            for h in range(2):
                o = outreg(it, 2*tp+h)
                vq.append(f"v_cvt_pk_bf16_f32 v{d+2*h}, v{o}, v{o+1}")
                vq.append(f"v_cvt_pk_bf16_f32 v{d+2*h+1}, v{o+2}, v{o+3}")
            vq.append((f"buffer_store_dwordx4 v[{d}:{d+3}], v{VL}, s[{S_WS}:{S_WS+3}], s{so} offen offset:{1024*tp} sc1", f"part{tp}", it, f"ds_write_b128 v{FPA}, v[{d}:{d+3}] offset:{1024*tp}"))
    def q_t8():
        for it in range(2):
            so = S_PW if it == 0 else S_PW1
            d = RB + 12*8 + 8 + 2*it
            o = outreg(it, 8)
            vq.append(f"v_cvt_pk_bf16_f32 v{d}, v{o}, v{o+1}")
            vq.append(f"v_cvt_pk_bf16_f32 v{d+1}, v{o+2}, v{o+3}")
            vq.append((f"buffer_store_dwordx2 v[{d}:{d+1}], v{T+8}, s[{S_WS}:{S_WS+3}], s{so} offen sc1", "part3", it, f"ds_write_b64 v{TAGP}, v[{d}:{d+1}]"))
    def vw(g, ks, st):
        f = 4*g+ks; sl = BF + 4*(f % NBF)
        w = VW+8*(g&1)+4*st
        c = "0" if ks == 0 else f"v[{w}:{w+3}]"
        a(f"v_mfma_f32_16x16x32_bf16 v[{w}:{w+3}], a[{VF+16*st+4*ks}:{VF+16*st+4*ks+3}], a[{sl}:{sl+3}], {c}")
    def pv1(u, t, it):
        p = pkreg(u, t); o = outreg(it, t)
        c = "0" if u == 0 else f"v[{o}:{o+3}]"
        a(f"v_mfma_f32_16x16x32_bf16 v[{o}:{o+3}], v[{p}:{p+3}], a[{PF+8*u+4*it}:{PF+8*u+4*it+3}], {c}")
    a("s_barrier")
    a.stamp(2)
    a.lq = []
    ds_pop(8+2*NBF)
    a(f"v_lshlrev_b32 v{T+8}, 3, v1")
    a(f"v_add_u32 v{T+8}, 4096, v{T+8}")
    a(f"v_mov_b32 v{T+4}, {MBOX}")
    a(f"v_mov_b32 v{T+2}, 1")
    a(f"s_lshl_b32 s{S_T0}, s{S_RG}, 2")
    a(f"s_add_u32 s{S_T0}, s{S_T0}, s{S_W}")
    a(f"s_lshl_b32 s{S_T0}, s{S_T0}, 4")
    a(f"s_add_u32 s{S_T0}, s{S_T0}, s{S_SPLIT}")
    a(f"s_lshl_b32 s{S_T0}, s{S_T0}, 7")
    a(f"s_add_u32 s{S_T0}, s{S_T0}, {FR_BASE}")
    a(f"v_lshl_add_u32 v{T+3}, v1, 10, s{S_T0}")
    a(f"v_add_u32 v{FPA}, {base(15)}, v{VL}")
    a(f"v_add_u32 v{TAGP}, {base(15)}, v{T+8}")
    a(f"s_cmp_eq_u32 s{S_W}, s{S_HQ}")
    a(f"s_cselect_b32 s{S_OWN}, s{S_KQ}, 7")
    a(f"s_lshl_b32 s{S_SOK}, s{S_W}, 11")
    a(f"s_add_u32 s{S_SOK}, s{S_SOK}, {OPB}")
    a(f"v_add_u32 v{T+7}, s{S_LW8}, v{VL}")
    a(f"v_add_u32 v{T+7}, {base(14)}, v{T+7}")
    MKS = OPT["mks"]
    for g in range(36):
        u, t = divmod(g, 9)
        haspv = (u == 3 and t > 0)
        for ks in range(4):
            f = 4*g+ks
            assert not any(e[5] <= f for e in dsq), (f, dsq[0])
            a.wait_lg(f"W{f}", f"V{u}_{ks}")
            extra_ds = 2 if (t == 0 or (t == 8 and ks > MKS)) else 1
            vw(g, ks, 0)
            ds_pop(extra_ds)
            if not haspv and ks >= 2: v_pop(1)
            vw(g, ks, 1)
            state["pairs"] = f
            if u < 3 and t == 8 and ks == MKS:
                assert not any(e[1] <= u for e in dsq)
                a.wait_lg0()
                a("s_barrier")
                a.stamp(2)
                state["head"] = u+1
                ds_pop(6)
            else:
                ds_pop(extra_ds)
            if not haspv and ks >= 2: v_pop(1)
            if g > 0 and ks == 1 and not haspv: q_cvt(g-1)
            if g == 28 and ks == 0 and OPT["own"]:
                a(f"s_cmp_eq_u32 s{S_OWN}, 0")
                a("s_cselect_b64 vcc, -1, 0")
                a(f"s_cmp_eq_u32 s{S_OWN}, 1")
            if u == 3 and t == 0:
                if OPT["ownp"]:
                    a(f"s_add_u32 s{S_T1}, s{S_LW8}, {base(14) + 2048*ks}")
                    a(f"s_cmp_eq_u32 s{S_OU}, {ks}")
                    a(f"s_cselect_b32 s{S_T1}, s{S_SOK}, s{S_T1}")
                    a(f"v_add_u32 v{T+7}, s{S_T1}, v{VL}")
                for q in (2*ks, 2*ks+1):
                    off = 1024*(q&1) if OPT["ownp"] else 1024*q
                    a.ds(f"ds_read_b128 a[{PF+4*q}:{PF+4*q+3}], v{T+7} offset:{off}", f"P{q>>1}")
            if haspv:
                if t == 1: a.wait_lg(f"P{ks}")
                if ks == 1 and t in (3, 5, 7): q_pair((t-3)>>1)
                pv1(ks, t-1, 0); v_pop(2)
                if ks == 0: q_cvt(g-1)
                pv1(ks, t-1, 1)
                if ks < 3 or True: v_pop(2)
        assert not vq, (g, vq)
        if u < 3 and t == [OPT['r0pos'], OPT['r1pos'], OPT['rpos']][u]:
            a.wait_lg(f"V{u}_3")
            a("s_barrier")
    pv1(0, 8, 0); pv1(0, 8, 1); pv1(1, 8, 0); pv1(1, 8, 1); pv1(2, 8, 0)
    q_cvt(35); v_pop(2)
    pv1(2, 8, 1); v_pop(2)
    q_pair(3)
    v_pop(2)
    pv1(3, 8, 0); v_pop(2); pv1(3, 8, 1); v_pop(100)
    a("s_nop 0")
    q_t8(); v_pop(100)
    a.stamp(2)
    if OPT["two"]:
        a.wait_vm("part2")
        a("s_mov_b64 exec, 3")
        a(f"buffer_store_dword v{VTG}, v{T+3}, s[{S_WS}:{S_WS+3}], 0 offen sc1")
        a("s_mov_b64 exec, 1")
        a(f"ds_add_u32 v{T+4}, v{T+2}")
        a(f"s_mov_b32 s{S_T0}, {256<<10}")
        a("s_waitcnt vmcnt(1)")
        a("s_mov_b64 exec, 3")
        a(f"buffer_store_dword v{VTG}, v{T+3}, s[{S_WS}:{S_WS+3}], s{S_T0} offen sc1")
        a("s_mov_b64 exec, 1")
        a(f"ds_add_u32 v{T+4}, v{T+2} offset:8")
        a("s_mov_b64 exec, -1")
    else:
        a("s_waitcnt vmcnt(0)")
        a("s_mov_b64 exec, 3")
        a(f"buffer_store_dword v{VTG}, v{T+3}, s[{S_WS}:{S_WS+3}], 0 offen sc1")
        a("s_mov_b64 exec, 1")
        a(f"ds_add_u32 v{T+4}, v{T+2}")
        a("s_mov_b64 exec, -1")
    a.stamp(2)
    a(f"s_cmp_lg_u32 s{S_W}, 0")
    a("s_cbranch_scc1 L_cdone")
    LD=RB; RA=RB+32
    for r in range(4): a(f"v_mov_b32 v{RA+r}, 0")
    if OPT["own"]: member_offs(a)
    if OPT["two"]: mb_wait(a, "L_cgo", T+4, 12, 1)
    elif OPT["onep"]: mb_wait(a, "L_cgo", T+4, 4, 1)
    else: spin(a, "L_gw", FPA, TAGR, False, OPT["gsl"], OPT["apoll"])
    a.stamp()
    if OPT["own"]:
        for k in range(1, 8):
            a(f"buffer_load_dwordx2 v[{LD+2*k}:{LD+2*k+1}], v{T+8}, s[{S_WS}:{S_WS+3}], s{S_MO+k} offen sc1")
        a(f"ds_read_b64 v[{LD}:{LD+1}], v{TAGP}")
    else:
        for j in range(8):
            a(f"buffer_load_dwordx2 v[{LD+2*j}:{LD+2*j+1}], v{T+8}, s[{S_WS}:{S_WS+3}], s{S_RD} offen sc1")
            if j < 7: a(f"s_add_u32 s{S_RD}, s{S_RD}, {SLICE}")
    for j in range(8):
        a("s_waitcnt lgkmcnt(0)" if (j == 0 and OPT["own"]) else f"s_waitcnt vmcnt({7-j})")
        for d in range(2):
            a(f"v_dot2c_f32_bf16 v{RA+2*d}, s{S_ONE}, v{LD+2*j+d}")
            a(f"v_dot2c_f32_bf16 v{RA+2*d+1}, s{S_ONEH}, v{LD+2*j+d}")
    a("s_nop 2")
    a(f"v_cvt_pk_bf16_f32 v{LD}, v{RA}, v{RA+1}")
    a(f"v_cvt_pk_bf16_f32 v{LD+1}, v{RA+2}, v{RA+3}")
    a(f"buffer_store_dwordx2 v[{LD}:{LD+1}], v{T+6}, s[{S_OUT}:{S_OUT+3}], s{S_OA} offen{OSC}")
    a(f"s_lshl_b32 s{S_T2}, s2, 2")
    a(f"s_add_u32 s{S_T2}, s{S_T2}, {E_BASE}")
    flag_store("Eup", S_T2)
    a.label("L_cdone")
    stamp_out(a, 0)

def gen(a):
    kname = NAME + "_kernel"
    a.raw(f".globl {kname}"); a.raw(".p2align 8"); a.raw(f".type {kname},@function"); a.label(kname)
    a("s_load_dwordx16 s[36:51], s[0:1], 0")
    a("s_load_dwordx8 s[52:59], s[0:1], 64")
    a("s_load_dwordx2 s[60:61], s[0:1], 96")
    a("v_lshrrev_b32 v1, 6, v0")
    a("s_cmp_ge_u32 s2, 256")
    a("s_cbranch_scc1 L_end")
    a(f"v_readfirstlane_b32 s{S_T1}, v1")
    if OPT["stamp"]:
        a(f"v_mov_b32 v{V_STAMP}, 0")
        a.stamp(2)
    a(f"s_and_b32 s{S_T0}, s2, 7")
    a("v_and_b32 v1, 63, v0")
    a(f"s_lshr_b32 s{S_BR}, s{S_T0}, 2")
    a(f"s_and_b32 s{S_HQ}, s{S_T0}, 3")
    a(f"s_bfe_u32 s{S_RB}, s2, 0x20003")
    a(f"s_lshr_b32 s{S_HL}, s2, 5")
    a(f"s_and_b32 s{S_W}, s{S_T1}, 3")
    a(f"s_lshl_b32 s{S_H}, s{S_HQ}, 3")
    a(f"s_add_u32 s{S_H}, s{S_H}, s{S_HL}")
    a(f"s_lshl_b32 s{S_B}, s{S_RB}, 2")
    a(f"s_add_u32 s{S_B}, s{S_B}, s{S_W}")
    a(f"s_and_b32 s{S_CP}, s{S_HL}, 3")
    a(f"s_lshr_b32 s{S_KQ}, s{S_HL}, 2")
    a(f"s_lshl_b32 s{S_SPLIT}, s{S_HQ}, 1")
    a(f"s_add_u32 s{S_SPLIT}, s{S_SPLIT}, s{S_KQ}")
    a(f"s_lshl_b32 s{S_LW4}, s{S_W}, 12")
    a(f"s_lshl_b32 s{S_LW8}, s{S_W}, 13")
    a(f"s_cmp_ge_u32 s{S_T1}, 4")
    a("s_cbranch_scc1 L_loader")
    gen_compute_pro(a)
    a("s_branch L_compute")
    a.label("L_loader")
    gen_loader(a)
    a.raw(".p2align 6")
    a.label("L_compute")
    gen_compute(a)
    a.label("L_end")
    a("s_endpgm")
    for l in a.ool: a.raw(l)
    a.label('L_fin')

def main():
    a = Asm()
    hdr = open("cdna_kernels/%s.s.ref" % NAME).read().split("; Override")[0]
    a.raw(hdr.rstrip())
    a.raw(f"; @launch grid=(256,1,1) block=(512,1,1) lds={LDS_BYTES}")
    a.raw('.amdgcn_target "amdgcn-amd-amdhsa--gfx950"')
    a.raw(".text")
    gen(a)
    a.raw('.section .rodata,"a"')
    a.raw(".p2align 6")
    a.raw(f".amdhsa_kernel {NAME}_kernel")
    a.raw(f"  .amdhsa_next_free_vgpr {NARCH+NACC}")
    a.raw(f"  .amdhsa_next_free_sgpr 102")
    a.raw(f"  .amdhsa_accum_offset {NARCH}")
    a.raw("  .amdhsa_group_segment_fixed_size 0")
    a.raw("  .amdhsa_kernarg_size 104")
    a.raw("  .amdhsa_user_sgpr_count 2")
    a.raw("  .amdhsa_user_sgpr_kernarg_segment_ptr 1")
    a.raw("  .amdhsa_system_sgpr_workgroup_id_x 1")
    a.raw(".end_amdhsa_kernel")
    open(sys.argv[1], "w").write(a.text())
    if os.environ.get("SHOW"): print(schedule())
main()
```

```python
import sys, os
NAME = "concat_heads__gqa_block_cached__mha_block_cached__near_ridge"
OPT = dict(stamp=0, rot1=2, rot2=2, ntx=0, ntq=0, ntk=0, ntv=0, nto=0, prio=0, rpos=4, kpos=3, nbf=6,
           nodma=0, nomfma=0, nolds=0, cyc=0, epos=1, cpf=1, first=0, mbox=1, gsl=4, tlb=0, midw=0, cprio=0, w2=0, apoll=1, nfill=2, mks=0, pksm=1, onep=1, pearly=0, lprio2=1, r0pos=3, r1pos=4, two=0, osc=0, pp=0, ppsl=8, own=1, nost=0, nospin=0, dbgl=0, ownp=1, b9pos=3, wsoff=0)
for arg in sys.argv[2:]:
    k, v = arg.split("="); assert k in OPT, k; OPT[k] = int(v)

class Asm:
    def __init__(self):
        self.L=[]; self.vm=[]; self.nst=0; self.lq=[]; self.ool=[]
    def __call__(self, s):
        if OPT["nomfma"] and s.startswith("v_mfma"): return
        if OPT["nolds"] and s.startswith("ds_read"): return
        if OPT["nodma"] and s.endswith(" lds"): return
        if OPT["nost"] and s.startswith("buffer_store_dwordx") and ("s49 " in s or "s50 " in s): return
        self.L.append("    "+s)
    def label(self, n): self.L.append(n+":")
    def raw(self, s): self.L.append(s)
    def text(self): return "\n".join(self.L)+"\n"
    def vmop(self, s, tag): self(s); self.vm.append(tag)
    def wait_vm(self, *tags):
        idx = max((i for i,t in enumerate(self.vm) if t in tags), default=-1)
        assert idx >= 0, tags
        n = len(self.vm)-1-idx
        assert n <= 63
        self(f"s_waitcnt vmcnt({n})")
    def ds(self, s, tag): self(s); self.lq.append(tag)
    def wait_lg(self, *tags):
        idx = max((i for i,t in enumerate(self.lq) if t in tags), default=-1)
        if idx < 0: return
        n = min(15, len(self.lq)-1-idx)
        self(f"s_waitcnt lgkmcnt({n})")
        self.lq = self.lq[len(self.lq)-n:] if n else []
    def wait_lg0(self):
        self("s_waitcnt lgkmcnt(0)"); self.lq = []
    def stamp(self, lvl=1):
        if not OPT["stamp"]: return
        if OPT["stamp"] == 2 and lvl < 2: return
        self.lq = []
        self("s_memtime s[96:97]" if OPT["cyc"] else "s_memrealtime s[96:97]")
        self("s_waitcnt lgkmcnt(0)")
        self(f"v_writelane_b32 v{V_STAMP}, s96, {self.nst}")
        self.nst += 1

SLOT = 36864
MBOX = 4*SLOT
OPB = 4*SLOT + 256
LDS_BYTES = 4*SLOT + 256 + 8192
KPOS = OPT["kpos"]
def pos_s1(t): return t if t < KPOS else t+1
def base(pos): return (pos % 4)*SLOT
P_BASE = 0
SLICE = 4608
PART_BASE = 2<<20
E_BASE = 15<<20
FP_BASE = E_BASE + 4096
FR_BASE = 14<<20
STAMP_BASE = 13<<20
STAMP_BASE = 16<<20
WS_USED = 17<<20
LCG_A = 1664525; LCG_C = 1013904223
SPIN_MAX = 1<<15

S_X=8; S_WQ=12; S_K=16; S_WS=20; S_V=24; S_WO=28; S_OUT=32
S_W=62; S_BR=63; S_HQ=64; S_RB=65; S_HL=66; S_H=67; S_B=68; S_SPLIT=69
S_T0=70; S_T1=71; S_T2=72; S_T3=73
S_SOX=74; S_SOQ=75; S_SOK=76; S_C=77; S_SOP=78; S_LWO=79; S_CP=80; S_KQ=81; S_LW4=82; S_LW8=83
S_SOV=[84,85,86,87]; S_SOW=[88,89,90,91]; S_SPU=[92,93,94,95]
S_TAG=3; S_CNT=4; S_CH=5; S_RG=6; S_PG=7
S_CC=52
S_OWN=54
S_TJ=36
S_FR=44; S_RD=45; S_OA=46; S_ONE=47; S_ONEH=48; S_PW=49; S_PW1=50
AX=2; AQ=10; VW=2; PK=18; T=26; AV=36; AO=40; VL=42; TAGP=43; TAGR=44; FPA=45; VTG=46; V_STAMP=47
RB=48
ACC=RB; QB=RB+64; SA=RB+96
STASH=RB+12
NARCH=168
VX=2; VQ=6; VK=10; VO=14; FRA=45
NBF=OPT["nbf"]
FA=0; FB=16; KF=32; PF=0; BF=32; VF=32+4*NBF; NACC=VF+32

OSC = ["", " sc1", " nt", " sc0 sc1"][OPT["osc"]]
def nt(k): return " nt" if OPT[k] else ""

def srd(a, b, lo, hi, nrec):
    if lo == 60 and OPT["wsoff"]:
        a(f"s_add_u32 s{b}, s{lo}, {OPT['wsoff'] << 20}")
        a(f"s_addc_u32 s{b+1}, s{hi}, 0")
        a(f"s_and_b32 s{b+1}, s{b+1}, 0xffff")
    else:
        a(f"s_mov_b32 s{b}, s{lo}")
        a(f"s_and_b32 s{b+1}, s{hi}, 0xffff")
    a(f"s_mov_b32 s{b+2}, {nrec}")
    a(f"s_mov_b32 s{b+3}, 0x20000")

def kv_soffset(a, dst, head_s):
    a(f"s_lshl_b32 s{S_T0}, s{S_B}, 4")
    a(f"s_lshr_b32 s{S_T1}, s{head_s}, 1")
    a(f"s_add_u32 s{S_T0}, s{S_T0}, s{S_T1}")
    a(f"s_lshl_b32 s{S_T1}, s{S_B}, 5")
    a(f"s_add_u32 s{S_T1}, s{S_T1}, s{head_s}")
    a(f"s_cmp_eq_u32 s{S_BR}, 0")
    a(f"s_cselect_b32 s{dst}, s{S_T0}, s{S_T1}")
    a(f"s_lshl_b32 s{dst}, s{dst}, 13")

ORD2 = {0: [[0,1,2,3]]*4, 1: [[0,1,2,3],[1,2,3,0],[2,3,0,1],[3,0,1,2]],
        2: [[0,1,2,3],[1,0,2,3],[0,2,1,3],[0,1,3,2]],
        3: [[0,1,2,3],[1,0,3,2],[0,1,2,3],[1,0,3,2]],
        4: [[0,2,1,3],[1,0,2,3],[0,1,3,2],[1,3,0,2]]}[OPT["rot2"]]
S_OU = 101
def own_pos(a):
    tab = sum(ORD2[j].index(c) << (2*(4*j+c)) for j in range(4) for c in range(4))
    a(f"s_add_u32 s{S_T2}, s{S_RB}, s{S_CP}")
    a(f"s_and_b32 s{S_T2}, s{S_T2}, 3")
    a(f"s_lshl_b32 s{S_T2}, s{S_T2}, 2")
    a(f"s_add_u32 s{S_T2}, s{S_T2}, s{S_CP}")
    a(f"s_lshl_b32 s{S_T2}, s{S_T2}, 1")
    a(f"s_lshr_b32 s{S_OU}, {tab}, s{S_T2}")
    a(f"s_and_b32 s{S_OU}, s{S_OU}, 3")

def head_u(a, u):
    tab = sum(ORD2[j][u] << (2*j) for j in range(4))
    a(f"s_lshl_b32 s{S_T3}, s{S_SPLIT}, 2")
    if OPT["rot2"]:
        a(f"s_add_u32 s{S_T2}, s{S_RB}, s{S_CP}")
        a(f"s_and_b32 s{S_T2}, s{S_T2}, 3")
        a(f"s_lshl_b32 s{S_T2}, s{S_T2}, 1")
        a(f"s_lshr_b32 s{S_T2}, {tab}, s{S_T2}")
        a(f"s_and_b32 s{S_T2}, s{S_T2}, 3")
        a(f"s_add_u32 s{S_T3}, s{S_T3}, s{S_T2}")
    elif u: a(f"s_add_u32 s{S_T3}, s{S_T3}, {u}")

def rgroup(a):
    a(f"s_lshl_b32 s{S_RG}, s{S_BR}, 2")
    a(f"s_add_u32 s{S_RG}, s{S_RG}, s{S_RB}")
    a(f"s_lshl_b32 s{S_RG}, s{S_RG}, 2")
    a(f"s_add_u32 s{S_RG}, s{S_RG}, s{S_CP}")

def e_addr_r(a, dst, t):
    a(f"s_and_b32 s{S_T0}, s2, 0x7c")
    a(f"v_bfe_u32 v{dst}, v1, 1, 2")
    a(f"v_and_b32 v{t}, 1, v1")
    a(f"v_lshl_add_u32 v{dst}, v{t}, 7, v{dst}")
    a(f"v_add_u32 v{dst}, s{S_T0}, v{dst}")
    a(f"v_lshlrev_b32 v{dst}, 2, v{dst}")

def lcg(a, v):
    a(f"s_mov_b32 s{S_T0}, {LCG_A}")
    a(f"v_mul_lo_u32 v{v}, v{v}, s{S_T0}")
    a(f"v_add_u32 v{v}, {LCG_C}, v{v}")

def red_scalars(a):
    a(f"s_lshl_b32 s{S_T0}, s{S_RG}, 3")
    a(f"s_add_u32 s{S_T0}, s{S_T0}, s{S_SPLIT}")
    a(f"s_mul_i32 s{S_RD}, s{S_T0}, {8*SLICE}")
    a(f"s_add_u32 s{S_RD}, s{S_RD}, {PART_BASE}")
    a(f"s_lshl_b32 s{S_T0}, s{S_W}, 10")
    a(f"s_add_u32 s{S_RD}, s{S_RD}, s{S_T0}")
    a(f"s_lshl_b32 s{S_OA}, s{S_RB}, 3")
    a(f"s_add_u32 s{S_OA}, s{S_OA}, s{S_SPLIT}")
    a(f"s_mul_i32 s{S_OA}, s{S_OA}, {16*2304}")
    a(f"s_mul_i32 s{S_T0}, s{S_BR}, 1152")
    a(f"s_add_u32 s{S_OA}, s{S_OA}, s{S_T0}")
    a(f"s_mul_i32 s{S_T0}, s{S_CP}, 288")
    a(f"s_add_u32 s{S_OA}, s{S_OA}, s{S_T0}")
    a(f"s_mov_b32 s{S_ONE}, 0x3f80")
    a(f"s_mov_b32 s{S_ONEH}, 0x3f800000")

def stamp_out(a, widx):
    if not OPT["stamp"]: return
    a("s_waitcnt vmcnt(0)")
    a.stamp(2)
    a(f"s_lshl_b32 s{S_T2}, s2, 3")
    a(f"s_add_u32 s{S_T2}, s{S_T2}, s{S_W}")
    if widx: a(f"s_add_u32 s{S_T2}, s{S_T2}, 4")
    a(f"s_lshl_b32 s{S_T2}, s{S_T2}, 8")
    a(f"s_add_u32 s{S_T2}, s{S_T2}, {STAMP_BASE}")
    a(f"v_lshlrev_b32 v{T}, 2, v1")
    a(f"buffer_store_dword v{V_STAMP}, v{T}, s[{S_WS}:{S_WS+3}], s{S_T2} offen")

def spin(a, lbl, addr, tag, first_loaded, sleep=False, atomic=False):
    a(f"s_mov_b32 s{S_CNT}, 0")
    if first_loaded: a(f"s_branch {lbl}_chk")
    a.label(f"{lbl}_poll")
    if sleep: a(f"s_sleep {sleep}")
    if atomic:
        a(f"v_mov_b32 v{T+7}, 0")
        a("s_mov_b64 exec, 0xff")
        a(f"buffer_atomic_or v{T+7}, v{addr}, s[{S_WS}:{S_WS+3}], 0 offen sc0 sc1")
    else:
        a(f"buffer_load_dword v{T+7}, v{addr}, s[{S_WS}:{S_WS+3}], 0 offen sc1")
    a("s_waitcnt vmcnt(0)")
    a.label(f"{lbl}_chk")
    a(f"v_cmp_ne_u32 vcc, v{T+7}, v{tag}")
    a(f"s_add_u32 s{S_CNT}, s{S_CNT}, 1")
    a(f"s_cmp_ge_u32 s{S_CNT}, {SPIN_MAX}")
    a(f"s_cbranch_scc1 {lbl}_done")
    a("s_nop 1")
    a(f"s_cbranch_vccnz {lbl}_poll")
    a.label(f"{lbl}_done")
    if atomic: a("s_mov_b64 exec, -1")

def mb_wait(a, lbl, addr_v, off, val):
    a(f"s_mov_b32 s{S_CNT}, 0")
    a.label(lbl)
    a(f"s_sleep {8 if OPT['nospin'] else 1}")
    a(f"ds_read_b32 v{T+1}, v{addr_v} offset:{off}")
    a(f"s_add_u32 s{S_CNT}, s{S_CNT}, 1")
    a("s_waitcnt lgkmcnt(0)")
    a(f"v_readfirstlane_b32 s{S_T0}, v{T+1}")
    a(f"s_cmp_ge_u32 s{S_CNT}, {SPIN_MAX*64}")
    a(f"s_cbranch_scc1 {lbl}_done")
    a(f"s_cmp_lt_u32 s{S_T0}, {val}")
    a(f"s_cbranch_scc1 {lbl}")
    a.label(f"{lbl}_done")

S_MO = 84
def member_offs(a):
    for k in range(1, 8):
        a(f"s_add_u32 s{S_T0}, s{S_SPLIT}, {k}")
        a(f"s_and_b32 s{S_T0}, s{S_T0}, 7")
        a(f"s_mul_i32 s{S_T0}, s{S_T0}, {SLICE}")
        a(f"s_add_u32 s{S_MO+k}, s{S_T0}, s{S_RD}")

def schedule():
    seq = []
    nxt = 2
    def free_upto(p):
        nonlocal nxt
        r = list(range(nxt, min(p+4, 17)+1)); nxt = max(nxt, min(p+4, 17)+1); return r
    for t in range(9):
        need = [pos_s1(t)] + ([KPOS] if t == KPOS else [])
        cons = pos_s1(t-1) if t > 0 else -1
        if t == KPOS: cons = KPOS-1
        seq.append((need, free_upto(cons)))
    if OPT["b9pos"] == 3:
        seq.append(None)
        seq.append(([10, 11], free_upto(9)))
    else:
        seq.append(([], free_upto(9)))
        seq.append(([10, 11], []))
    seq.append(([], free_upto(10)))
    seq.append(([12, 13], free_upto(11)))
    seq.append(([], free_upto(12)))
    seq.append(([14, 15], free_upto(13)))
    seq.append(([], []))
    seq.append(([16, 17], []))
    return seq

def gen_loader(a):
    a.vm = []; a.nst = 1
    if OPT["prio"]: a(f"s_setprio {OPT['prio']}")
    a(f"v_lshrrev_b32 v{T+1}, 4, v1")
    a(f"s_lshl_b32 s{S_T0}, s{S_W}, 4")
    a(f"v_add_u32 v{T+3}, s{S_T0}, v{T+1}")
    a(f"v_lshlrev_b32 v{T+3}, 13, v{T+3}")
    a(f"v_and_b32 v{T+4}, 15, v1")
    a(f"v_lshlrev_b32 v{T+5}, 2, v{T+1}")
    a(f"v_xor_b32 v{T+4}, v{T+4}, v{T+5}")
    a(f"v_lshl_add_u32 v{VQ}, v{T+4}, 4, v{T+3}")
    for j in range(1,4):
        a(f"v_add_u32 v{VQ+j}, {31744*j}, v{VQ}")
    a(f"v_lshrrev_b32 v{T}, 3, v1")
    a(f"v_and_b32 v{T+2}, 7, v1")
    a(f"s_lshl_b32 s{S_T0}, s{S_W}, 5")
    a(f"v_add_u32 v{T+3}, s{S_T0}, v{T}")
    a(f"v_mul_u32_u24 v{T+3}, 1152, v{T+3}")
    a(f"v_xor_b32 v{T+2}, v{T+2}, v{T+1}")
    a(f"v_lshl_add_u32 v{VX}, v{T+2}, 4, v{T+3}")
    a(f"v_xor_b32 v{T+2}, 4, v{T+2}")
    a(f"v_lshl_add_u32 v{VX+1}, v{T+2}, 4, v{T+3}")
    a(f"v_add_u32 v{VX+1}, 8192, v{VX+1}")
    a(f"v_add_u32 v{VX+2}, 16384, v{VX}")
    a(f"v_add_u32 v{VX+3}, 16384, v{VX+1}")
    a(f"s_mul_i32 s{S_SOX}, s{S_RB}, 147456")
    a(f"s_lshl_b32 s{S_SOQ}, s{S_H}, 8")
    ORD1 = {0: [[0,1,2,3,4,5,6,7,8]]*4,
            1: [[0,1,4,2,3,5,8,6,7],[1,0,2,5,3,4,6,7,8],[2,0,1,3,6,4,5,7,8],[0,3,1,2,4,7,5,6,8]],
            2: [[0,1,2,4,3,5,6,8,7],[1,0,2,3,5,4,6,7,8],[0,2,1,3,4,6,5,7,8],[0,1,3,2,4,5,7,6,8]],
            3: [[0,4,1,2,3,8,5,6,7],[1,0,5,2,3,4,6,7,8],[2,0,1,6,3,4,5,7,8],[3,0,1,2,7,4,5,6,8]],
            5: [[0,2,1,3,5,4,6,8,7],[1,0,2,4,3,5,7,6,8],[0,1,3,2,4,5,6,7,8],[0,1,2,3,4,6,5,7,8]],
            6: [[0,2,1,4,3,6,5,8,7],[1,0,3,2,5,4,7,6,8],[0,1,2,3,4,5,6,7,8],[0,1,2,3,4,5,6,7,8]],
            7: [[0,1,2,4,3,5,6,8,7],[1,0,2,3,5,4,6,7,8],[0,2,1,3,4,6,5,7,8],[0,1,3,2,4,5,7,6,8]]}[OPT["rot1"]]
    pack = lambda o: sum(c << (4*i) for i, c in enumerate(o))
    a(f"s_{'add' if OPT['rot1'] >= 5 else 'sub'}_u32 s{S_T0}, s{S_RB}, s{S_HL}")
    a(f"s_and_b32 s{S_T0}, s{S_T0}, 3")
    a(f"s_mov_b32 s98, {pack(ORD1[0]) & 0xffffffff}")
    a(f"s_mov_b32 s99, {pack(ORD1[0]) >> 32}")
    for j in range(1, 4):
        if ORD1[j] != ORD1[0]:
            a(f"s_cmp_eq_u32 s{S_T0}, {j}")
            a(f"s_cselect_b32 s98, {pack(ORD1[j]) & 0xffffffff}, s98")
            a(f"s_cselect_b32 s99, {pack(ORD1[j]) >> 32}, s99")
    for b_, n_ in ((S_X, 589824), (S_WQ, 4718592)):
        a(f"s_mov_b32 s{b_+2}, {n_}")
        a(f"s_mov_b32 s{b_+3}, 0x20000")
    a(f"s_cmp_eq_u32 s{S_BR}, 0")
    a("s_waitcnt lgkmcnt(0)")
    a(f"s_cselect_b32 s{S_WQ}, s42, s52")
    a(f"s_cselect_b32 s{S_WQ+1}, s43, s53")
    a(f"s_cselect_b32 s{S_X}, s36, s46")
    a(f"s_cselect_b32 s{S_X+1}, s37, s47")
    a(f"s_and_b32 s{S_WQ+1}, s{S_WQ+1}, 0xffff")
    a(f"s_and_b32 s{S_X+1}, s{S_X+1}, 0xffff")
    a.stamp()
    def dma_s1(t):
        p = pos_s1(t)
        a(f"s_bfe_u32 s{S_CH}, s{98 + (t>>3)}, {(4 << 16) | (4*(t&7))}")
        a(f"s_add_u32 m0, s{S_LW4}, {base(p)+16384}")
        a(f"s_lshl_b32 s{S_T2}, s{S_CH}, 19")
        a(f"s_add_u32 s{S_T2}, s{S_T2}, s{S_SOQ}")
        for j in range(4):
            a.vmop(f"buffer_load_dwordx4 v{VQ+j}, s[{S_WQ}:{S_WQ+3}], s{S_T2} offen offset:{1024*j}{nt('ntq')} lds", f"p{p}")
        a(f"s_add_u32 m0, s{S_LW4}, {base(p)}")
        a(f"s_lshl_b32 s{S_T2}, s{S_CH}, 7")
        a(f"s_add_u32 s{S_T2}, s{S_T2}, s{S_SOX}")
        for j in range(4):
            a.vmop(f"buffer_load_dwordx4 v{VX+j}, s[{S_X}:{S_X+3}], s{S_T2} offen offset:{1024*j}{nt('ntx')} lds", f"p{p}")
    def dma_kv(srdb, soff, p, ntk):
        for half in range(2):
            a(f"s_add_u32 m0, s{S_LW8}, {base(p) + half*4096}")
            if half == 0: a(f"s_mov_b32 s{S_T2}, s{soff}")
            else: a(f"s_add_u32 s{S_T2}, s{soff}, 4096")
            for j in range(4):
                a.vmop(f"buffer_load_dwordx4 v{VK+j}, s[{srdb}:{srdb+3}], s{S_T2} offen offset:{1024*j}{nt(ntk)} lds", f"p{p}")
    def dma_wo(u, p):
        for j in range(9):
            if j%4 == 0:
                a(f"s_add_u32 m0, s{S_LWO}, {base(p) + 4096*(j>>2)}")
                a("s_nop 0")
            a.vmop(f"buffer_load_dwordx4 v{VO+j}, s[{S_WO}:{S_WO+3}], s{S_SOW[u]} offen offset:{1024*(j&3)}{nt('nto')} lds", f"p{p}")
    def dma_item(p):
        if p == KPOS: dma_kv(S_K, S_SOK, p, "ntk")
        elif p < 10: dma_s1(p if p < KPOS else p-1)
        else:
            u = (p-10)>>1
            if p & 1: dma_wo(u, p)
            else: dma_kv(S_V, S_SOV[u], p, "ntv")
    def setup_kv():
        a(f"s_mov_b32 s{S_T3}, 4194304")
        a(f"s_cmp_eq_u32 s{S_BR}, 0")
        for b_, idx, na in ((S_K,1,2097152),(S_V,2,2097152),(S_WO,4,None)):
            la = 36+2*idx; lb = 46+2*idx
            a(f"s_cselect_b32 s{b_}, s{la}, s{lb}")
            a(f"s_cselect_b32 s{b_+1}, s{la+1}, s{lb+1}")
            if na: a(f"s_cselect_b32 s{b_+2}, {na}, s{S_T3}")
            else: a(f"s_mov_b32 s{b_+2}, 4718592")
            a(f"s_mov_b32 s{b_+3}, 0x20000")
        for b_ in (S_K, S_V, S_WO): a(f"s_and_b32 s{b_+1}, s{b_+1}, 0xffff")
        a(f"v_lshrrev_b32 v{T}, 4, v1")
        a(f"v_and_b32 v{T+1}, 15, v1")
        for j in range(4):
            a(f"v_add_u32 v{VK+j}, {4*j}, v{T}")
            a(f"v_xor_b32 v{VK+j}, v{VK+j}, v{T+1}")
            a(f"v_lshlrev_b32 v{VK+j}, 4, v{VK+j}")
            a(f"v_lshl_add_u32 v{VK+j}, v{T}, 8, v{VK+j}")
        kv_soffset(a, S_SOK, S_H)
    def setup_vo(js):
        a(f"s_movk_i32 s{S_T0}, 3641")
        for j in js:
            a(f"v_add_u32 v{T}, {64*j}, v1")
            a(f"v_mul_u32_u24 v{T+1}, s{S_T0}, v{T}")
            a(f"v_lshrrev_b32 v{T+1}, 16, v{T+1}")
            a(f"v_mul_u32_u24 v{T+2}, 18, v{T+1}")
            a(f"v_sub_u32 v{T+2}, v{T}, v{T+2}")
            a(f"v_and_b32 v{T+3}, 0x13, v{T+1}")
            a(f"v_bfe_u32 v{T+4}, v{T+1}, 2, 1")
            a(f"v_lshl_add_u32 v{T+3}, v{T+4}, 3, v{T+3}")
            a(f"v_bfe_u32 v{T+4}, v{T+1}, 3, 1")
            a(f"v_lshl_add_u32 v{T+3}, v{T+4}, 2, v{T+3}")
            a(f"v_mul_u32_u24 v{T+3}, 1152, v{T+3}")
            a(f"v_lshl_add_u32 v{VO+j}, v{T+2}, 4, v{T+3}")
            if j&3: a(f"v_subrev_u32 v{VO+j}, {1024*(j&3)}, v{VO+j}")
    def setup_heads(us):
        for u in us:
            head_u(a, u)
            a(f"s_lshl_b32 s{S_T2}, s{S_T3}, 2")
            a(f"s_add_u32 s{S_T2}, s{S_T2}, s{S_W}")
            a(f"s_mul_i32 s{S_SOW[u]}, s{S_T2}, {32*1152}")
            a(f"s_mul_i32 s{S_T2}, s{S_CP}, 288")
            a(f"s_add_u32 s{S_SOW[u]}, s{S_SOW[u]}, s{S_T2}")
            a(f"s_mov_b32 s{S_SPU[u]}, s{S_T3}")
            kv_soffset(a, S_SOV[u], S_T3)
    PL = RB; PE = RB+32
    def setup_p():
        if OPT["ownp"]: own_pos(a)
        else: a(f"s_mov_b32 s{S_OU}, 7")
        lcg(a, TAGP)
        a(f"v_lshlrev_b32 v{VL}, 4, v1")
        a(f"v_and_b32 v{T}, 3, v1")
        a(f"v_lshlrev_b32 v{T}, 1, v{T}")
        a(f"v_sub_u32 v{T}, 32, v{T}")
        a(f"s_lshl_b32 s{S_T0}, s{S_BR}, 4")
        a(f"s_add_u32 s{S_T0}, s{S_T0}, s{S_B}")
        a(f"s_lshl_b32 s{S_SOP}, s{S_T0}, 16")
        for u in range(4):
            a(f"s_and_b32 s{S_T0}, s{S_SPU[u]}, 3")
            a(f"v_readlane_b32 s{S_T1}, v{TAGP}, s{S_T0}")
            a(f"s_lshl_b32 s{S_SPU[u]}, s{S_SPU[u]}, 11")
            a(f"s_add_u32 s{S_SPU[u]}, s{S_SPU[u]}, s{S_SOP}")
            a(f"v_alignbit_b32 v{PE+2*u}, s{S_T1}, s{S_T1}, v{T}")
            a(f"v_lshlrev_b32 v{PE+2*u+1}, 1, v{PE+2*u}")
        a(f"s_mov_b32 s{S_C}, 0x07050301")
        a(f"s_mov_b32 s{S_TJ}, 0x7fff7fff")
        a(f"v_add_u32 v{T+6}, s{S_LW8}, v{VL}")
        a(f"v_add_u32 v{T+6}, {base(14)}, v{T+6}")
    lab = [0]
    def skip_own(uu, body):
        k = lab[0]; lab[0] += 1
        a(f"s_cmp_eq_u32 s{S_OU}, {uu}")
        a(f"s_cbranch_scc1 L_so{k}")
        body()
        a.label(f"L_so{k}")
    def p_loads(track):
        for uu in range(4):
            def body(uu=uu):
                for it in range(2):
                    ins = f"buffer_load_dwordx4 v[{PL+8*uu+4*it}:{PL+8*uu+4*it+3}], v{VL}, s[{S_WS}:{S_WS+3}], s{S_SPU[uu]} offen offset:{1024*it} sc1"
                    if track: a.vmop(ins, "Pld")
                    else: a(ins)
            skip_own(uu, body)
    def p_check():
        a.wait_vm("Pld")
        a(f"s_mov_b32 s{S_CNT}, 0")
        a("s_branch L_pc_chk")
        a.label("L_pc_retry")
        a("s_sleep 4")
        p_loads(False)
        a("s_waitcnt vmcnt(0)")
        a.label("L_pc_chk")
        a(f"v_mov_b32 v{T}, 0")
        for uu in range(4):
            def body(uu=uu):
                for q in (2*uu, 2*uu+1):
                    d = PL+4*q; e = PE+2*(q>>1)
                    a(f"v_perm_b32 v{T+1}, v{d+1}, v{d}, s{S_C}")
                    a(f"v_perm_b32 v{T+2}, v{d+3}, v{d+2}, s{S_C}")
                    a(f"v_xor_b32 v{T+1}, v{T+1}, v{e}")
                    a(f"v_xor_b32 v{T+2}, v{T+2}, v{e+1}")
                    a(f"v_or3_b32 v{T}, v{T}, v{T+1}, v{T+2}")
            skip_own(uu, body)
        a(f"v_and_b32 v{T}, 0x80808080, v{T}")
        a(f"v_cmp_ne_u32 vcc, 0, v{T}")
        a(f"s_add_u32 s{S_CNT}, s{S_CNT}, 1")
        a(f"s_cmp_ge_u32 s{S_CNT}, {SPIN_MAX}")
        a("s_cbranch_scc1 L_pc_done")
        a("s_nop 1")
        a("s_cbranch_vccnz L_pc_retry")
        a.label("L_pc_done")
    def p_write():
        for uu in range(4):
            def body(uu=uu):
                for q in (2*uu, 2*uu+1):
                    d = PL+4*q
                    for k in range(4): a(f"v_and_b32 v{d+k}, s{S_TJ}, v{d+k}")
                    a(f"ds_write_b128 v{T+6}, v[{d}:{d+3}] offset:{1024*q}")
            skip_own(uu, body)
        a("s_waitcnt lgkmcnt(0)")
    def setup_e():
        a(f"v_and_b32 v{T}, 3, v1")
        a(f"v_lshlrev_b32 v{T}, 2, v{T}")
        a(f"v_mov_b32 v{T+1}, 0")
        a(f"ds_write_b32 v{T}, v{T+1} offset:{0}") if False else None
        a(f"v_add_u32 v{T}, {MBOX}, v{T}")
        a(f"ds_write_b32 v{T}, v{T+1}")
        e_addr_r(a, T, T+1)
        a(f"s_mov_b32 s{S_T1}, {E_BASE}")
        a.vmop(f"buffer_load_dword v{TAGR}, v{T}, s[{S_WS}:{S_WS+3}], s{S_T1} offen sc1", "E")
        a(f"v_and_b32 v{T}, 3, v1")
        a(f"s_and_b32 s{S_T0}, s2, 0x9f")
        a(f"v_lshlrev_b32 v{T}, 5, v{T}")
        a(f"v_add_u32 v{T}, s{S_T0}, v{T}")
        a(f"v_lshlrev_b32 v{T}, 2, v{T}")
        a.vmop(f"buffer_load_dword v{TAGP}, v{T}, s[{S_WS}:{S_WS+3}], s{S_T1} offen sc1", "E")
        a("s_waitcnt lgkmcnt(0)")
    def setup_red():
        rgroup(a)
        red_scalars(a)
        lcg(a, TAGR)
        a(f"v_and_b32 v{T}, 7, v1")
        a(f"s_lshl_b32 s{S_T0}, s{S_RG}, 3")
        a(f"s_add_u32 s{S_T1}, s{S_T0}, s{S_SPLIT}")
        a(f"s_lshl_b32 s{S_T1}, s{S_T1}, 10")
        a(f"s_add_u32 s{S_T1}, s{S_T1}, {FR_BASE}")
        a(f"v_lshl_add_u32 v{FRA}, v{T}, 7, s{S_T1}")
        a(f"v_and_b32 v{T+8}, 15, v1")
        a(f"v_mul_u32_u24 v{T+8}, 2304, v{T+8}")
        a(f"v_bfe_u32 v{T+3}, v1, 4, 1")
        a(f"v_lshl_add_u32 v{T+8}, v{T+3}, 5, v{T+8}")
        a(f"v_bfe_u32 v{T+3}, v1, 5, 1")
        a(f"v_lshl_add_u32 v{T+8}, v{T+3}, 4, v{T+8}")
        a(f"s_lshl_b32 s{S_T0}, s{S_W}, 6")
        a(f"v_add_u32 v{T+8}, s{S_T0}, v{T+8}")
    dma_item(0); dma_item(1)
    setup_kv()
    srd(a, S_WS, 60, 61, WS_USED)
    srd(a, S_OUT, 56, 57, 1179648)
    a.stamp()
    extra = {1: lambda: (setup_e(), setup_heads([0])), 2: lambda: setup_vo([0,1,2]), 3: lambda: setup_vo([3,4,5]), 4: lambda: setup_vo([6,7,8]),
             5: lambda: (a(f"s_mul_i32 s{S_LWO}, s{S_W}, 9216"), setup_heads([1])), 6: lambda: setup_heads([2,3]), 10: setup_p, 12: setup_red}
    if OPT['pearly']: extra[14] = p_check; extra[15] = p_write
    else: extra[15] = lambda: (p_check(), p_write())
    for i,ent in enumerate(schedule()):
        if ent is None: continue
        need, iss = ent
        if need: a.wait_vm(*[f"p{s}" for s in need])
        a("s_barrier")
        if i == (13 if OPT['pearly'] == 1 else 14 if OPT['pearly'] == 0 else -1): p_loads(True)
        if i == 14 and OPT['lprio2']: a('s_setprio 1')
        for s in iss: dma_item(s)
        if i == 13 and OPT['pearly'] == 2: p_loads(True)
        if i in extra: extra[i]()
        a.stamp()
        if OPT["dbgl"] and i in (9, 11, 13):
            a("s_waitcnt vmcnt(0)")
            a.stamp()
    LD=RB; RA=RB+32
    for r in range(8): a(f"v_mov_b32 v{RA+r}, 0")
    a(f"v_mov_b32 v{T}, {MBOX}")
    if OPT["own"]:
        member_offs(a)
        a(f"s_lshl_b32 s{S_T0}, s{S_W}, 10")
        a(f"s_add_u32 s{S_T0}, s{S_T0}, {base(15)}")
        a(f"v_add_u32 v{T+9}, s{S_T0}, v{VL}")
    if OPT["two"]:
        a(f"s_cmp_eq_u32 s{S_W}, 3")
        a(f"s_cselect_b32 s{S_T2}, 8, 0")
        a(f"s_cselect_b32 s{S_T3}, {256<<10}, 0")
        a(f"v_add_u32 v{T}, s{S_T2}, v{T}")
        a(f"v_add_u32 v{FRA}, s{S_T3}, v{FRA}")
        a(f"s_and_b32 s{S_T2}, s{S_W}, 3")
        a(f"s_cmp_eq_u32 s{S_W}, 1")
        a("s_cbranch_scc1 L_lgo")
        a(f"s_cmp_eq_u32 s{S_W}, 2")
        a("s_cbranch_scc1 L_lgo")
        mb_wait(a, "L_mb", T, 0, 4)
        spin(a, "L_rw", FRA, TAGR, False, OPT["gsl"], OPT["apoll"])
        a(f"v_mov_b32 v{T+1}, 1")
        a(f"ds_write_b32 v{T}, v{T+1} offset:4")
        a("s_branch L_lred")
        a.label("L_lgo")
        mb_wait(a, "L_go", T, 4, 1)
        a.label("L_lred")
    elif OPT["onep"]:
        a(f"s_cmp_lg_u32 s{S_W}, 0")
        a("s_cbranch_scc1 L_lgo")
        mb_wait(a, "L_mb", T, 0, 4)
        if OPT["pp"]:
            a(f"s_mov_b32 s{S_CNT}, 0")
            a("s_mov_b64 exec, 0xff")
            a(f"v_mov_b32 v{T+7}, 0")
            a(f"buffer_atomic_or v{T+7}, v{FRA}, s[{S_WS}:{S_WS+3}], 0 offen sc0 sc1")
            a.label("L_rw_poll")
            for (x, y) in ((T+5, T+7), (T+7, T+5)):
                a(f"s_sleep {OPT['ppsl']}")
                a(f"v_mov_b32 v{x}, 0")
                a(f"buffer_atomic_or v{x}, v{FRA}, s[{S_WS}:{S_WS+3}], 0 offen sc0 sc1")
                a("s_waitcnt vmcnt(1)")
                a(f"v_cmp_ne_u32 vcc, v{y}, v{TAGR}")
                a(f"s_add_u32 s{S_CNT}, s{S_CNT}, 1")
                a("s_nop 3")
                a("s_cbranch_vccz L_rw_done")
            a(f"s_cmp_lt_u32 s{S_CNT}, {SPIN_MAX}")
            a("s_cbranch_scc1 L_rw_poll")
            a.label("L_rw_done")
            a("s_mov_b64 exec, -1")
        else:
            spin(a, "L_rw", FRA, TAGR, False, OPT["gsl"], OPT["apoll"])
        a(f"v_mov_b32 v{T+1}, 1")
        a(f"ds_write_b32 v{T}, v{T+1} offset:4")
        a("s_branch L_lred")
        a.label("L_lgo")
        mb_wait(a, "L_go", T, 4, 1)
        a.label("L_lred")
    else:
        mb_wait(a, "L_mb", T, 0, 4)
        spin(a, "L_rw", FRA, TAGR, False, OPT["gsl"], OPT["apoll"])
    a.stamp(2)
    def member_off(k):
        a(f"s_add_u32 s{S_T0}, s{S_SPLIT}, {k}")
        a(f"s_and_b32 s{S_T0}, s{S_T0}, 7")
        a(f"s_mul_i32 s{S_T0}, s{S_T0}, {SLICE}")
        a(f"s_add_u32 s{S_T0}, s{S_T0}, s{S_RD}")
    if OPT["own"]:
        for k in range(1, 8):
            a(f"buffer_load_dwordx4 v[{LD+4*k}:{LD+4*k+3}], v{VL}, s[{S_WS}:{S_WS+3}], s{S_MO+k} offen sc1")
        a(f"ds_read_b128 v[{LD}:{LD+3}], v{T+9}")
        for j in range(8):
            a("s_waitcnt lgkmcnt(0)" if j == 0 else f"s_waitcnt vmcnt({7-j})")
            for d in range(4):
                a(f"v_dot2c_f32_bf16 v{RA+2*d}, s{S_ONE}, v{LD+4*j+d}")
                a(f"v_dot2c_f32_bf16 v{RA+2*d+1}, s{S_ONEH}, v{LD+4*j+d}")
    else:
        for j in range(8):
            a(f"buffer_load_dwordx4 v[{LD+4*j}:{LD+4*j+3}], v{VL}, s[{S_WS}:{S_WS+3}], s{S_RD} offen sc1")
            if j < 7: a(f"s_add_u32 s{S_RD}, s{S_RD}, {SLICE}")
        for j in range(8):
            a(f"s_waitcnt vmcnt({7-j})")
            for d in range(4):
                a(f"v_dot2c_f32_bf16 v{RA+2*d}, s{S_ONE}, v{LD+4*j+d}")
                a(f"v_dot2c_f32_bf16 v{RA+2*d+1}, s{S_ONEH}, v{LD+4*j+d}")
    a("s_nop 2")
    for d in range(4): a(f"v_cvt_pk_bf16_f32 v{LD+d}, v{RA+2*d}, v{RA+2*d+1}")
    a("s_nop 1")
    a(f"v_permlane16_swap_b32 v{LD}, v{LD+2}")
    a(f"v_permlane16_swap_b32 v{LD+1}, v{LD+3}")
    a("s_nop 1")
    a(f"buffer_store_dwordx4 v[{LD}:{LD+3}], v{T+8}, s[{S_OUT}:{S_OUT+3}], s{S_OA} offen{OSC}")
    a.label("L_ldone")
    stamp_out(a, 1)
    a("s_endpgm")

def gen_compute_pro(a):
    a.vm = []; a.nst = 1
    if OPT["cprio"]: a(f"s_setprio {OPT['cprio']}")
    if OPT["cpf"]:
        a("s_getpc_b64 s[98:99]")
        a.label("L_pc")
        a(f"s_lshr_b32 s{S_T0}, s2, 3")
        a(f"s_mul_i32 s{S_T0}, s{S_T0}, 768")
        a(f"v_min_u32 v{T}, 5, v1")
        a(f"v_lshlrev_b32 v{T}, 7, v{T}")
        a(f"v_add_u32 v{T}, s{S_T0}, v{T}")
        a(f"v_min_u32 v{T}, L_fin-L_pc-4, v{T}")
        a(f"s_cmp_lg_u32 s{S_W}, 0")
        a("s_cbranch_scc1 L_nopf")
        a(f"global_load_dword v{T+7}, v{T}, s[98:99]")
        a.label("L_nopf")
    a(f"v_and_b32 v{T}, 31, v1")
    a(f"v_lshrrev_b32 v{T+1}, 5, v1")
    a(f"v_bfe_u32 v{T+2}, v1, 1, 3")
    a(f"v_xor_b32 v{T+2}, v{T+2}, v{T+1}")
    a(f"v_lshlrev_b32 v{T+2}, 4, v{T+2}")
    a(f"v_lshl_add_u32 v{T+2}, v{T}, 7, v{T+2}")
    a(f"v_add_u32 v{AX}, s{S_LW4}, v{T+2}")
    for ks in range(1,4): a(f"v_xor_b32 v{AX+ks}, {32*ks}, v{AX}")
    a(f"v_bfe_u32 v{T}, v1, 2, 2")
    a(f"v_lshl_add_u32 v{T+2}, v{T+1}, 3, v{T}")
    a(f"v_lshlrev_b32 v{T+2}, 8, v{T+2}")
    a(f"v_lshl_add_u32 v{T+2}, v{T}, 6, v{T+2}")
    a(f"v_bfe_u32 v{T+3}, v1, 4, 1")
    a(f"v_lshl_add_u32 v{T+2}, v{T+3}, 5, v{T+2}")
    a(f"v_and_b32 v{T+3}, 1, v1")
    a(f"v_lshl_add_u32 v{T+2}, v{T+3}, 4, v{T+2}")
    a(f"v_bfe_u32 v{T+3}, v1, 1, 1")
    a(f"v_lshl_add_u32 v{T+2}, v{T+3}, 3, v{T+2}")
    a(f"v_add_u32 v{AQ}, 16384, v{T+2}")
    for t in range(1,4): a(f"v_xor_b32 v{AQ+t}, {64*t}, v{AQ}")
    a.stamp()


def gen_compute(a):
    a.vm = []; a.nst = 2 if OPT['stamp'] == 1 else 1
    fill = []
    F = fill.append
    for ks in range(4): F(f"v_add_u32 v{AX+4+ks}, {2*SLOT}, v{AX+ks}")
    for t in range(4): F(f"v_add_u32 v{AQ+4+t}, {2*SLOT}, v{AQ+t}")
    class FA_:
        def __call__(self, s): F(s)
    fa = FA_()
    F("s_waitcnt lgkmcnt(0)")
    fill.pop()
    srd(fa, S_WS, 60, 61, WS_USED)
    srd(fa, S_OUT, 56, 57, 1179648)
    F(f"v_and_b32 v{T}, 31, v1")
    F(f"v_and_b32 v{T+2}, 15, v1")
    F(f"v_xor_b32 v{T+2}, v{T+2}, v{T+1}")
    F(f"v_lshlrev_b32 v{T+2}, 4, v{T+2}")
    F(f"v_lshl_add_u32 v{T+2}, v{T}, 8, v{T+2}")
    F(f"v_add_u32 v{T+9}, s{S_LW8}, v{T+2}")
    if base(KPOS) >= 65536-0: F(f"v_add_u32 v{T+9}, {base(KPOS)}, v{T+9}")
    e_addr_r(fa, T+3, T+4)
    F(f"s_mov_b32 s{S_T1}, {E_BASE}")
    F(("vm", f"buffer_load_dword v{TAGR}, v{T+3}, s[{S_WS}:{S_WS+3}], s{S_T1} offen sc1", "E"))
    rgroup(fa)
    F(f"v_lshrrev_b32 v{T}, 4, v1")
    F(f"v_and_b32 v{T+3}, 15, v1")
    F(f"v_xor_b32 v{T+2}, v{T}, v{T+3}")
    F(f"v_lshlrev_b32 v{T+2}, 4, v{T+2}")
    F(f"v_lshl_add_u32 v{T+2}, v{T+3}, 8, v{T+2}")
    F(f"v_add_u32 v{T+2}, {base(10)}, v{T+2}")
    F(f"v_add_u32 v{AV}, s{S_LW8}, v{T+2}")
    for ks in range(1,4): F(f"v_xor_b32 v{AV+ks}, {64*ks}, v{AV}")
    F(f"v_lshlrev_b32 v{VL}, 4, v1")
    F(f"v_lshlrev_b32 v{T}, 4, v{T+1}")
    F(f"v_bfe_u32 v{T+2}, v1, 4, 1")
    F(f"v_lshl_add_u32 v{T}, v{T+2}, 2, v{T}")
    F(f"v_bfe_u32 v{T+4}, v1, 2, 2")
    F(f"v_add_u32 v{T}, v{T}, v{T+4}")
    F(f"v_mul_u32_u24 v{T}, 288, v{T}")
    F(f"v_and_b32 v{T+4}, 3, v1")
    F(f"v_lshl_add_u32 v{T}, v{T+4}, 3, v{T}")
    F(f"v_add_u32 v{AO}, {base(11)}, v{T}")
    F(f"v_add_u32 v{AO+1}, {base(13)}, v{T}")
    F(f"v_lshlrev_b32 v{T+2}, 10, v{T+2}")
    F(f"v_lshl_add_u32 v{T+2}, v{T+1}, 8, v{T+2}")
    F(f"v_lshl_add_u32 v{T+8}, v{T+3}, 4, v{T+2}")
    F(f"v_mul_u32_u24 v{T+6}, 2304, v{T+3}")
    F(f"v_lshrrev_b32 v{T+2}, 4, v1")
    F(f"v_lshlrev_b32 v{T+2}, 3, v{T+2}")
    F(f"v_add_u32 v{T+2}, 256, v{T+2}")
    F(f"v_add_u32 v{T+6}, v{T+6}, v{T+2}")
    F(f"s_lshl_b32 s{S_T0}, s{S_BR}, 4")
    F(f"s_add_u32 s{S_T0}, s{S_T0}, s{S_B}")
    F(f"s_lshl_b32 s{S_SOP}, s{S_T0}, 16")
    F(f"s_lshl_b32 s{S_T0}, s{S_H}, 11")
    F(f"s_add_u32 s{S_SOP}, s{S_SOP}, s{S_T0}")
    F(f"s_mov_b32 s{S_C}, 0x3e0293ee")
    F(f"s_mov_b32 s{S_CC}, 0x3e0293ee")
    F(f"s_mov_b32 s{S_CC+1}, 0x3e0293ee")
    F(f"s_lshl_b32 s{S_T0}, s{S_RG}, 2")
    F(f"s_add_u32 s{S_T0}, s{S_T0}, s{S_W}")
    F(f"s_lshl_b32 s{S_T0}, s{S_T0}, 4")
    F(f"s_add_u32 s{S_T0}, s{S_T0}, s{S_SPLIT}")
    F(f"s_mul_i32 s{S_PW}, s{S_T0}, {SLICE}")
    F(f"s_add_u32 s{S_PW}, s{S_PW}, {PART_BASE}")
    F(f"s_add_u32 s{S_PW1}, s{S_PW}, {8*SLICE}")
    red_scalars(fa)
    F(f"s_lshl_b32 s{S_T0}, s{S_W}, 10")
    F(f"s_sub_u32 s{S_RD}, s{S_RD}, s{S_T0}")
    fill2 = []
    PM = TAGP
    PMASK = [43, 45, PK+6, PK+7]
    def tags_setup():
        a.wait_vm("E")
        lcg(a, TAGR)
        a(f"v_and_b32 v{T}, 3, v1")
        a(f"v_readlane_b32 s{S_TAG}, v{TAGR}, s{S_SPLIT}")
        a(f"v_lshlrev_b32 v{T}, 1, v{T}")
        a(f"v_sub_u32 v{T}, 32, v{T}")
        a(f"v_mov_b32 v{VTG}, s{S_TAG}")
        a(f"v_alignbit_b32 v{T}, v{VTG}, v{VTG}, v{T}")
        a(f"v_lshlrev_b32 v{T+2}, 1, v{T}")
        a(f"v_and_b32 v{T}, 0x80808080, v{T}")
        a(f"v_and_b32 v{T+2}, 0x80808080, v{T+2}")
        a(f"s_mov_b32 s{S_T0}, 0x010c000c")
        a(f"s_mov_b32 s{S_T1}, 0x030c020c")
        a(f"v_perm_b32 v{PMASK[0]}, v{T}, v{T}, s{S_T0}")
        a(f"v_perm_b32 v{PMASK[1]}, v{T}, v{T}, s{S_T1}")
        a(f"v_perm_b32 v{PMASK[2]}, v{T+2}, v{T+2}, s{S_T0}")
        a(f"v_perm_b32 v{PMASK[3]}, v{T+2}, v{T+2}, s{S_T1}")
        if OPT["ownp"]:
            own_pos(a)
            a(f"s_lshl_b32 s{S_T0}, s{S_W}, 11")
            a(f"s_add_u32 s{S_T0}, s{S_T0}, {OPB}")
            a(f"v_add_u32 v{T+9}, s{S_T0}, v{T+8}")
    def filler(n):
        for _ in range(n):
            if not fill: return
            x = fill.pop(0)
            if isinstance(x, tuple): a.vmop(x[1], x[2])
            else: a(x)

    def rdB(st, ks, buf):
        slot = pos_s1(st)%4; s2 = (slot>>1)*4; off = (slot&1)*SLOT
        a.ds(f"ds_read_b128 a[{FB+4*buf}:{FB+4*buf+3}], v{AX+s2+ks} offset:{off}", f"B{st}_{ks}")
    def rdA(st, ks, t, buf):
        slot = pos_s1(st)%4; s2 = (slot>>1)*4; off = (slot&1)*SLOT + ks*4096
        a.ds(f"ds_read_b64_tr_b16 a[{FA+4*buf}:{FA+4*buf+1}], v{AQ+s2+t} offset:{off}", f"A{st}_{ks}_{t}")
        a.ds(f"ds_read_b64_tr_b16 a[{FA+4*buf+2}:{FA+4*buf+3}], v{AQ+s2+t} offset:{off+1024}", f"A{st}_{ks}_{t}")
    def mm32(st, ks, t, abuf, bbuf):
        a.wait_lg(f"B{st}_{ks}", f"A{st}_{ks}_{t}")
        c = "0" if (st == 0 and ks == 0) else f"v[{ACC+16*t}:{ACC+16*t+15}]"
        a(f"v_mfma_f32_32x32x16_bf16 v[{ACC+16*t}:{ACC+16*t+15}], a[{FA+4*abuf}:{FA+4*abuf+3}], a[{FB+4*bbuf}:{FB+4*bbuf+3}], {c}")
    def rdK(kk):
        koff = base(KPOS) if base(KPOS) < 65536 else 0
        a(f"v_xor_b32 v{T+5}, {32*kk}, v{T+9}")
        a.ds(f"ds_read_b128 a[{KF+4*kk}:{KF+4*kk+3}], v{T+5} offset:{koff}", f"K{kk}")
    a("s_waitcnt lgkmcnt(0)")
    if OPT["tlb"]:
        a(f"s_cmp_lg_u32 s{S_W}, 1")
        a("s_cbranch_scc1 L_notlb")
        kv_soffset(a, S_T2, S_H)
        a(f"s_cmp_eq_u32 s{S_BR}, 0")
        a(f"s_cselect_b32 s98, s38, s48")
        a(f"s_cselect_b32 s99, s39, s49")
        a(f"v_mov_b32 v{T}, s{S_T2}")
        a(f"global_load_dword v{T+7}, v{T}, s[98:99]")
        a(f"s_cmp_eq_u32 s{S_BR}, 0")
        a(f"s_cselect_b32 s98, s40, s50")
        a(f"s_cselect_b32 s99, s41, s51")
        a(f"global_load_dword v{T+7}, v{T}, s[98:99]")
        a(f"s_cselect_b32 s98, s44, s54")
        a(f"s_cselect_b32 s99, s45, s55")
        a(f"s_mul_i32 s{S_T0}, s{S_SPLIT}, 589824")
        a(f"v_and_b32 v{T}, 1, v1")
        a(f"v_mul_u32_u24 v{T}, 589820, v{T}")
        a(f"v_add_u32 v{T}, s{S_T0}, v{T}")
        a(f"global_load_dword v{T+7}, v{T}, s[98:99]")
        a(f"s_mul_i32 s{S_T0}, s{S_RB}, {128*2304}")
        a(f"v_mov_b32 v{T}, s{S_T0}")
        a(f"global_load_dword v{T+7}, v{T}, s[56:57]")
        a(f"v_and_b32 v{T}, 7, v1")
        a(f"v_lshlrev_b32 v{T}, 21, v{T}")
        a(f"v_add_u32 v{T}, {(2<<20)-4}, v{T}")
        a(f"global_load_dword v{T+7}, v{T}, s[60:61] sc1")
        a.label("L_notlb")
    a("s_barrier")
    a.stamp(2)
    rdB(0,0,0)
    for t in range(4): rdA(0,0,t,t)
    for st in range(8):
        for ks in range(3):
            for t in range(4):
                mm32(st, ks, t, t, ks&1)
                if t == 0: rdB(st, ks+1, (ks+1)&1)
                rdA(st, ks+1, t, t)
                if st == KPOS and ks < 2: rdK(4*ks+t)
                else: filler(OPT["nfill"] if st else 3)
            if st == 7 and ks == 1: tags_setup()
        mm32(st, 3, 0, 0, 1)
        mm32(st, 3, 1, 1, 1)
        a.wait_lg0()
        a("s_barrier")
        a.stamp()
        if st < 7:
            rdB(st+1, 0, 0); rdA(st+1, 0, 0, 0); rdA(st+1, 0, 1, 1)
            mm32(st, 3, 2, 2, 1); rdA(st+1, 0, 2, 2)
            mm32(st, 3, 3, 3, 1); rdA(st+1, 0, 3, 3)
        else:
            rdB(8, 0, 0); rdA(8, 0, 0, 0); rdA(8, 1, 0, 1); rdB(8, 2, 2)
            mm32(st, 3, 2, 2, 1); rdA(8, 2, 0, 2); rdB(8, 3, 3)
            mm32(st, 3, 3, 3, 1); rdB(8, 1, 1); rdA(8, 3, 0, 3)
    assert not fill, len(fill)
    def qcvt(t):
        for r in range(8): a(f"v_cvt_pk_bf16_f32 v{QB+8*t+r}, v{ACC+16*t+2*r}, v{ACC+16*t+2*r+1}")
    for t in range(4):
        for ks in range(4):
            mm32(8, ks, t, ks, ks)
            if t < 3: rdA(8, ks, t+1, ks)
            if t == 3 and ks == 1:
                a.wait_lg0()
                if OPT["b9pos"] == 0:
                    a("s_barrier")
                    a.stamp(2)
                a("s_nop 3")
                if OPT["b9pos"]: a("s_nop 0")
            if ks == 2 and t > 0: qcvt(t-1)
    for kk in range(8):
        if kk == 6: a("s_nop 0")
        c = "0" if kk == 0 else f"v[{SA}:{SA+15}]"
        a(f"v_mfma_f32_32x32x16_bf16 v[{SA}:{SA+15}], a[{KF+4*kk}:{KF+4*kk+3}], v[{QB+4*kk}:{QB+4*kk+3}], {c}")
        if kk == 5:
            a("s_nop 5")
            qcvt(3)
    if OPT["b9pos"] == 1:
        a("s_barrier"); a.stamp(2)
    a("s_nop 11")
    M=T+4; M2=T+5
    a(f"v_max3_f32 v{M}, v{SA}, v{SA+1}, v{SA+2}")
    a(f"v_max3_f32 v{M2}, v{SA+3}, v{SA+4}, v{SA+5}")
    a(f"v_max3_f32 v{M}, v{M}, v{SA+6}, v{SA+7}")
    a(f"v_max3_f32 v{M2}, v{M2}, v{SA+8}, v{SA+9}")
    a(f"v_max3_f32 v{M}, v{M}, v{SA+10}, v{SA+11}")
    a(f"v_max3_f32 v{M2}, v{M2}, v{SA+12}, v{SA+13}")
    a(f"v_max3_f32 v{M}, v{M}, v{SA+14}, v{SA+15}")
    a(f"v_max_f32 v{M}, v{M}, v{M2}")
    a(f"v_mov_b32 v{M2}, v{M}")
    a("s_nop 1")
    a(f"v_permlane32_swap_b32 v{M}, v{M2}")
    a("s_nop 1")
    a(f"v_max_f32 v{M}, v{M}, v{M2}")
    a(f"v_mul_f32 v{M}, s{S_C}, v{M}")
    if OPT["pksm"]:
        a(f"v_mov_b32 v{M2}, v{M}")
        a(f"s_mov_b32 s{S_C+1}, s{S_C}") if False else None
        for r in range(0,16,2): a(f"v_pk_fma_f32 v[{SA+r}:{SA+r+1}], v[{SA+r}:{SA+r+1}], s[{S_CC}:{S_CC+1}], v[{M}:{M2}] neg_lo:[0,0,1] neg_hi:[0,0,1]")
    else:
        for r in range(16): a(f"v_fma_f32 v{SA+r}, v{SA+r}, s{S_C}, -v{M}")
    for r in range(16): a(f"v_exp_f32 v{SA+r}, v{SA+r}")
    if OPT["b9pos"] == 2:
        a("s_barrier"); a.stamp(2)
    a("s_nop 0")
    if OPT["pksm"]:
        a(f"v_pk_add_f32 v[{M}:{M2}], v[{SA}:{SA+1}], v[{SA+2}:{SA+3}]")
        a(f"v_pk_add_f32 v[{QB}:{QB+1}], v[{SA+4}:{SA+5}], v[{SA+6}:{SA+7}]")
        a(f"v_pk_add_f32 v[{M}:{M2}], v[{M}:{M2}], v[{SA+8}:{SA+9}]")
        a(f"v_pk_add_f32 v[{QB}:{QB+1}], v[{QB}:{QB+1}], v[{SA+10}:{SA+11}]")
        a(f"v_pk_add_f32 v[{M}:{M2}], v[{M}:{M2}], v[{SA+12}:{SA+13}]")
        a(f"v_pk_add_f32 v[{QB}:{QB+1}], v[{QB}:{QB+1}], v[{SA+14}:{SA+15}]")
        a(f"v_pk_add_f32 v[{M}:{M2}], v[{M}:{M2}], v[{QB}:{QB+1}]")
    else:
        a(f"v_add_f32 v{M}, v{SA}, v{SA+1}")
        a(f"v_add_f32 v{M2}, v{SA+2}, v{SA+3}")
        for r in range(4,16,2):
            a(f"v_add_f32 v{M}, v{M}, v{SA+r}")
            a(f"v_add_f32 v{M2}, v{M2}, v{SA+r+1}")
    a(f"v_add_f32 v{M}, v{M}, v{M2}")
    a(f"v_mov_b32 v{M2}, v{M}")
    a("s_nop 1")
    a(f"v_permlane32_swap_b32 v{M}, v{M2}")
    a("s_nop 1")
    a(f"v_add_f32 v{M}, v{M}, v{M2}")
    a(f"v_rcp_f32 v{M}, v{M}")
    a("s_nop 0")
    if OPT["pksm"]:
        a(f"v_mov_b32 v{M2}, v{M}")
        for r in range(0,16,2): a(f"v_pk_mul_f32 v[{SA+r}:{SA+r+1}], v[{SA+r}:{SA+r+1}], v[{M}:{M2}]")
    else:
        for r in range(16): a(f"v_mul_f32 v{SA+r}, v{SA+r}, v{M}")
    PX=QB; PY=QB+4
    for k,r in enumerate([0,2,8,10]): a(f"v_cvt_pk_bf16_f32 v{PX+k}, v{SA+r}, v{SA+r+1}")
    for k,r in enumerate([4,6,12,14]): a(f"v_cvt_pk_bf16_f32 v{PY+k}, v{SA+r}, v{SA+r+1}")
    if OPT["ownp"]:
        a(f"ds_write_b128 v{T+9}, v[{PX}:{PX+3}]")
        a(f"ds_write_b128 v{T+9}, v[{PY}:{PY+3}] offset:512")
        for k in range(8): a(f"v_or_b32 v{SA+k}, v{PX+k}, v{PMASK[k&3]}")
        PX = SA; PY = SA+4
    else:
        for k in range(8): a(f"v_or_b32 v{PX+k}, v{PX+k}, v{PMASK[k&3]}")
    a.vmop(f"buffer_store_dwordx4 v[{PX}:{PX+3}], v{T+8}, s[{S_WS}:{S_WS+3}], s{S_SOP} offen sc1", "Pst")
    a.vmop(f"buffer_store_dwordx4 v[{PY}:{PY+3}], v{T+8}, s[{S_WS}:{S_WS+3}], s{S_SOP} offen offset:512 sc1", "Pst")
    a(f"v_mov_b32 v{T+9}, 0")

    def flag_store(tagname, soff, off=0):
        a("s_mov_b64 exec, 1")
        a.vmop(f"buffer_store_dword v{VTG}, v{T+9}, s[{S_WS}:{S_WS+3}], s{soff} offen offset:{off} sc1", tagname)
        a("s_mov_b64 exec, -1")
    def mb_add(tp):
        a("s_mov_b64 exec, 1")
        a.ds(f"ds_add_u32 v{T+4}, v{T+2} offset:{4*tp}", "mb")
        a("s_mov_b64 exec, -1")
    def pkreg(u, t): return (STASH+12*t+4*u) if u < 3 else (PK+4*(t&1))
    def outreg(it, t): return RB + 12*t + 4*it
    dsq = []
    for f in range(144):
        g, ks = divmod(f, 4); u, t = divmod(g, 9); sl = BF + 4*(f % NBF)
        if t == 0:
            for st in range(2):
                pre = None; ad = AV+ks
                if u&1:
                    ad = T+5
                    if st == 0: pre = f"v_add_u32 v{T+5}, {(base(12)-base(10)) & 0xffffffff}, v{AV+ks}"
                dsq.append([f-4 if u else -1, u, f"ds_read_b128 a[{VF+16*st+4*ks}:{VF+16*st+4*ks+3}], v{ad} offset:{st*4096}", f"V{u}_{ks}", pre, f])
        for h in range(2):
            dsq.append([f-NBF, u, f"ds_read_b64_tr_b16 a[{sl+2*h}:{sl+2*h+1}], v{AO+(u&1)} offset:{ks*9216+h*2304+t*32}", f"W{f}", None, f])
    state = dict(pairs=-1, head=0)
    def ds_pop(n=1):
        k = 0
        while k < n:
            cand = [e for e in dsq if e[0] <= state["pairs"] and e[1] <= state["head"]]
            if not cand: break
            e = min(cand, key=lambda e: e[5]); dsq.remove(e)
            if e[4]: a(e[4])
            a.ds(e[2], e[3]); k += 1
        return k
    vq = []
    nlab = [0]
    def v_pop(n):
        for _ in range(n):
            if not vq: return
            x = vq.pop(0)
            if isinstance(x, tuple):
                if OPT["own"]:
                    k = nlab[0]; nlab[0] += 1
                    a(f"s_cbranch_{'vccnz' if x[2] == 0 else 'scc1'} L_ow{k}")
                    a.vmop(x[0], x[1])
                    a.label(f"L_ox{k}")
                    a.ool += [f"L_ow{k}:", "    " + x[3], f"    s_branch L_ox{k}"]
                else: a.vmop(x[0], x[1])
            else: a(x)
    def q_cvt(g):
        u, t = divmod(g, 9)
        w = VW+8*(g&1); p = pkreg(u, t)
        for k in range(4): vq.append(f"v_cvt_pk_bf16_f32 v{p+k}, v{w+2*k}, v{w+2*k+1}")
    def q_pair(tp):
        for it in range(2):
            so = S_PW if it == 0 else S_PW1
            d = RB + 12*(2*tp+it) + 8
            for h in range(2):
                o = outreg(it, 2*tp+h)
                vq.append(f"v_cvt_pk_bf16_f32 v{d+2*h}, v{o}, v{o+1}")
                vq.append(f"v_cvt_pk_bf16_f32 v{d+2*h+1}, v{o+2}, v{o+3}")
            vq.append((f"buffer_store_dwordx4 v[{d}:{d+3}], v{VL}, s[{S_WS}:{S_WS+3}], s{so} offen offset:{1024*tp} sc1", f"part{tp}", it, f"ds_write_b128 v{FPA}, v[{d}:{d+3}] offset:{1024*tp}"))
    def q_t8():
        for it in range(2):
            so = S_PW if it == 0 else S_PW1
            d = RB + 12*8 + 8 + 2*it
            o = outreg(it, 8)
            vq.append(f"v_cvt_pk_bf16_f32 v{d}, v{o}, v{o+1}")
            vq.append(f"v_cvt_pk_bf16_f32 v{d+1}, v{o+2}, v{o+3}")
            vq.append((f"buffer_store_dwordx2 v[{d}:{d+1}], v{T+8}, s[{S_WS}:{S_WS+3}], s{so} offen sc1", "part3", it, f"ds_write_b64 v{TAGP}, v[{d}:{d+1}]"))
    def vw(g, ks, st):
        f = 4*g+ks; sl = BF + 4*(f % NBF)
        w = VW+8*(g&1)+4*st
        c = "0" if ks == 0 else f"v[{w}:{w+3}]"
        a(f"v_mfma_f32_16x16x32_bf16 v[{w}:{w+3}], a[{VF+16*st+4*ks}:{VF+16*st+4*ks+3}], a[{sl}:{sl+3}], {c}")
    def pv1(u, t, it):
        p = pkreg(u, t); o = outreg(it, t)
        c = "0" if u == 0 else f"v[{o}:{o+3}]"
        a(f"v_mfma_f32_16x16x32_bf16 v[{o}:{o+3}], v[{p}:{p+3}], a[{PF+8*u+4*it}:{PF+8*u+4*it+3}], {c}")
    a("s_barrier")
    a.stamp(2)
    a.lq = []
    ds_pop(8+2*NBF)
    a(f"v_lshlrev_b32 v{T+8}, 3, v1")
    a(f"v_add_u32 v{T+8}, 4096, v{T+8}")
    a(f"v_mov_b32 v{T+4}, {MBOX}")
    a(f"v_mov_b32 v{T+2}, 1")
    a(f"s_lshl_b32 s{S_T0}, s{S_RG}, 2")
    a(f"s_add_u32 s{S_T0}, s{S_T0}, s{S_W}")
    a(f"s_lshl_b32 s{S_T0}, s{S_T0}, 4")
    a(f"s_add_u32 s{S_T0}, s{S_T0}, s{S_SPLIT}")
    a(f"s_lshl_b32 s{S_T0}, s{S_T0}, 7")
    a(f"s_add_u32 s{S_T0}, s{S_T0}, {FR_BASE}")
    a(f"v_lshl_add_u32 v{T+3}, v1, 10, s{S_T0}")
    a(f"v_add_u32 v{FPA}, {base(15)}, v{VL}")
    a(f"v_add_u32 v{TAGP}, {base(15)}, v{T+8}")
    a(f"s_cmp_eq_u32 s{S_W}, s{S_HQ}")
    a(f"s_cselect_b32 s{S_OWN}, s{S_KQ}, 7")
    a(f"s_lshl_b32 s{S_SOK}, s{S_W}, 11")
    a(f"s_add_u32 s{S_SOK}, s{S_SOK}, {OPB}")
    a(f"v_add_u32 v{T+7}, s{S_LW8}, v{VL}")
    a(f"v_add_u32 v{T+7}, {base(14)}, v{T+7}")
    MKS = OPT["mks"]
    for g in range(36):
        u, t = divmod(g, 9)
        haspv = (u == 3 and t > 0)
        for ks in range(4):
            f = 4*g+ks
            assert not any(e[5] <= f for e in dsq), (f, dsq[0])
            a.wait_lg(f"W{f}", f"V{u}_{ks}")
            extra_ds = 2 if (t == 0 or (t == 8 and ks > MKS)) else 1
            vw(g, ks, 0)
            ds_pop(extra_ds)
            if not haspv and ks >= 2: v_pop(1)
            vw(g, ks, 1)
            state["pairs"] = f
            if u < 3 and t == 8 and ks == MKS:
                assert not any(e[1] <= u for e in dsq)
                a.wait_lg0()
                a("s_barrier")
                a.stamp(2)
                state["head"] = u+1
                ds_pop(6)
            else:
                ds_pop(extra_ds)
            if not haspv and ks >= 2: v_pop(1)
            if g > 0 and ks == 1 and not haspv: q_cvt(g-1)
            if g == 28 and ks == 0 and OPT["own"]:
                a(f"s_cmp_eq_u32 s{S_OWN}, 0")
                a("s_cselect_b64 vcc, -1, 0")
                a(f"s_cmp_eq_u32 s{S_OWN}, 1")
            if u == 3 and t == 0:
                if OPT["ownp"]:
                    a(f"s_add_u32 s{S_T1}, s{S_LW8}, {base(14) + 2048*ks}")
                    a(f"s_cmp_eq_u32 s{S_OU}, {ks}")
                    a(f"s_cselect_b32 s{S_T1}, s{S_SOK}, s{S_T1}")
                    a(f"v_add_u32 v{T+7}, s{S_T1}, v{VL}")
                for q in (2*ks, 2*ks+1):
                    off = 1024*(q&1) if OPT["ownp"] else 1024*q
                    a.ds(f"ds_read_b128 a[{PF+4*q}:{PF+4*q+3}], v{T+7} offset:{off}", f"P{q>>1}")
            if haspv:
                if t == 1: a.wait_lg(f"P{ks}")
                if ks == 1 and t in (3, 5, 7): q_pair((t-3)>>1)
                pv1(ks, t-1, 0); v_pop(2)
                if ks == 0: q_cvt(g-1)
                pv1(ks, t-1, 1)
                if ks < 3 or True: v_pop(2)
        assert not vq, (g, vq)
        if u < 3 and t == [OPT['r0pos'], OPT['r1pos'], OPT['rpos']][u]:
            a.wait_lg(f"V{u}_3")
            a("s_barrier")
    pv1(0, 8, 0); pv1(0, 8, 1); pv1(1, 8, 0); pv1(1, 8, 1); pv1(2, 8, 0)
    q_cvt(35); v_pop(2)
    pv1(2, 8, 1); v_pop(2)
    q_pair(3)
    v_pop(2)
    pv1(3, 8, 0); v_pop(2); pv1(3, 8, 1); v_pop(100)
    a("s_nop 0")
    q_t8(); v_pop(100)
    a.stamp(2)
    if OPT["two"]:
        a.wait_vm("part2")
        a("s_mov_b64 exec, 3")
        a(f"buffer_store_dword v{VTG}, v{T+3}, s[{S_WS}:{S_WS+3}], 0 offen sc1")
        a("s_mov_b64 exec, 1")
        a(f"ds_add_u32 v{T+4}, v{T+2}")
        a(f"s_mov_b32 s{S_T0}, {256<<10}")
        a("s_waitcnt vmcnt(1)")
        a("s_mov_b64 exec, 3")
        a(f"buffer_store_dword v{VTG}, v{T+3}, s[{S_WS}:{S_WS+3}], s{S_T0} offen sc1")
        a("s_mov_b64 exec, 1")
        a(f"ds_add_u32 v{T+4}, v{T+2} offset:8")
        a("s_mov_b64 exec, -1")
    else:
        a("s_waitcnt vmcnt(0)")
        a("s_mov_b64 exec, 3")
        a(f"buffer_store_dword v{VTG}, v{T+3}, s[{S_WS}:{S_WS+3}], 0 offen sc1")
        a("s_mov_b64 exec, 1")
        a(f"ds_add_u32 v{T+4}, v{T+2}")
        a("s_mov_b64 exec, -1")
    a.stamp(2)
    a(f"s_cmp_lg_u32 s{S_W}, 0")
    a("s_cbranch_scc1 L_cdone")
    LD=RB; RA=RB+32
    for r in range(4): a(f"v_mov_b32 v{RA+r}, 0")
    if OPT["own"]: member_offs(a)
    if OPT["two"]: mb_wait(a, "L_cgo", T+4, 12, 1)
    elif OPT["onep"]: mb_wait(a, "L_cgo", T+4, 4, 1)
    else: spin(a, "L_gw", FPA, TAGR, False, OPT["gsl"], OPT["apoll"])
    a.stamp()
    if OPT["own"]:
        for k in range(1, 8):
            a(f"buffer_load_dwordx2 v[{LD+2*k}:{LD+2*k+1}], v{T+8}, s[{S_WS}:{S_WS+3}], s{S_MO+k} offen sc1")
        a(f"ds_read_b64 v[{LD}:{LD+1}], v{TAGP}")
    else:
        for j in range(8):
            a(f"buffer_load_dwordx2 v[{LD+2*j}:{LD+2*j+1}], v{T+8}, s[{S_WS}:{S_WS+3}], s{S_RD} offen sc1")
            if j < 7: a(f"s_add_u32 s{S_RD}, s{S_RD}, {SLICE}")
    for j in range(8):
        a("s_waitcnt lgkmcnt(0)" if (j == 0 and OPT["own"]) else f"s_waitcnt vmcnt({7-j})")
        for d in range(2):
            a(f"v_dot2c_f32_bf16 v{RA+2*d}, s{S_ONE}, v{LD+2*j+d}")
            a(f"v_dot2c_f32_bf16 v{RA+2*d+1}, s{S_ONEH}, v{LD+2*j+d}")
    a("s_nop 2")
    a(f"v_cvt_pk_bf16_f32 v{LD}, v{RA}, v{RA+1}")
    a(f"v_cvt_pk_bf16_f32 v{LD+1}, v{RA+2}, v{RA+3}")
    a(f"buffer_store_dwordx2 v[{LD}:{LD+1}], v{T+6}, s[{S_OUT}:{S_OUT+3}], s{S_OA} offen{OSC}")
    a(f"s_lshl_b32 s{S_T2}, s2, 2")
    a(f"s_add_u32 s{S_T2}, s{S_T2}, {E_BASE}")
    flag_store("Eup", S_T2)
    a.label("L_cdone")
    stamp_out(a, 0)

def gen(a):
    kname = NAME + "_kernel"
    a.raw(f".globl {kname}"); a.raw(".p2align 8"); a.raw(f".type {kname},@function"); a.label(kname)
    a("s_load_dwordx16 s[36:51], s[0:1], 0")
    a("s_load_dwordx8 s[52:59], s[0:1], 64")
    a("s_load_dwordx2 s[60:61], s[0:1], 96")
    a("v_lshrrev_b32 v1, 6, v0")
    a("s_cmp_ge_u32 s2, 256")
    a("s_cbranch_scc1 L_end")
    a(f"v_readfirstlane_b32 s{S_T1}, v1")
    if OPT["stamp"]:
        a(f"v_mov_b32 v{V_STAMP}, 0")
        a.stamp(2)
    a(f"s_and_b32 s{S_T0}, s2, 7")
    a("v_and_b32 v1, 63, v0")
    a(f"s_lshr_b32 s{S_BR}, s{S_T0}, 2")
    a(f"s_and_b32 s{S_HQ}, s{S_T0}, 3")
    a(f"s_bfe_u32 s{S_RB}, s2, 0x20003")
    a(f"s_lshr_b32 s{S_HL}, s2, 5")
    a(f"s_and_b32 s{S_W}, s{S_T1}, 3")
    a(f"s_lshl_b32 s{S_H}, s{S_HQ}, 3")
    a(f"s_add_u32 s{S_H}, s{S_H}, s{S_HL}")
    a(f"s_lshl_b32 s{S_B}, s{S_RB}, 2")
    a(f"s_add_u32 s{S_B}, s{S_B}, s{S_W}")
    a(f"s_and_b32 s{S_CP}, s{S_HL}, 3")
    a(f"s_lshr_b32 s{S_KQ}, s{S_HL}, 2")
    a(f"s_lshl_b32 s{S_SPLIT}, s{S_HQ}, 1")
    a(f"s_add_u32 s{S_SPLIT}, s{S_SPLIT}, s{S_KQ}")
    a(f"s_lshl_b32 s{S_LW4}, s{S_W}, 12")
    a(f"s_lshl_b32 s{S_LW8}, s{S_W}, 13")
    a(f"s_cmp_ge_u32 s{S_T1}, 4")
    a("s_cbranch_scc1 L_loader")
    gen_compute_pro(a)
    a("s_branch L_compute")
    a.label("L_loader")
    gen_loader(a)
    a.raw(".p2align 6")
    a.label("L_compute")
    gen_compute(a)
    a.label("L_end")
    a("s_endpgm")
    for l in a.ool: a.raw(l)
    a.label('L_fin')

def main():
    a = Asm()
    hdr = open("cdna_kernels/%s.s.ref" % NAME).read().split("; Override")[0]
    a.raw(hdr.rstrip())
    a.raw(f"; @launch grid=(256,1,1) block=(512,1,1) lds={LDS_BYTES}")
    a.raw('.amdgcn_target "amdgcn-amd-amdhsa--gfx950"')
    a.raw(".text")
    gen(a)
    a.raw('.section .rodata,"a"')
    a.raw(".p2align 6")
    a.raw(f".amdhsa_kernel {NAME}_kernel")
    a.raw(f"  .amdhsa_next_free_vgpr {NARCH+NACC}")
    a.raw(f"  .amdhsa_next_free_sgpr 102")
    a.raw(f"  .amdhsa_accum_offset {NARCH}")
    a.raw("  .amdhsa_group_segment_fixed_size 0")
    a.raw("  .amdhsa_kernarg_size 104")
    a.raw("  .amdhsa_user_sgpr_count 2")
    a.raw("  .amdhsa_user_sgpr_kernarg_segment_ptr 1")
    a.raw("  .amdhsa_system_sgpr_workgroup_id_x 1")
    a.raw(".end_amdhsa_kernel")
    open(sys.argv[1], "w").write(a.text())
    if os.environ.get("SHOW"): print(schedule())
main()
```

```python
import sys, os
NAME = "concat_heads__gqa_block_cached__mha_block_cached__near_ridge"
OPT = dict(stamp=0, rot1=2, rot2=2, ntx=0, ntq=0, ntk=0, ntv=0, nto=0, prio=0, rpos=4, kpos=3, nbf=6,
           nodma=0, nomfma=0, nolds=0, cyc=0, epos=1, cpf=1, first=0, mbox=1, gsl=4, tlb=0, midw=0, cprio=0, w2=0, apoll=1, nfill=2, mks=0, pksm=1, onep=1, pearly=0, lprio2=1, r0pos=3, r1pos=4, two=0, osc=0, pp=0, ppsl=8, own=1, nost=0, nospin=0, dbgl=0, ownp=1, b9pos=3, wsoff=0)
for arg in sys.argv[2:]:
    k, v = arg.split("="); assert k in OPT, k; OPT[k] = int(v)

class Asm:
    def __init__(self):
        self.L=[]; self.vm=[]; self.nst=0; self.lq=[]; self.ool=[]
    def __call__(self, s):
        if OPT["nomfma"] and s.startswith("v_mfma"): return
        if OPT["nolds"] and s.startswith("ds_read"): return
        if OPT["nodma"] and s.endswith(" lds"): return
        if OPT["nost"] and s.startswith("buffer_store_dwordx") and ("s49 " in s or "s50 " in s): return
        self.L.append("    "+s)
    def label(self, n): self.L.append(n+":")
    def raw(self, s): self.L.append(s)
    def text(self): return "\n".join(self.L)+"\n"
    def vmop(self, s, tag): self(s); self.vm.append(tag)
    def wait_vm(self, *tags):
        idx = max((i for i,t in enumerate(self.vm) if t in tags), default=-1)
        assert idx >= 0, tags
        n = len(self.vm)-1-idx
        assert n <= 63
        self(f"s_waitcnt vmcnt({n})")
    def ds(self, s, tag): self(s); self.lq.append(tag)
    def wait_lg(self, *tags):
        idx = max((i for i,t in enumerate(self.lq) if t in tags), default=-1)
        if idx < 0: return
        n = min(15, len(self.lq)-1-idx)
        self(f"s_waitcnt lgkmcnt({n})")
        self.lq = self.lq[len(self.lq)-n:] if n else []
    def wait_lg0(self):
        self("s_waitcnt lgkmcnt(0)"); self.lq = []
    def stamp(self, lvl=1):
        if not OPT["stamp"]: return
        if OPT["stamp"] == 2 and lvl < 2: return
        self.lq = []
        self("s_memtime s[96:97]" if OPT["cyc"] else "s_memrealtime s[96:97]")
        self("s_waitcnt lgkmcnt(0)")
        self(f"v_writelane_b32 v{V_STAMP}, s96, {self.nst}")
        self.nst += 1

SLOT = 36864
MBOX = 4*SLOT
OPB = 4*SLOT + 256
LDS_BYTES = 4*SLOT + 256 + 8192
KPOS = OPT["kpos"]
def pos_s1(t): return t if t < KPOS else t+1
def base(pos): return (pos % 4)*SLOT
P_BASE = 0
SLICE = 4608
PART_BASE = 2<<20
E_BASE = 15<<20
FP_BASE = E_BASE + 4096
FR_BASE = 14<<20
STAMP_BASE = 13<<20
STAMP_BASE = 16<<20
WS_USED = 17<<20
LCG_A = 1664525; LCG_C = 1013904223
SPIN_MAX = 1<<15

S_X=8; S_WQ=12; S_K=16; S_WS=20; S_V=24; S_WO=28; S_OUT=32
S_W=62; S_BR=63; S_HQ=64; S_RB=65; S_HL=66; S_H=67; S_B=68; S_SPLIT=69
S_T0=70; S_T1=71; S_T2=72; S_T3=73
S_SOX=74; S_SOQ=75; S_SOK=76; S_C=77; S_SOP=78; S_LWO=79; S_CP=80; S_KQ=81; S_LW4=82; S_LW8=83
S_SOV=[84,85,86,87]; S_SOW=[88,89,90,91]; S_SPU=[92,93,94,95]
S_TAG=3; S_CNT=4; S_CH=5; S_RG=6; S_PG=7
S_CC=52
S_OWN=54
S_TJ=36
S_FR=44; S_RD=45; S_OA=46; S_ONE=47; S_ONEH=48; S_PW=49; S_PW1=50
AX=2; AQ=10; VW=2; PK=18; T=26; AV=36; AO=40; VL=42; TAGP=43; TAGR=44; FPA=45; VTG=46; V_STAMP=47
RB=48
ACC=RB; QB=RB+64; SA=RB+96
STASH=RB+12
NARCH=168
VX=2; VQ=6; VK=10; VO=14; FRA=45
NBF=OPT["nbf"]
FA=0; FB=16; KF=32; PF=0; BF=32; VF=32+4*NBF; NACC=VF+32

OSC = ["", " sc1", " nt", " sc0 sc1"][OPT["osc"]]
def nt(k): return " nt" if OPT[k] else ""

def srd(a, b, lo, hi, nrec):
    if lo == 60 and OPT["wsoff"]:
        a(f"s_add_u32 s{b}, s{lo}, {OPT['wsoff'] << 20}")
        a(f"s_addc_u32 s{b+1}, s{hi}, 0")
        a(f"s_and_b32 s{b+1}, s{b+1}, 0xffff")
    else:
        a(f"s_mov_b32 s{b}, s{lo}")
        a(f"s_and_b32 s{b+1}, s{hi}, 0xffff")
    a(f"s_mov_b32 s{b+2}, {nrec}")
    a(f"s_mov_b32 s{b+3}, 0x20000")

def kv_soffset(a, dst, head_s):
    a(f"s_lshl_b32 s{S_T0}, s{S_B}, 4")
    a(f"s_lshr_b32 s{S_T1}, s{head_s}, 1")
    a(f"s_add_u32 s{S_T0}, s{S_T0}, s{S_T1}")
    a(f"s_lshl_b32 s{S_T1}, s{S_B}, 5")
    a(f"s_add_u32 s{S_T1}, s{S_T1}, s{head_s}")
    a(f"s_cmp_eq_u32 s{S_BR}, 0")
    a(f"s_cselect_b32 s{dst}, s{S_T0}, s{S_T1}")
    a(f"s_lshl_b32 s{dst}, s{dst}, 13")

ORD2 = {0: [[0,1,2,3]]*4, 1: [[0,1,2,3],[1,2,3,0],[2,3,0,1],[3,0,1,2]],
        2: [[0,1,2,3],[1,0,2,3],[0,2,1,3],[0,1,3,2]],
        3: [[0,1,2,3],[1,0,3,2],[0,1,2,3],[1,0,3,2]],
        4: [[0,2,1,3],[1,0,2,3],[0,1,3,2],[1,3,0,2]]}[OPT["rot2"]]
S_OU = 101
def own_pos(a):
    tab = sum(ORD2[j].index(c) << (2*(4*j+c)) for j in range(4) for c in range(4))
    a(f"s_add_u32 s{S_T2}, s{S_RB}, s{S_CP}")
    a(f"s_and_b32 s{S_T2}, s{S_T2}, 3")
    a(f"s_lshl_b32 s{S_T2}, s{S_T2}, 2")
    a(f"s_add_u32 s{S_T2}, s{S_T2}, s{S_CP}")
    a(f"s_lshl_b32 s{S_T2}, s{S_T2}, 1")
    a(f"s_lshr_b32 s{S_OU}, {tab}, s{S_T2}")
    a(f"s_and_b32 s{S_OU}, s{S_OU}, 3")

def head_u(a, u):
    tab = sum(ORD2[j][u] << (2*j) for j in range(4))
    a(f"s_lshl_b32 s{S_T3}, s{S_SPLIT}, 2")
    if OPT["rot2"]:
        a(f"s_add_u32 s{S_T2}, s{S_RB}, s{S_CP}")
        a(f"s_and_b32 s{S_T2}, s{S_T2}, 3")
        a(f"s_lshl_b32 s{S_T2}, s{S_T2}, 1")
        a(f"s_lshr_b32 s{S_T2}, {tab}, s{S_T2}")
        a(f"s_and_b32 s{S_T2}, s{S_T2}, 3")
        a(f"s_add_u32 s{S_T3}, s{S_T3}, s{S_T2}")
    elif u: a(f"s_add_u32 s{S_T3}, s{S_T3}, {u}")

def rgroup(a):
    a(f"s_lshl_b32 s{S_RG}, s{S_BR}, 2")
    a(f"s_add_u32 s{S_RG}, s{S_RG}, s{S_RB}")
    a(f"s_lshl_b32 s{S_RG}, s{S_RG}, 2")
    a(f"s_add_u32 s{S_RG}, s{S_RG}, s{S_CP}")

def e_addr_r(a, dst, t):
    a(f"s_and_b32 s{S_T0}, s2, 0x7c")
    a(f"v_bfe_u32 v{dst}, v1, 1, 2")
    a(f"v_and_b32 v{t}, 1, v1")
    a(f"v_lshl_add_u32 v{dst}, v{t}, 7, v{dst}")
    a(f"v_add_u32 v{dst}, s{S_T0}, v{dst}")
    a(f"v_lshlrev_b32 v{dst}, 2, v{dst}")

def lcg(a, v):
    a(f"s_mov_b32 s{S_T0}, {LCG_A}")
    a(f"v_mul_lo_u32 v{v}, v{v}, s{S_T0}")
    a(f"v_add_u32 v{v}, {LCG_C}, v{v}")

def red_scalars(a):
    a(f"s_lshl_b32 s{S_T0}, s{S_RG}, 3")
    a(f"s_add_u32 s{S_T0}, s{S_T0}, s{S_SPLIT}")
    a(f"s_mul_i32 s{S_RD}, s{S_T0}, {8*SLICE}")
    a(f"s_add_u32 s{S_RD}, s{S_RD}, {PART_BASE}")
    a(f"s_lshl_b32 s{S_T0}, s{S_W}, 10")
    a(f"s_add_u32 s{S_RD}, s{S_RD}, s{S_T0}")
    a(f"s_lshl_b32 s{S_OA}, s{S_RB}, 3")
    a(f"s_add_u32 s{S_OA}, s{S_OA}, s{S_SPLIT}")
    a(f"s_mul_i32 s{S_OA}, s{S_OA}, {16*2304}")
    a(f"s_mul_i32 s{S_T0}, s{S_BR}, 1152")
    a(f"s_add_u32 s{S_OA}, s{S_OA}, s{S_T0}")
    a(f"s_mul_i32 s{S_T0}, s{S_CP}, 288")
    a(f"s_add_u32 s{S_OA}, s{S_OA}, s{S_T0}")
    a(f"s_mov_b32 s{S_ONE}, 0x3f80")
    a(f"s_mov_b32 s{S_ONEH}, 0x3f800000")

def stamp_out(a, widx):
    if not OPT["stamp"]: return
    a("s_waitcnt vmcnt(0)")
    a.stamp(2)
    a(f"s_lshl_b32 s{S_T2}, s2, 3")
    a(f"s_add_u32 s{S_T2}, s{S_T2}, s{S_W}")
    if widx: a(f"s_add_u32 s{S_T2}, s{S_T2}, 4")
    a(f"s_lshl_b32 s{S_T2}, s{S_T2}, 8")
    a(f"s_add_u32 s{S_T2}, s{S_T2}, {STAMP_BASE}")
    a(f"v_lshlrev_b32 v{T}, 2, v1")
    a(f"buffer_store_dword v{V_STAMP}, v{T}, s[{S_WS}:{S_WS+3}], s{S_T2} offen")

def spin(a, lbl, addr, tag, first_loaded, sleep=False, atomic=False):
    a(f"s_mov_b32 s{S_CNT}, 0")
    if first_loaded: a(f"s_branch {lbl}_chk")
    a.label(f"{lbl}_poll")
    if sleep: a(f"s_sleep {sleep}")
    if atomic:
        a(f"v_mov_b32 v{T+7}, 0")
        a("s_mov_b64 exec, 0xff")
        a(f"buffer_atomic_or v{T+7}, v{addr}, s[{S_WS}:{S_WS+3}], 0 offen sc0 sc1")
    else:
        a(f"buffer_load_dword v{T+7}, v{addr}, s[{S_WS}:{S_WS+3}], 0 offen sc1")
    a("s_waitcnt vmcnt(0)")
    a.label(f"{lbl}_chk")
    a(f"v_cmp_ne_u32 vcc, v{T+7}, v{tag}")
    a(f"s_add_u32 s{S_CNT}, s{S_CNT}, 1")
    a(f"s_cmp_ge_u32 s{S_CNT}, {SPIN_MAX}")
    a(f"s_cbranch_scc1 {lbl}_done")
    a("s_nop 1")
    a(f"s_cbranch_vccnz {lbl}_poll")
    a.label(f"{lbl}_done")
    if atomic: a("s_mov_b64 exec, -1")

def mb_wait(a, lbl, addr_v, off, val):
    a(f"s_mov_b32 s{S_CNT}, 0")
    a.label(lbl)
    a(f"s_sleep {8 if OPT['nospin'] else 1}")
    a(f"ds_read_b32 v{T+1}, v{addr_v} offset:{off}")
    a(f"s_add_u32 s{S_CNT}, s{S_CNT}, 1")
    a("s_waitcnt lgkmcnt(0)")
    a(f"v_readfirstlane_b32 s{S_T0}, v{T+1}")
    a(f"s_cmp_ge_u32 s{S_CNT}, {SPIN_MAX*16}")
    a(f"s_cbranch_scc1 {lbl}_done")
    a(f"s_cmp_lt_u32 s{S_T0}, {val}")
    a(f"s_cbranch_scc1 {lbl}")
    a.label(f"{lbl}_done")

S_MO = 84
def member_offs(a):
    for k in range(1, 8):
        a(f"s_add_u32 s{S_T0}, s{S_SPLIT}, {k}")
        a(f"s_and_b32 s{S_T0}, s{S_T0}, 7")
        a(f"s_mul_i32 s{S_T0}, s{S_T0}, {SLICE}")
        a(f"s_add_u32 s{S_MO+k}, s{S_T0}, s{S_RD}")

def schedule():
    seq = []
    nxt = 2
    def free_upto(p):
        nonlocal nxt
        r = list(range(nxt, min(p+4, 17)+1)); nxt = max(nxt, min(p+4, 17)+1); return r
    for t in range(9):
        need = [pos_s1(t)] + ([KPOS] if t == KPOS else [])
        cons = pos_s1(t-1) if t > 0 else -1
        if t == KPOS: cons = KPOS-1
        seq.append((need, free_upto(cons)))
    if OPT["b9pos"] == 3:
        seq.append(None)
        seq.append(([10, 11], free_upto(9)))
    else:
        seq.append(([], free_upto(9)))
        seq.append(([10, 11], []))
    seq.append(([], free_upto(10)))
    seq.append(([12, 13], free_upto(11)))
    seq.append(([], free_upto(12)))
    seq.append(([14, 15], free_upto(13)))
    seq.append(([], []))
    seq.append(([16, 17], []))
    return seq

def gen_loader(a):
    a.vm = []; a.nst = 1
    if OPT["prio"]: a(f"s_setprio {OPT['prio']}")
    a(f"v_lshrrev_b32 v{T+1}, 4, v1")
    a(f"s_lshl_b32 s{S_T0}, s{S_W}, 4")
    a(f"v_add_u32 v{T+3}, s{S_T0}, v{T+1}")
    a(f"v_lshlrev_b32 v{T+3}, 13, v{T+3}")
    a(f"v_and_b32 v{T+4}, 15, v1")
    a(f"v_lshlrev_b32 v{T+5}, 2, v{T+1}")
    a(f"v_xor_b32 v{T+4}, v{T+4}, v{T+5}")
    a(f"v_lshl_add_u32 v{VQ}, v{T+4}, 4, v{T+3}")
    for j in range(1,4):
        a(f"v_add_u32 v{VQ+j}, {31744*j}, v{VQ}")
    a(f"v_lshrrev_b32 v{T}, 3, v1")
    a(f"v_and_b32 v{T+2}, 7, v1")
    a(f"s_lshl_b32 s{S_T0}, s{S_W}, 5")
    a(f"v_add_u32 v{T+3}, s{S_T0}, v{T}")
    a(f"v_mul_u32_u24 v{T+3}, 1152, v{T+3}")
    a(f"v_xor_b32 v{T+2}, v{T+2}, v{T+1}")
    a(f"v_lshl_add_u32 v{VX}, v{T+2}, 4, v{T+3}")
    a(f"v_xor_b32 v{T+2}, 4, v{T+2}")
    a(f"v_lshl_add_u32 v{VX+1}, v{T+2}, 4, v{T+3}")
    a(f"v_add_u32 v{VX+1}, 8192, v{VX+1}")
    a(f"v_add_u32 v{VX+2}, 16384, v{VX}")
    a(f"v_add_u32 v{VX+3}, 16384, v{VX+1}")
    a(f"s_mul_i32 s{S_SOX}, s{S_RB}, 147456")
    a(f"s_lshl_b32 s{S_SOQ}, s{S_H}, 8")
    ORD1 = {0: [[0,1,2,3,4,5,6,7,8]]*4,
            1: [[0,1,4,2,3,5,8,6,7],[1,0,2,5,3,4,6,7,8],[2,0,1,3,6,4,5,7,8],[0,3,1,2,4,7,5,6,8]],
            2: [[0,1,2,4,3,5,6,8,7],[1,0,2,3,5,4,6,7,8],[0,2,1,3,4,6,5,7,8],[0,1,3,2,4,5,7,6,8]],
            3: [[0,4,1,2,3,8,5,6,7],[1,0,5,2,3,4,6,7,8],[2,0,1,6,3,4,5,7,8],[3,0,1,2,7,4,5,6,8]],
            5: [[0,2,1,3,5,4,6,8,7],[1,0,2,4,3,5,7,6,8],[0,1,3,2,4,5,6,7,8],[0,1,2,3,4,6,5,7,8]],
            6: [[0,2,1,4,3,6,5,8,7],[1,0,3,2,5,4,7,6,8],[0,1,2,3,4,5,6,7,8],[0,1,2,3,4,5,6,7,8]],
            7: [[0,1,2,4,3,5,6,8,7],[1,0,2,3,5,4,6,7,8],[0,2,1,3,4,6,5,7,8],[0,1,3,2,4,5,7,6,8]]}[OPT["rot1"]]
    pack = lambda o: sum(c << (4*i) for i, c in enumerate(o))
    a(f"s_{'add' if OPT['rot1'] >= 5 else 'sub'}_u32 s{S_T0}, s{S_RB}, s{S_HL}")
    a(f"s_and_b32 s{S_T0}, s{S_T0}, 3")
    a(f"s_mov_b32 s98, {pack(ORD1[0]) & 0xffffffff}")
    a(f"s_mov_b32 s99, {pack(ORD1[0]) >> 32}")
    for j in range(1, 4):
        if ORD1[j] != ORD1[0]:
            a(f"s_cmp_eq_u32 s{S_T0}, {j}")
            a(f"s_cselect_b32 s98, {pack(ORD1[j]) & 0xffffffff}, s98")
            a(f"s_cselect_b32 s99, {pack(ORD1[j]) >> 32}, s99")
    for b_, n_ in ((S_X, 589824), (S_WQ, 4718592)):
        a(f"s_mov_b32 s{b_+2}, {n_}")
        a(f"s_mov_b32 s{b_+3}, 0x20000")
    a(f"s_cmp_eq_u32 s{S_BR}, 0")
    a("s_waitcnt lgkmcnt(0)")
    a(f"s_cselect_b32 s{S_WQ}, s42, s52")
    a(f"s_cselect_b32 s{S_WQ+1}, s43, s53")
    a(f"s_cselect_b32 s{S_X}, s36, s46")
    a(f"s_cselect_b32 s{S_X+1}, s37, s47")
    a(f"s_and_b32 s{S_WQ+1}, s{S_WQ+1}, 0xffff")
    a(f"s_and_b32 s{S_X+1}, s{S_X+1}, 0xffff")
    a.stamp()
    def dma_s1(t):
        p = pos_s1(t)
        a(f"s_bfe_u32 s{S_CH}, s{98 + (t>>3)}, {(4 << 16) | (4*(t&7))}")
        a(f"s_add_u32 m0, s{S_LW4}, {base(p)+16384}")
        a(f"s_lshl_b32 s{S_T2}, s{S_CH}, 19")
        a(f"s_add_u32 s{S_T2}, s{S_T2}, s{S_SOQ}")
        for j in range(4):
            a.vmop(f"buffer_load_dwordx4 v{VQ+j}, s[{S_WQ}:{S_WQ+3}], s{S_T2} offen offset:{1024*j}{nt('ntq')} lds", f"p{p}")
        a(f"s_add_u32 m0, s{S_LW4}, {base(p)}")
        a(f"s_lshl_b32 s{S_T2}, s{S_CH}, 7")
        a(f"s_add_u32 s{S_T2}, s{S_T2}, s{S_SOX}")
        for j in range(4):
            a.vmop(f"buffer_load_dwordx4 v{VX+j}, s[{S_X}:{S_X+3}], s{S_T2} offen offset:{1024*j}{nt('ntx')} lds", f"p{p}")
    def dma_kv(srdb, soff, p, ntk):
        for half in range(2):
            a(f"s_add_u32 m0, s{S_LW8}, {base(p) + half*4096}")
            if half == 0: a(f"s_mov_b32 s{S_T2}, s{soff}")
            else: a(f"s_add_u32 s{S_T2}, s{soff}, 4096")
            for j in range(4):
                a.vmop(f"buffer_load_dwordx4 v{VK+j}, s[{srdb}:{srdb+3}], s{S_T2} offen offset:{1024*j}{nt(ntk)} lds", f"p{p}")
    def dma_wo(u, p):
        for j in range(9):
            if j%4 == 0:
                a(f"s_add_u32 m0, s{S_LWO}, {base(p) + 4096*(j>>2)}")
                a("s_nop 0")
            a.vmop(f"buffer_load_dwordx4 v{VO+j}, s[{S_WO}:{S_WO+3}], s{S_SOW[u]} offen offset:{1024*(j&3)}{nt('nto')} lds", f"p{p}")
    def dma_item(p):
        if p == KPOS: dma_kv(S_K, S_SOK, p, "ntk")
        elif p < 10: dma_s1(p if p < KPOS else p-1)
        else:
            u = (p-10)>>1
            if p & 1: dma_wo(u, p)
            else: dma_kv(S_V, S_SOV[u], p, "ntv")
    def setup_kv():
        a(f"s_mov_b32 s{S_T3}, 4194304")
        a(f"s_cmp_eq_u32 s{S_BR}, 0")
        for b_, idx, na in ((S_K,1,2097152),(S_V,2,2097152),(S_WO,4,None)):
            la = 36+2*idx; lb = 46+2*idx
            a(f"s_cselect_b32 s{b_}, s{la}, s{lb}")
            a(f"s_cselect_b32 s{b_+1}, s{la+1}, s{lb+1}")
            if na: a(f"s_cselect_b32 s{b_+2}, {na}, s{S_T3}")
            else: a(f"s_mov_b32 s{b_+2}, 4718592")
            a(f"s_mov_b32 s{b_+3}, 0x20000")
        for b_ in (S_K, S_V, S_WO): a(f"s_and_b32 s{b_+1}, s{b_+1}, 0xffff")
        a(f"v_lshrrev_b32 v{T}, 4, v1")
        a(f"v_and_b32 v{T+1}, 15, v1")
        for j in range(4):
            a(f"v_add_u32 v{VK+j}, {4*j}, v{T}")
            a(f"v_xor_b32 v{VK+j}, v{VK+j}, v{T+1}")
            a(f"v_lshlrev_b32 v{VK+j}, 4, v{VK+j}")
            a(f"v_lshl_add_u32 v{VK+j}, v{T}, 8, v{VK+j}")
        kv_soffset(a, S_SOK, S_H)
    def setup_vo(js):
        a(f"s_movk_i32 s{S_T0}, 3641")
        for j in js:
            a(f"v_add_u32 v{T}, {64*j}, v1")
            a(f"v_mul_u32_u24 v{T+1}, s{S_T0}, v{T}")
            a(f"v_lshrrev_b32 v{T+1}, 16, v{T+1}")
            a(f"v_mul_u32_u24 v{T+2}, 18, v{T+1}")
            a(f"v_sub_u32 v{T+2}, v{T}, v{T+2}")
            a(f"v_and_b32 v{T+3}, 0x13, v{T+1}")
            a(f"v_bfe_u32 v{T+4}, v{T+1}, 2, 1")
            a(f"v_lshl_add_u32 v{T+3}, v{T+4}, 3, v{T+3}")
            a(f"v_bfe_u32 v{T+4}, v{T+1}, 3, 1")
            a(f"v_lshl_add_u32 v{T+3}, v{T+4}, 2, v{T+3}")
            a(f"v_mul_u32_u24 v{T+3}, 1152, v{T+3}")
            a(f"v_lshl_add_u32 v{VO+j}, v{T+2}, 4, v{T+3}")
            if j&3: a(f"v_subrev_u32 v{VO+j}, {1024*(j&3)}, v{VO+j}")
    def setup_heads(us):
        for u in us:
            head_u(a, u)
            a(f"s_lshl_b32 s{S_T2}, s{S_T3}, 2")
            a(f"s_add_u32 s{S_T2}, s{S_T2}, s{S_W}")
            a(f"s_mul_i32 s{S_SOW[u]}, s{S_T2}, {32*1152}")
            a(f"s_mul_i32 s{S_T2}, s{S_CP}, 288")
            a(f"s_add_u32 s{S_SOW[u]}, s{S_SOW[u]}, s{S_T2}")
            a(f"s_mov_b32 s{S_SPU[u]}, s{S_T3}")
            kv_soffset(a, S_SOV[u], S_T3)
    PL = RB; PE = RB+32
    def setup_p():
        if OPT["ownp"]: own_pos(a)
        else: a(f"s_mov_b32 s{S_OU}, 7")
        lcg(a, TAGP)
        a(f"v_lshlrev_b32 v{VL}, 4, v1")
        a(f"v_and_b32 v{T}, 3, v1")
        a(f"v_lshlrev_b32 v{T}, 1, v{T}")
        a(f"v_sub_u32 v{T}, 32, v{T}")
        a(f"s_lshl_b32 s{S_T0}, s{S_BR}, 4")
        a(f"s_add_u32 s{S_T0}, s{S_T0}, s{S_B}")
        a(f"s_lshl_b32 s{S_SOP}, s{S_T0}, 16")
        for u in range(4):
            a(f"s_and_b32 s{S_T0}, s{S_SPU[u]}, 3")
            a(f"v_readlane_b32 s{S_T1}, v{TAGP}, s{S_T0}")
            a(f"s_lshl_b32 s{S_SPU[u]}, s{S_SPU[u]}, 11")
            a(f"s_add_u32 s{S_SPU[u]}, s{S_SPU[u]}, s{S_SOP}")
            a(f"v_alignbit_b32 v{PE+2*u}, s{S_T1}, s{S_T1}, v{T}")
            a(f"v_lshlrev_b32 v{PE+2*u+1}, 1, v{PE+2*u}")
        a(f"s_mov_b32 s{S_C}, 0x07050301")
        a(f"s_mov_b32 s{S_TJ}, 0x7fff7fff")
        a(f"v_add_u32 v{T+6}, s{S_LW8}, v{VL}")
        a(f"v_add_u32 v{T+6}, {base(14)}, v{T+6}")
    lab = [0]
    def skip_own(uu, body):
        k = lab[0]; lab[0] += 1
        a(f"s_cmp_eq_u32 s{S_OU}, {uu}")
        a(f"s_cbranch_scc1 L_so{k}")
        body()
        a.label(f"L_so{k}")
    def p_loads(track):
        for uu in range(4):
            def body(uu=uu):
                for it in range(2):
                    ins = f"buffer_load_dwordx4 v[{PL+8*uu+4*it}:{PL+8*uu+4*it+3}], v{VL}, s[{S_WS}:{S_WS+3}], s{S_SPU[uu]} offen offset:{1024*it} sc1"
                    if track: a.vmop(ins, "Pld")
                    else: a(ins)
            skip_own(uu, body)
    def p_check():
        a.wait_vm("Pld")
        a(f"s_mov_b32 s{S_CNT}, 0")
        a("s_branch L_pc_chk")
        a.label("L_pc_retry")
        a("s_sleep 4")
        p_loads(False)
        a("s_waitcnt vmcnt(0)")
        a.label("L_pc_chk")
        a(f"v_mov_b32 v{T}, 0")
        for uu in range(4):
            def body(uu=uu):
                for q in (2*uu, 2*uu+1):
                    d = PL+4*q; e = PE+2*(q>>1)
                    a(f"v_perm_b32 v{T+1}, v{d+1}, v{d}, s{S_C}")
                    a(f"v_perm_b32 v{T+2}, v{d+3}, v{d+2}, s{S_C}")
                    a(f"v_xor_b32 v{T+1}, v{T+1}, v{e}")
                    a(f"v_xor_b32 v{T+2}, v{T+2}, v{e+1}")
                    a(f"v_or3_b32 v{T}, v{T}, v{T+1}, v{T+2}")
            skip_own(uu, body)
        a(f"v_and_b32 v{T}, 0x80808080, v{T}")
        a(f"v_cmp_ne_u32 vcc, 0, v{T}")
        a(f"s_add_u32 s{S_CNT}, s{S_CNT}, 1")
        a(f"s_cmp_ge_u32 s{S_CNT}, {SPIN_MAX}")
        a("s_cbranch_scc1 L_pc_done")
        a("s_nop 1")
        a("s_cbranch_vccnz L_pc_retry")
        a.label("L_pc_done")
    def p_write():
        for uu in range(4):
            def body(uu=uu):
                for q in (2*uu, 2*uu+1):
                    d = PL+4*q
                    for k in range(4): a(f"v_and_b32 v{d+k}, s{S_TJ}, v{d+k}")
                    a(f"ds_write_b128 v{T+6}, v[{d}:{d+3}] offset:{1024*q}")
            skip_own(uu, body)
        a("s_waitcnt lgkmcnt(0)")
    def setup_e():
        a(f"v_and_b32 v{T}, 3, v1")
        a(f"v_lshlrev_b32 v{T}, 2, v{T}")
        a(f"v_mov_b32 v{T+1}, 0")
        a(f"ds_write_b32 v{T}, v{T+1} offset:{0}") if False else None
        a(f"v_add_u32 v{T}, {MBOX}, v{T}")
        a(f"ds_write_b32 v{T}, v{T+1}")
        e_addr_r(a, T, T+1)
        a(f"s_mov_b32 s{S_T1}, {E_BASE}")
        a.vmop(f"buffer_load_dword v{TAGR}, v{T}, s[{S_WS}:{S_WS+3}], s{S_T1} offen sc1", "E")
        a(f"v_and_b32 v{T}, 3, v1")
        a(f"s_and_b32 s{S_T0}, s2, 0x9f")
        a(f"v_lshlrev_b32 v{T}, 5, v{T}")
        a(f"v_add_u32 v{T}, s{S_T0}, v{T}")
        a(f"v_lshlrev_b32 v{T}, 2, v{T}")
        a.vmop(f"buffer_load_dword v{TAGP}, v{T}, s[{S_WS}:{S_WS+3}], s{S_T1} offen sc1", "E")
        a("s_waitcnt lgkmcnt(0)")
    def setup_red():
        rgroup(a)
        red_scalars(a)
        lcg(a, TAGR)
        a(f"v_and_b32 v{T}, 7, v1")
        a(f"s_lshl_b32 s{S_T0}, s{S_RG}, 3")
        a(f"s_add_u32 s{S_T1}, s{S_T0}, s{S_SPLIT}")
        a(f"s_lshl_b32 s{S_T1}, s{S_T1}, 10")
        a(f"s_add_u32 s{S_T1}, s{S_T1}, {FR_BASE}")
        a(f"v_lshl_add_u32 v{FRA}, v{T}, 7, s{S_T1}")
        a(f"v_and_b32 v{T+8}, 15, v1")
        a(f"v_mul_u32_u24 v{T+8}, 2304, v{T+8}")
        a(f"v_bfe_u32 v{T+3}, v1, 4, 1")
        a(f"v_lshl_add_u32 v{T+8}, v{T+3}, 5, v{T+8}")
        a(f"v_bfe_u32 v{T+3}, v1, 5, 1")
        a(f"v_lshl_add_u32 v{T+8}, v{T+3}, 4, v{T+8}")
        a(f"s_lshl_b32 s{S_T0}, s{S_W}, 6")
        a(f"v_add_u32 v{T+8}, s{S_T0}, v{T+8}")
    dma_item(0); dma_item(1)
    setup_kv()
    srd(a, S_WS, 60, 61, WS_USED)
    srd(a, S_OUT, 56, 57, 1179648)
    a.stamp()
    extra = {1: lambda: (setup_e(), setup_heads([0])), 2: lambda: setup_vo([0,1,2]), 3: lambda: setup_vo([3,4,5]), 4: lambda: setup_vo([6,7,8]),
             5: lambda: (a(f"s_mul_i32 s{S_LWO}, s{S_W}, 9216"), setup_heads([1])), 6: lambda: setup_heads([2,3]), 10: setup_p, 12: setup_red}
    if OPT['pearly']: extra[14] = p_check; extra[15] = p_write
    else: extra[15] = lambda: (p_check(), p_write())
    for i,ent in enumerate(schedule()):
        if ent is None: continue
        need, iss = ent
        if need: a.wait_vm(*[f"p{s}" for s in need])
        a("s_barrier")
        if i == (13 if OPT['pearly'] == 1 else 14 if OPT['pearly'] == 0 else -1): p_loads(True)
        if i == 14 and OPT['lprio2']: a('s_setprio 1')
        for s in iss: dma_item(s)
        if i == 13 and OPT['pearly'] == 2: p_loads(True)
        if i in extra: extra[i]()
        a.stamp()
        if OPT["dbgl"] and i in (9, 11, 13):
            a("s_waitcnt vmcnt(0)")
            a.stamp()
    LD=RB; RA=RB+32
    for r in range(8): a(f"v_mov_b32 v{RA+r}, 0")
    a(f"v_mov_b32 v{T}, {MBOX}")
    if OPT["own"]:
        member_offs(a)
        a(f"s_lshl_b32 s{S_T0}, s{S_W}, 10")
        a(f"s_add_u32 s{S_T0}, s{S_T0}, {base(15)}")
        a(f"v_add_u32 v{T+9}, s{S_T0}, v{VL}")
    if OPT["two"]:
        a(f"s_cmp_eq_u32 s{S_W}, 3")
        a(f"s_cselect_b32 s{S_T2}, 8, 0")
        a(f"s_cselect_b32 s{S_T3}, {256<<10}, 0")
        a(f"v_add_u32 v{T}, s{S_T2}, v{T}")
        a(f"v_add_u32 v{FRA}, s{S_T3}, v{FRA}")
        a(f"s_and_b32 s{S_T2}, s{S_W}, 3")
        a(f"s_cmp_eq_u32 s{S_W}, 1")
        a("s_cbranch_scc1 L_lgo")
        a(f"s_cmp_eq_u32 s{S_W}, 2")
        a("s_cbranch_scc1 L_lgo")
        mb_wait(a, "L_mb", T, 0, 4)
        spin(a, "L_rw", FRA, TAGR, False, OPT["gsl"], OPT["apoll"])
        a(f"v_mov_b32 v{T+1}, 1")
        a(f"ds_write_b32 v{T}, v{T+1} offset:4")
        a("s_branch L_lred")
        a.label("L_lgo")
        mb_wait(a, "L_go", T, 4, 1)
        a.label("L_lred")
    elif OPT["onep"]:
        a(f"s_cmp_lg_u32 s{S_W}, 0")
        a("s_cbranch_scc1 L_lgo")
        mb_wait(a, "L_mb", T, 0, 4)
        if OPT["pp"]:
            a(f"s_mov_b32 s{S_CNT}, 0")
            a("s_mov_b64 exec, 0xff")
            a(f"v_mov_b32 v{T+7}, 0")
            a(f"buffer_atomic_or v{T+7}, v{FRA}, s[{S_WS}:{S_WS+3}], 0 offen sc0 sc1")
            a.label("L_rw_poll")
            for (x, y) in ((T+5, T+7), (T+7, T+5)):
                a(f"s_sleep {OPT['ppsl']}")
                a(f"v_mov_b32 v{x}, 0")
                a(f"buffer_atomic_or v{x}, v{FRA}, s[{S_WS}:{S_WS+3}], 0 offen sc0 sc1")
                a("s_waitcnt vmcnt(1)")
                a(f"v_cmp_ne_u32 vcc, v{y}, v{TAGR}")
                a(f"s_add_u32 s{S_CNT}, s{S_CNT}, 1")
                a("s_nop 3")
                a("s_cbranch_vccz L_rw_done")
            a(f"s_cmp_lt_u32 s{S_CNT}, {SPIN_MAX}")
            a("s_cbranch_scc1 L_rw_poll")
            a.label("L_rw_done")
            a("s_mov_b64 exec, -1")
        else:
            spin(a, "L_rw", FRA, TAGR, False, OPT["gsl"], OPT["apoll"])
        a(f"v_mov_b32 v{T+1}, 1")
        a(f"ds_write_b32 v{T}, v{T+1} offset:4")
        a("s_branch L_lred")
        a.label("L_lgo")
        mb_wait(a, "L_go", T, 4, 1)
        a.label("L_lred")
    else:
        mb_wait(a, "L_mb", T, 0, 4)
        spin(a, "L_rw", FRA, TAGR, False, OPT["gsl"], OPT["apoll"])
    a.stamp(2)
    def member_off(k):
        a(f"s_add_u32 s{S_T0}, s{S_SPLIT}, {k}")
        a(f"s_and_b32 s{S_T0}, s{S_T0}, 7")
        a(f"s_mul_i32 s{S_T0}, s{S_T0}, {SLICE}")
        a(f"s_add_u32 s{S_T0}, s{S_T0}, s{S_RD}")
    if OPT["own"]:
        for k in range(1, 8):
            a(f"buffer_load_dwordx4 v[{LD+4*k}:{LD+4*k+3}], v{VL}, s[{S_WS}:{S_WS+3}], s{S_MO+k} offen sc1")
        a(f"ds_read_b128 v[{LD}:{LD+3}], v{T+9}")
        for j in range(8):
            a("s_waitcnt lgkmcnt(0)" if j == 0 else f"s_waitcnt vmcnt({7-j})")
            for d in range(4):
                a(f"v_dot2c_f32_bf16 v{RA+2*d}, s{S_ONE}, v{LD+4*j+d}")
                a(f"v_dot2c_f32_bf16 v{RA+2*d+1}, s{S_ONEH}, v{LD+4*j+d}")
    else:
        for j in range(8):
            a(f"buffer_load_dwordx4 v[{LD+4*j}:{LD+4*j+3}], v{VL}, s[{S_WS}:{S_WS+3}], s{S_RD} offen sc1")
            if j < 7: a(f"s_add_u32 s{S_RD}, s{S_RD}, {SLICE}")
        for j in range(8):
            a(f"s_waitcnt vmcnt({7-j})")
            for d in range(4):
                a(f"v_dot2c_f32_bf16 v{RA+2*d}, s{S_ONE}, v{LD+4*j+d}")
                a(f"v_dot2c_f32_bf16 v{RA+2*d+1}, s{S_ONEH}, v{LD+4*j+d}")
    a("s_nop 2")
    for d in range(4): a(f"v_cvt_pk_bf16_f32 v{LD+d}, v{RA+2*d}, v{RA+2*d+1}")
    a("s_nop 1")
    a(f"v_permlane16_swap_b32 v{LD}, v{LD+2}")
    a(f"v_permlane16_swap_b32 v{LD+1}, v{LD+3}")
    a("s_nop 1")
    a(f"buffer_store_dwordx4 v[{LD}:{LD+3}], v{T+8}, s[{S_OUT}:{S_OUT+3}], s{S_OA} offen{OSC}")
    a.label("L_ldone")
    stamp_out(a, 1)
    a("s_endpgm")

def gen_compute_pro(a):
    a.vm = []; a.nst = 1
    if OPT["cprio"]: a(f"s_setprio {OPT['cprio']}")
    if OPT["cpf"]:
        a("s_getpc_b64 s[98:99]")
        a.label("L_pc")
        a(f"s_lshr_b32 s{S_T0}, s2, 3")
        a(f"s_mul_i32 s{S_T0}, s{S_T0}, 768")
        a(f"v_min_u32 v{T}, 5, v1")
        a(f"v_lshlrev_b32 v{T}, 7, v{T}")
        a(f"v_add_u32 v{T}, s{S_T0}, v{T}")
        a(f"v_min_u32 v{T}, L_fin-L_pc-4, v{T}")
        a(f"s_cmp_lg_u32 s{S_W}, 0")
        a("s_cbranch_scc1 L_nopf")
        a(f"global_load_dword v{T+7}, v{T}, s[98:99]")
        a.label("L_nopf")
    a(f"v_and_b32 v{T}, 31, v1")
    a(f"v_lshrrev_b32 v{T+1}, 5, v1")
    a(f"v_bfe_u32 v{T+2}, v1, 1, 3")
    a(f"v_xor_b32 v{T+2}, v{T+2}, v{T+1}")
    a(f"v_lshlrev_b32 v{T+2}, 4, v{T+2}")
    a(f"v_lshl_add_u32 v{T+2}, v{T}, 7, v{T+2}")
    a(f"v_add_u32 v{AX}, s{S_LW4}, v{T+2}")
    for ks in range(1,4): a(f"v_xor_b32 v{AX+ks}, {32*ks}, v{AX}")
    a(f"v_bfe_u32 v{T}, v1, 2, 2")
    a(f"v_lshl_add_u32 v{T+2}, v{T+1}, 3, v{T}")
    a(f"v_lshlrev_b32 v{T+2}, 8, v{T+2}")
    a(f"v_lshl_add_u32 v{T+2}, v{T}, 6, v{T+2}")
    a(f"v_bfe_u32 v{T+3}, v1, 4, 1")
    a(f"v_lshl_add_u32 v{T+2}, v{T+3}, 5, v{T+2}")
    a(f"v_and_b32 v{T+3}, 1, v1")
    a(f"v_lshl_add_u32 v{T+2}, v{T+3}, 4, v{T+2}")
    a(f"v_bfe_u32 v{T+3}, v1, 1, 1")
    a(f"v_lshl_add_u32 v{T+2}, v{T+3}, 3, v{T+2}")
    a(f"v_add_u32 v{AQ}, 16384, v{T+2}")
    for t in range(1,4): a(f"v_xor_b32 v{AQ+t}, {64*t}, v{AQ}")
    a.stamp()


def gen_compute(a):
    a.vm = []; a.nst = 2 if OPT['stamp'] == 1 else 1
    fill = []
    F = fill.append
    for ks in range(4): F(f"v_add_u32 v{AX+4+ks}, {2*SLOT}, v{AX+ks}")
    for t in range(4): F(f"v_add_u32 v{AQ+4+t}, {2*SLOT}, v{AQ+t}")
    class FA_:
        def __call__(self, s): F(s)
    fa = FA_()
    F("s_waitcnt lgkmcnt(0)")
    fill.pop()
    srd(fa, S_WS, 60, 61, WS_USED)
    srd(fa, S_OUT, 56, 57, 1179648)
    F(f"v_and_b32 v{T}, 31, v1")
    F(f"v_and_b32 v{T+2}, 15, v1")
    F(f"v_xor_b32 v{T+2}, v{T+2}, v{T+1}")
    F(f"v_lshlrev_b32 v{T+2}, 4, v{T+2}")
    F(f"v_lshl_add_u32 v{T+2}, v{T}, 8, v{T+2}")
    F(f"v_add_u32 v{T+9}, s{S_LW8}, v{T+2}")
    if base(KPOS) >= 65536-0: F(f"v_add_u32 v{T+9}, {base(KPOS)}, v{T+9}")
    e_addr_r(fa, T+3, T+4)
    F(f"s_mov_b32 s{S_T1}, {E_BASE}")
    F(("vm", f"buffer_load_dword v{TAGR}, v{T+3}, s[{S_WS}:{S_WS+3}], s{S_T1} offen sc1", "E"))
    rgroup(fa)
    F(f"v_lshrrev_b32 v{T}, 4, v1")
    F(f"v_and_b32 v{T+3}, 15, v1")
    F(f"v_xor_b32 v{T+2}, v{T}, v{T+3}")
    F(f"v_lshlrev_b32 v{T+2}, 4, v{T+2}")
    F(f"v_lshl_add_u32 v{T+2}, v{T+3}, 8, v{T+2}")
    F(f"v_add_u32 v{T+2}, {base(10)}, v{T+2}")
    F(f"v_add_u32 v{AV}, s{S_LW8}, v{T+2}")
    for ks in range(1,4): F(f"v_xor_b32 v{AV+ks}, {64*ks}, v{AV}")
    F(f"v_lshlrev_b32 v{VL}, 4, v1")
    F(f"v_lshlrev_b32 v{T}, 4, v{T+1}")
    F(f"v_bfe_u32 v{T+2}, v1, 4, 1")
    F(f"v_lshl_add_u32 v{T}, v{T+2}, 2, v{T}")
    F(f"v_bfe_u32 v{T+4}, v1, 2, 2")
    F(f"v_add_u32 v{T}, v{T}, v{T+4}")
    F(f"v_mul_u32_u24 v{T}, 288, v{T}")
    F(f"v_and_b32 v{T+4}, 3, v1")
    F(f"v_lshl_add_u32 v{T}, v{T+4}, 3, v{T}")
    F(f"v_add_u32 v{AO}, {base(11)}, v{T}")
    F(f"v_add_u32 v{AO+1}, {base(13)}, v{T}")
    F(f"v_lshlrev_b32 v{T+2}, 10, v{T+2}")
    F(f"v_lshl_add_u32 v{T+2}, v{T+1}, 8, v{T+2}")
    F(f"v_lshl_add_u32 v{T+8}, v{T+3}, 4, v{T+2}")
    F(f"v_mul_u32_u24 v{T+6}, 2304, v{T+3}")
    F(f"v_lshrrev_b32 v{T+2}, 4, v1")
    F(f"v_lshlrev_b32 v{T+2}, 3, v{T+2}")
    F(f"v_add_u32 v{T+2}, 256, v{T+2}")
    F(f"v_add_u32 v{T+6}, v{T+6}, v{T+2}")
    F(f"s_lshl_b32 s{S_T0}, s{S_BR}, 4")
    F(f"s_add_u32 s{S_T0}, s{S_T0}, s{S_B}")
    F(f"s_lshl_b32 s{S_SOP}, s{S_T0}, 16")
    F(f"s_lshl_b32 s{S_T0}, s{S_H}, 11")
    F(f"s_add_u32 s{S_SOP}, s{S_SOP}, s{S_T0}")
    F(f"s_mov_b32 s{S_C}, 0x3e0293ee")
    F(f"s_mov_b32 s{S_TJ}, 0x7fff7fff")
    F(f"s_mov_b32 s{S_CC}, 0x3e0293ee")
    F(f"s_mov_b32 s{S_CC+1}, 0x3e0293ee")
    F(f"s_lshl_b32 s{S_T0}, s{S_RG}, 2")
    F(f"s_add_u32 s{S_T0}, s{S_T0}, s{S_W}")
    F(f"s_lshl_b32 s{S_T0}, s{S_T0}, 4")
    F(f"s_add_u32 s{S_T0}, s{S_T0}, s{S_SPLIT}")
    F(f"s_mul_i32 s{S_PW}, s{S_T0}, {SLICE}")
    F(f"s_add_u32 s{S_PW}, s{S_PW}, {PART_BASE}")
    F(f"s_add_u32 s{S_PW1}, s{S_PW}, {8*SLICE}")
    red_scalars(fa)
    F(f"s_lshl_b32 s{S_T0}, s{S_W}, 10")
    F(f"s_sub_u32 s{S_RD}, s{S_RD}, s{S_T0}")
    fill2 = []
    PM = TAGP
    PMASK = [43, 45, PK+6, PK+7]
    def tags_setup():
        a.wait_vm("E")
        lcg(a, TAGR)
        a(f"v_and_b32 v{T}, 3, v1")
        a(f"v_readlane_b32 s{S_TAG}, v{TAGR}, s{S_SPLIT}")
        a(f"v_lshlrev_b32 v{T}, 1, v{T}")
        a(f"v_sub_u32 v{T}, 32, v{T}")
        a(f"v_mov_b32 v{VTG}, s{S_TAG}")
        a(f"v_alignbit_b32 v{T}, v{VTG}, v{VTG}, v{T}")
        a(f"v_lshlrev_b32 v{T+2}, 1, v{T}")
        a(f"v_and_b32 v{T}, 0x80808080, v{T}")
        a(f"v_and_b32 v{T+2}, 0x80808080, v{T+2}")
        a(f"s_mov_b32 s{S_T0}, 0x010c000c")
        a(f"s_mov_b32 s{S_T1}, 0x030c020c")
        a(f"v_perm_b32 v{PMASK[0]}, v{T}, v{T}, s{S_T0}")
        a(f"v_perm_b32 v{PMASK[1]}, v{T}, v{T}, s{S_T1}")
        a(f"v_perm_b32 v{PMASK[2]}, v{T+2}, v{T+2}, s{S_T0}")
        a(f"v_perm_b32 v{PMASK[3]}, v{T+2}, v{T+2}, s{S_T1}")
        if OPT["ownp"]:
            own_pos(a)
            a(f"s_lshl_b32 s{S_T0}, s{S_W}, 11")
            a(f"s_add_u32 s{S_T0}, s{S_T0}, {OPB}")
            a(f"v_add_u32 v{T+9}, s{S_T0}, v{T+8}")
    def filler(n):
        for _ in range(n):
            if not fill: return
            x = fill.pop(0)
            if isinstance(x, tuple): a.vmop(x[1], x[2])
            else: a(x)

    def rdB(st, ks, buf):
        slot = pos_s1(st)%4; s2 = (slot>>1)*4; off = (slot&1)*SLOT
        a.ds(f"ds_read_b128 a[{FB+4*buf}:{FB+4*buf+3}], v{AX+s2+ks} offset:{off}", f"B{st}_{ks}")
    def rdA(st, ks, t, buf):
        slot = pos_s1(st)%4; s2 = (slot>>1)*4; off = (slot&1)*SLOT + ks*4096
        a.ds(f"ds_read_b64_tr_b16 a[{FA+4*buf}:{FA+4*buf+1}], v{AQ+s2+t} offset:{off}", f"A{st}_{ks}_{t}")
        a.ds(f"ds_read_b64_tr_b16 a[{FA+4*buf+2}:{FA+4*buf+3}], v{AQ+s2+t} offset:{off+1024}", f"A{st}_{ks}_{t}")
    def mm32(st, ks, t, abuf, bbuf):
        a.wait_lg(f"B{st}_{ks}", f"A{st}_{ks}_{t}")
        c = "0" if (st == 0 and ks == 0) else f"v[{ACC+16*t}:{ACC+16*t+15}]"
        a(f"v_mfma_f32_32x32x16_bf16 v[{ACC+16*t}:{ACC+16*t+15}], a[{FA+4*abuf}:{FA+4*abuf+3}], a[{FB+4*bbuf}:{FB+4*bbuf+3}], {c}")
    def rdK(kk):
        koff = base(KPOS) if base(KPOS) < 65536 else 0
        a(f"v_xor_b32 v{T+5}, {32*kk}, v{T+9}")
        a.ds(f"ds_read_b128 a[{KF+4*kk}:{KF+4*kk+3}], v{T+5} offset:{koff}", f"K{kk}")
    a("s_waitcnt lgkmcnt(0)")
    if OPT["tlb"]:
        a(f"s_cmp_lg_u32 s{S_W}, 1")
        a("s_cbranch_scc1 L_notlb")
        kv_soffset(a, S_T2, S_H)
        a(f"s_cmp_eq_u32 s{S_BR}, 0")
        a(f"s_cselect_b32 s98, s38, s48")
        a(f"s_cselect_b32 s99, s39, s49")
        a(f"v_mov_b32 v{T}, s{S_T2}")
        a(f"global_load_dword v{T+7}, v{T}, s[98:99]")
        a(f"s_cmp_eq_u32 s{S_BR}, 0")
        a(f"s_cselect_b32 s98, s40, s50")
        a(f"s_cselect_b32 s99, s41, s51")
        a(f"global_load_dword v{T+7}, v{T}, s[98:99]")
        a(f"s_cselect_b32 s98, s44, s54")
        a(f"s_cselect_b32 s99, s45, s55")
        a(f"s_mul_i32 s{S_T0}, s{S_SPLIT}, 589824")
        a(f"v_and_b32 v{T}, 1, v1")
        a(f"v_mul_u32_u24 v{T}, 589820, v{T}")
        a(f"v_add_u32 v{T}, s{S_T0}, v{T}")
        a(f"global_load_dword v{T+7}, v{T}, s[98:99]")
        a(f"s_mul_i32 s{S_T0}, s{S_RB}, {128*2304}")
        a(f"v_mov_b32 v{T}, s{S_T0}")
        a(f"global_load_dword v{T+7}, v{T}, s[56:57]")
        a(f"v_and_b32 v{T}, 7, v1")
        a(f"v_lshlrev_b32 v{T}, 21, v{T}")
        a(f"v_add_u32 v{T}, {(2<<20)-4}, v{T}")
        a(f"global_load_dword v{T+7}, v{T}, s[60:61] sc1")
        a.label("L_notlb")
    a("s_barrier")
    a.stamp(2)
    rdB(0,0,0)
    for t in range(4): rdA(0,0,t,t)
    for st in range(8):
        for ks in range(3):
            for t in range(4):
                mm32(st, ks, t, t, ks&1)
                if t == 0: rdB(st, ks+1, (ks+1)&1)
                rdA(st, ks+1, t, t)
                if st == KPOS and ks < 2: rdK(4*ks+t)
                else: filler(OPT["nfill"] if st else 3)
            if st == 7 and ks == 1: tags_setup()
        mm32(st, 3, 0, 0, 1)
        mm32(st, 3, 1, 1, 1)
        a.wait_lg0()
        a("s_barrier")
        a.stamp()
        if st < 7:
            rdB(st+1, 0, 0); rdA(st+1, 0, 0, 0); rdA(st+1, 0, 1, 1)
            mm32(st, 3, 2, 2, 1); rdA(st+1, 0, 2, 2)
            mm32(st, 3, 3, 3, 1); rdA(st+1, 0, 3, 3)
        else:
            rdB(8, 0, 0); rdA(8, 0, 0, 0); rdA(8, 1, 0, 1); rdB(8, 2, 2)
            mm32(st, 3, 2, 2, 1); rdA(8, 2, 0, 2); rdB(8, 3, 3)
            mm32(st, 3, 3, 3, 1); rdB(8, 1, 1); rdA(8, 3, 0, 3)
    assert not fill, len(fill)
    def qcvt(t):
        for r in range(8): a(f"v_cvt_pk_bf16_f32 v{QB+8*t+r}, v{ACC+16*t+2*r}, v{ACC+16*t+2*r+1}")
    for t in range(4):
        for ks in range(4):
            mm32(8, ks, t, ks, ks)
            if t < 3: rdA(8, ks, t+1, ks)
            if t == 3 and ks == 1:
                a.wait_lg0()
                if OPT["b9pos"] == 0:
                    a("s_barrier")
                    a.stamp(2)
                a("s_nop 3")
                if OPT["b9pos"]: a("s_nop 0")
            if ks == 2 and t > 0: qcvt(t-1)
    for kk in range(8):
        if kk == 6: a("s_nop 0")
        c = "0" if kk == 0 else f"v[{SA}:{SA+15}]"
        a(f"v_mfma_f32_32x32x16_bf16 v[{SA}:{SA+15}], a[{KF+4*kk}:{KF+4*kk+3}], v[{QB+4*kk}:{QB+4*kk+3}], {c}")
        if kk == 5:
            a("s_nop 5")
            qcvt(3)
    if OPT["b9pos"] == 1:
        a("s_barrier"); a.stamp(2)
    a("s_nop 11")
    M=T+4; M2=T+5
    a(f"v_max3_f32 v{M}, v{SA}, v{SA+1}, v{SA+2}")
    a(f"v_max3_f32 v{M2}, v{SA+3}, v{SA+4}, v{SA+5}")
    a(f"v_max3_f32 v{M}, v{M}, v{SA+6}, v{SA+7}")
    a(f"v_max3_f32 v{M2}, v{M2}, v{SA+8}, v{SA+9}")
    a(f"v_max3_f32 v{M}, v{M}, v{SA+10}, v{SA+11}")
    a(f"v_max3_f32 v{M2}, v{M2}, v{SA+12}, v{SA+13}")
    a(f"v_max3_f32 v{M}, v{M}, v{SA+14}, v{SA+15}")
    a(f"v_max_f32 v{M}, v{M}, v{M2}")
    a(f"v_mov_b32 v{M2}, v{M}")
    a("s_nop 1")
    a(f"v_permlane32_swap_b32 v{M}, v{M2}")
    a("s_nop 1")
    a(f"v_max_f32 v{M}, v{M}, v{M2}")
    a(f"v_mul_f32 v{M}, s{S_C}, v{M}")
    if OPT["pksm"]:
        a(f"v_mov_b32 v{M2}, v{M}")
        a(f"s_mov_b32 s{S_C+1}, s{S_C}") if False else None
        for r in range(0,16,2): a(f"v_pk_fma_f32 v[{SA+r}:{SA+r+1}], v[{SA+r}:{SA+r+1}], s[{S_CC}:{S_CC+1}], v[{M}:{M2}] neg_lo:[0,0,1] neg_hi:[0,0,1]")
    else:
        for r in range(16): a(f"v_fma_f32 v{SA+r}, v{SA+r}, s{S_C}, -v{M}")
    for r in range(16): a(f"v_exp_f32 v{SA+r}, v{SA+r}")
    if OPT["b9pos"] == 2:
        a("s_barrier"); a.stamp(2)
    a("s_nop 0")
    if OPT["pksm"]:
        a(f"v_pk_add_f32 v[{M}:{M2}], v[{SA}:{SA+1}], v[{SA+2}:{SA+3}]")
        a(f"v_pk_add_f32 v[{QB}:{QB+1}], v[{SA+4}:{SA+5}], v[{SA+6}:{SA+7}]")
        a(f"v_pk_add_f32 v[{M}:{M2}], v[{M}:{M2}], v[{SA+8}:{SA+9}]")
        a(f"v_pk_add_f32 v[{QB}:{QB+1}], v[{QB}:{QB+1}], v[{SA+10}:{SA+11}]")
        a(f"v_pk_add_f32 v[{M}:{M2}], v[{M}:{M2}], v[{SA+12}:{SA+13}]")
        a(f"v_pk_add_f32 v[{QB}:{QB+1}], v[{QB}:{QB+1}], v[{SA+14}:{SA+15}]")
        a(f"v_pk_add_f32 v[{M}:{M2}], v[{M}:{M2}], v[{QB}:{QB+1}]")
    else:
        a(f"v_add_f32 v{M}, v{SA}, v{SA+1}")
        a(f"v_add_f32 v{M2}, v{SA+2}, v{SA+3}")
        for r in range(4,16,2):
            a(f"v_add_f32 v{M}, v{M}, v{SA+r}")
            a(f"v_add_f32 v{M2}, v{M2}, v{SA+r+1}")
    a(f"v_add_f32 v{M}, v{M}, v{M2}")
    a(f"v_mov_b32 v{M2}, v{M}")
    a("s_nop 1")
    a(f"v_permlane32_swap_b32 v{M}, v{M2}")
    a("s_nop 1")
    a(f"v_add_f32 v{M}, v{M}, v{M2}")
    a(f"v_rcp_f32 v{M}, v{M}")
    a("s_nop 0")
    if OPT["pksm"]:
        a(f"v_mov_b32 v{M2}, v{M}")
        for r in range(0,16,2): a(f"v_pk_mul_f32 v[{SA+r}:{SA+r+1}], v[{SA+r}:{SA+r+1}], v[{M}:{M2}]")
    else:
        for r in range(16): a(f"v_mul_f32 v{SA+r}, v{SA+r}, v{M}")
    PX=QB; PY=QB+4
    for k,r in enumerate([0,2,8,10]): a(f"v_cvt_pk_bf16_f32 v{PX+k}, v{SA+r}, v{SA+r+1}")
    for k,r in enumerate([4,6,12,14]): a(f"v_cvt_pk_bf16_f32 v{PY+k}, v{SA+r}, v{SA+r+1}")
    if OPT["ownp"]:
        a(f"ds_write_b128 v{T+9}, v[{PX}:{PX+3}]")
        a(f"ds_write_b128 v{T+9}, v[{PY}:{PY+3}] offset:512")
        for k in range(8): a(f"v_and_or_b32 v{SA+k}, v{PX+k}, s{S_TJ}, v{PMASK[k&3]}")
        PX = SA; PY = SA+4
    else:
        for k in range(8): a(f"v_or_b32 v{PX+k}, v{PX+k}, v{PMASK[k&3]}")
    a.vmop(f"buffer_store_dwordx4 v[{PX}:{PX+3}], v{T+8}, s[{S_WS}:{S_WS+3}], s{S_SOP} offen sc1", "Pst")
    a.vmop(f"buffer_store_dwordx4 v[{PY}:{PY+3}], v{T+8}, s[{S_WS}:{S_WS+3}], s{S_SOP} offen offset:512 sc1", "Pst")
    a(f"v_mov_b32 v{T+9}, 0")

    def flag_store(tagname, soff, off=0):
        a("s_mov_b64 exec, 1")
        a.vmop(f"buffer_store_dword v{VTG}, v{T+9}, s[{S_WS}:{S_WS+3}], s{soff} offen offset:{off} sc1", tagname)
        a("s_mov_b64 exec, -1")
    def mb_add(tp):
        a("s_mov_b64 exec, 1")
        a.ds(f"ds_add_u32 v{T+4}, v{T+2} offset:{4*tp}", "mb")
        a("s_mov_b64 exec, -1")
    def pkreg(u, t): return (STASH+12*t+4*u) if u < 3 else (PK+4*(t&1))
    def outreg(it, t): return RB + 12*t + 4*it
    dsq = []
    for f in range(144):
        g, ks = divmod(f, 4); u, t = divmod(g, 9); sl = BF + 4*(f % NBF)
        if t == 0:
            for st in range(2):
                pre = None; ad = AV+ks
                if u&1:
                    ad = T+5
                    if st == 0: pre = f"v_add_u32 v{T+5}, {(base(12)-base(10)) & 0xffffffff}, v{AV+ks}"
                dsq.append([f-4 if u else -1, u, f"ds_read_b128 a[{VF+16*st+4*ks}:{VF+16*st+4*ks+3}], v{ad} offset:{st*4096}", f"V{u}_{ks}", pre, f])
        for h in range(2):
            dsq.append([f-NBF, u, f"ds_read_b64_tr_b16 a[{sl+2*h}:{sl+2*h+1}], v{AO+(u&1)} offset:{ks*9216+h*2304+t*32}", f"W{f}", None, f])
    state = dict(pairs=-1, head=0)
    def ds_pop(n=1):
        k = 0
        while k < n:
            cand = [e for e in dsq if e[0] <= state["pairs"] and e[1] <= state["head"]]
            if not cand: break
            e = min(cand, key=lambda e: e[5]); dsq.remove(e)
            if e[4]: a(e[4])
            a.ds(e[2], e[3]); k += 1
        return k
    vq = []
    nlab = [0]
    def v_pop(n):
        for _ in range(n):
            if not vq: return
            x = vq.pop(0)
            if isinstance(x, tuple):
                if OPT["own"]:
                    k = nlab[0]; nlab[0] += 1
                    a(f"s_cbranch_{'vccnz' if x[2] == 0 else 'scc1'} L_ow{k}")
                    a.vmop(x[0], x[1])
                    a.label(f"L_ox{k}")
                    a.ool += [f"L_ow{k}:", "    " + x[3], f"    s_branch L_ox{k}"]
                else: a.vmop(x[0], x[1])
            else: a(x)
    def q_cvt(g):
        u, t = divmod(g, 9)
        w = VW+8*(g&1); p = pkreg(u, t)
        for k in range(4): vq.append(f"v_cvt_pk_bf16_f32 v{p+k}, v{w+2*k}, v{w+2*k+1}")
    def q_pair(tp):
        for it in range(2):
            so = S_PW if it == 0 else S_PW1
            d = RB + 12*(2*tp+it) + 8
            for h in range(2):
                o = outreg(it, 2*tp+h)
                vq.append(f"v_cvt_pk_bf16_f32 v{d+2*h}, v{o}, v{o+1}")
                vq.append(f"v_cvt_pk_bf16_f32 v{d+2*h+1}, v{o+2}, v{o+3}")
            vq.append((f"buffer_store_dwordx4 v[{d}:{d+3}], v{VL}, s[{S_WS}:{S_WS+3}], s{so} offen offset:{1024*tp} sc1", f"part{tp}", it, f"ds_write_b128 v{FPA}, v[{d}:{d+3}] offset:{1024*tp}"))
    def q_t8():
        for it in range(2):
            so = S_PW if it == 0 else S_PW1
            d = RB + 12*8 + 8 + 2*it
            o = outreg(it, 8)
            vq.append(f"v_cvt_pk_bf16_f32 v{d}, v{o}, v{o+1}")
            vq.append(f"v_cvt_pk_bf16_f32 v{d+1}, v{o+2}, v{o+3}")
            vq.append((f"buffer_store_dwordx2 v[{d}:{d+1}], v{T+8}, s[{S_WS}:{S_WS+3}], s{so} offen sc1", "part3", it, f"ds_write_b64 v{TAGP}, v[{d}:{d+1}]"))
    def vw(g, ks, st):
        f = 4*g+ks; sl = BF + 4*(f % NBF)
        w = VW+8*(g&1)+4*st
        c = "0" if ks == 0 else f"v[{w}:{w+3}]"
        a(f"v_mfma_f32_16x16x32_bf16 v[{w}:{w+3}], a[{VF+16*st+4*ks}:{VF+16*st+4*ks+3}], a[{sl}:{sl+3}], {c}")
    def pv1(u, t, it):
        p = pkreg(u, t); o = outreg(it, t)
        c = "0" if u == 0 else f"v[{o}:{o+3}]"
        a(f"v_mfma_f32_16x16x32_bf16 v[{o}:{o+3}], v[{p}:{p+3}], a[{PF+8*u+4*it}:{PF+8*u+4*it+3}], {c}")
    a("s_barrier")
    a.stamp(2)
    a.lq = []
    ds_pop(8+2*NBF)
    a(f"v_lshlrev_b32 v{T+8}, 3, v1")
    a(f"v_add_u32 v{T+8}, 4096, v{T+8}")
    a(f"v_mov_b32 v{T+4}, {MBOX}")
    a(f"v_mov_b32 v{T+2}, 1")
    a(f"s_lshl_b32 s{S_T0}, s{S_RG}, 2")
    a(f"s_add_u32 s{S_T0}, s{S_T0}, s{S_W}")
    a(f"s_lshl_b32 s{S_T0}, s{S_T0}, 4")
    a(f"s_add_u32 s{S_T0}, s{S_T0}, s{S_SPLIT}")
    a(f"s_lshl_b32 s{S_T0}, s{S_T0}, 7")
    a(f"s_add_u32 s{S_T0}, s{S_T0}, {FR_BASE}")
    a(f"v_lshl_add_u32 v{T+3}, v1, 10, s{S_T0}")
    a(f"v_add_u32 v{FPA}, {base(15)}, v{VL}")
    a(f"v_add_u32 v{TAGP}, {base(15)}, v{T+8}")
    a(f"s_cmp_eq_u32 s{S_W}, s{S_HQ}")
    a(f"s_cselect_b32 s{S_OWN}, s{S_KQ}, 7")
    a(f"s_lshl_b32 s{S_SOK}, s{S_W}, 11")
    a(f"s_add_u32 s{S_SOK}, s{S_SOK}, {OPB}")
    a(f"v_add_u32 v{T+7}, s{S_LW8}, v{VL}")
    a(f"v_add_u32 v{T+7}, {base(14)}, v{T+7}")
    MKS = OPT["mks"]
    for g in range(36):
        u, t = divmod(g, 9)
        haspv = (u == 3 and t > 0)
        for ks in range(4):
            f = 4*g+ks
            assert not any(e[5] <= f for e in dsq), (f, dsq[0])
            a.wait_lg(f"W{f}", f"V{u}_{ks}")
            extra_ds = 2 if (t == 0 or (t == 8 and ks > MKS)) else 1
            vw(g, ks, 0)
            ds_pop(extra_ds)
            if not haspv and ks >= 2: v_pop(1)
            vw(g, ks, 1)
            state["pairs"] = f
            if u < 3 and t == 8 and ks == MKS:
                assert not any(e[1] <= u for e in dsq)
                a.wait_lg0()
                a("s_barrier")
                a.stamp(2)
                state["head"] = u+1
                ds_pop(6)
            else:
                ds_pop(extra_ds)
            if not haspv and ks >= 2: v_pop(1)
            if g > 0 and ks == 1 and not haspv: q_cvt(g-1)
            if g == 28 and ks == 0 and OPT["own"]:
                a(f"s_cmp_eq_u32 s{S_OWN}, 0")
                a("s_cselect_b64 vcc, -1, 0")
                a(f"s_cmp_eq_u32 s{S_OWN}, 1")
            if u == 3 and t == 0:
                if OPT["ownp"]:
                    a(f"s_add_u32 s{S_T1}, s{S_LW8}, {base(14) + 2048*ks}")
                    a(f"s_cmp_eq_u32 s{S_OU}, {ks}")
                    a(f"s_cselect_b32 s{S_T1}, s{S_SOK}, s{S_T1}")
                    a(f"v_add_u32 v{T+7}, s{S_T1}, v{VL}")
                for q in (2*ks, 2*ks+1):
                    off = 1024*(q&1) if OPT["ownp"] else 1024*q
                    a.ds(f"ds_read_b128 a[{PF+4*q}:{PF+4*q+3}], v{T+7} offset:{off}", f"P{q>>1}")
            if haspv:
                if t == 1: a.wait_lg(f"P{ks}")
                if ks == 1 and t in (3, 5, 7): q_pair((t-3)>>1)
                pv1(ks, t-1, 0); v_pop(2)
                if ks == 0: q_cvt(g-1)
                pv1(ks, t-1, 1)
                if ks < 3 or True: v_pop(2)
        assert not vq, (g, vq)
        if u < 3 and t == [OPT['r0pos'], OPT['r1pos'], OPT['rpos']][u]:
            a.wait_lg(f"V{u}_3")
            a("s_barrier")
    pv1(0, 8, 0); pv1(0, 8, 1); pv1(1, 8, 0); pv1(1, 8, 1); pv1(2, 8, 0)
    q_cvt(35); v_pop(2)
    pv1(2, 8, 1); v_pop(2)
    q_pair(3)
    v_pop(2)
    pv1(3, 8, 0); v_pop(2); pv1(3, 8, 1); v_pop(100)
    a("s_nop 0")
    q_t8(); v_pop(100)
    a.stamp(2)
    if OPT["two"]:
        a.wait_vm("part2")
        a("s_mov_b64 exec, 3")
        a(f"buffer_store_dword v{VTG}, v{T+3}, s[{S_WS}:{S_WS+3}], 0 offen sc1")
        a("s_mov_b64 exec, 1")
        a(f"ds_add_u32 v{T+4}, v{T+2}")
        a(f"s_mov_b32 s{S_T0}, {256<<10}")
        a("s_waitcnt vmcnt(1)")
        a("s_mov_b64 exec, 3")
        a(f"buffer_store_dword v{VTG}, v{T+3}, s[{S_WS}:{S_WS+3}], s{S_T0} offen sc1")
        a("s_mov_b64 exec, 1")
        a(f"ds_add_u32 v{T+4}, v{T+2} offset:8")
        a("s_mov_b64 exec, -1")
    else:
        a("s_waitcnt vmcnt(0)")
        a("s_mov_b64 exec, 3")
        a(f"buffer_store_dword v{VTG}, v{T+3}, s[{S_WS}:{S_WS+3}], 0 offen sc1")
        a("s_mov_b64 exec, 1")
        a(f"ds_add_u32 v{T+4}, v{T+2}")
        a("s_mov_b64 exec, -1")
    a.stamp(2)
    a(f"s_cmp_lg_u32 s{S_W}, 0")
    a("s_cbranch_scc1 L_cdone")
    LD=RB; RA=RB+32
    for r in range(4): a(f"v_mov_b32 v{RA+r}, 0")
    if OPT["own"]: member_offs(a)
    if OPT["two"]: mb_wait(a, "L_cgo", T+4, 12, 1)
    elif OPT["onep"]: mb_wait(a, "L_cgo", T+4, 4, 1)
    else: spin(a, "L_gw", FPA, TAGR, False, OPT["gsl"], OPT["apoll"])
    a.stamp()
    if OPT["own"]:
        for k in range(1, 8):
            a(f"buffer_load_dwordx2 v[{LD+2*k}:{LD+2*k+1}], v{T+8}, s[{S_WS}:{S_WS+3}], s{S_MO+k} offen sc1")
        a(f"ds_read_b64 v[{LD}:{LD+1}], v{TAGP}")
    else:
        for j in range(8):
            a(f"buffer_load_dwordx2 v[{LD+2*j}:{LD+2*j+1}], v{T+8}, s[{S_WS}:{S_WS+3}], s{S_RD} offen sc1")
            if j < 7: a(f"s_add_u32 s{S_RD}, s{S_RD}, {SLICE}")
    for j in range(8):
        a("s_waitcnt lgkmcnt(0)" if (j == 0 and OPT["own"]) else f"s_waitcnt vmcnt({7-j})")
        for d in range(2):
            a(f"v_dot2c_f32_bf16 v{RA+2*d}, s{S_ONE}, v{LD+2*j+d}")
            a(f"v_dot2c_f32_bf16 v{RA+2*d+1}, s{S_ONEH}, v{LD+2*j+d}")
    a("s_nop 2")
    a(f"v_cvt_pk_bf16_f32 v{LD}, v{RA}, v{RA+1}")
    a(f"v_cvt_pk_bf16_f32 v{LD+1}, v{RA+2}, v{RA+3}")
    a(f"buffer_store_dwordx2 v[{LD}:{LD+1}], v{T+6}, s[{S_OUT}:{S_OUT+3}], s{S_OA} offen{OSC}")
    a(f"s_lshl_b32 s{S_T2}, s2, 2")
    a(f"s_add_u32 s{S_T2}, s{S_T2}, {E_BASE}")
    flag_store("Eup", S_T2)
    a.label("L_cdone")
    stamp_out(a, 0)

def gen(a):
    kname = NAME + "_kernel"
    a.raw(f".globl {kname}"); a.raw(".p2align 8"); a.raw(f".type {kname},@function"); a.label(kname)
    a("s_load_dwordx16 s[36:51], s[0:1], 0")
    a("s_load_dwordx8 s[52:59], s[0:1], 64")
    a("s_load_dwordx2 s[60:61], s[0:1], 96")
    a("v_lshrrev_b32 v1, 6, v0")
    a("s_cmp_ge_u32 s2, 256")
    a("s_cbranch_scc1 L_end")
    a(f"v_readfirstlane_b32 s{S_T1}, v1")
    if OPT["stamp"]:
        a(f"v_mov_b32 v{V_STAMP}, 0")
        a.stamp(2)
    a(f"s_and_b32 s{S_T0}, s2, 7")
    a("v_and_b32 v1, 63, v0")
    a(f"s_lshr_b32 s{S_BR}, s{S_T0}, 2")
    a(f"s_and_b32 s{S_HQ}, s{S_T0}, 3")
    a(f"s_bfe_u32 s{S_RB}, s2, 0x20003")
    a(f"s_lshr_b32 s{S_HL}, s2, 5")
    a(f"s_and_b32 s{S_W}, s{S_T1}, 3")
    a(f"s_lshl_b32 s{S_H}, s{S_HQ}, 3")
    a(f"s_add_u32 s{S_H}, s{S_H}, s{S_HL}")
    a(f"s_lshl_b32 s{S_B}, s{S_RB}, 2")
    a(f"s_add_u32 s{S_B}, s{S_B}, s{S_W}")
    a(f"s_and_b32 s{S_CP}, s{S_HL}, 3")
    a(f"s_lshr_b32 s{S_KQ}, s{S_HL}, 2")
    a(f"s_lshl_b32 s{S_SPLIT}, s{S_HQ}, 1")
    a(f"s_add_u32 s{S_SPLIT}, s{S_SPLIT}, s{S_KQ}")
    a(f"s_lshl_b32 s{S_LW4}, s{S_W}, 12")
    a(f"s_lshl_b32 s{S_LW8}, s{S_W}, 13")
    a(f"s_cmp_ge_u32 s{S_T1}, 4")
    a("s_cbranch_scc1 L_loader")
    gen_compute_pro(a)
    a("s_branch L_compute")
    a.label("L_loader")
    gen_loader(a)
    a.raw(".p2align 6")
    a.label("L_compute")
    gen_compute(a)
    a.label("L_end")
    a("s_endpgm")
    for l in a.ool: a.raw(l)
    a.label('L_fin')

DOC = """
Generated by a hand-written generator script (own scheduling / register allocation).
One launch, 256 workgroups (one per CU), 8 waves: waves 0-3 compute, waves 4-7 issue LDS-DMA loads.
 phase 1: WG (branch, 4 batches, head h): q^T = Wq_h^T x^T (32x32x16 MFMA), S^T = K q^T, exact softmax (true row max),
          P (bf16) is handed to the 3 other WGs of its group through d_ws (tag in the sign bits, P >= 0).
 phase 2: WG (branch, 4 batches, 4 heads, 144 output columns): VW = V_h Wo_h, out^T += VW^T P_h^T (16x16x32 MFMA), fp32 accumulate.
 phase 3: split-K exchange of bf16 partials among the 8 WGs of an output tile (sc1 stores, flag after vmcnt(0), atomic poll), fp32 sum.
Hand-off tags are LCG(epoch word found in d_ws at entry); each WG rewrites its own epoch word when it is done.
"""

def main():
    a = Asm()
    hdr = open("cdna_kernels/%s.s.ref" % NAME).read().split("; Override")[0]
    a.raw(hdr.rstrip())
    a.raw(f"; @launch grid=(256,1,1) block=(512,1,1) lds={LDS_BYTES}")
    for l in DOC.strip("\n").split("\n"): a.raw("; " + l)
    a.raw('.amdgcn_target "amdgcn-amd-amdhsa--gfx950"')
    a.raw(".text")
    gen(a)
    a.raw('.section .rodata,"a"')
    a.raw(".p2align 6")
    a.raw(f".amdhsa_kernel {NAME}_kernel")
    a.raw(f"  .amdhsa_next_free_vgpr {NARCH+NACC}")
    a.raw(f"  .amdhsa_next_free_sgpr 102")
    a.raw(f"  .amdhsa_accum_offset {NARCH}")
    a.raw("  .amdhsa_group_segment_fixed_size 0")
    a.raw("  .amdhsa_kernarg_size 104")
    a.raw("  .amdhsa_user_sgpr_count 2")
    a.raw("  .amdhsa_user_sgpr_kernarg_segment_ptr 1")
    a.raw("  .amdhsa_system_sgpr_workgroup_id_x 1")
    a.raw(".end_amdhsa_kernel")
    open(sys.argv[1], "w").write(a.text())
    if os.environ.get("SHOW"): print(schedule())
main()
```
